```python
import torch

def _softmax(x, axis=-1):
    return torch.softmax(x, dim=axis)

def _gelu(x):
    return torch.nn.functional.gelu(x, approximate='tanh')

def _silu(x):
    return torch.nn.functional.silu(x)

def _sigmoid(x):
    return torch.sigmoid(x)

def _layernorm(x, axis=-1, eps=1e-05):
    m = x.mean(dim=axis, keepdim=True)
    v = x.var(dim=axis, keepdim=True, unbiased=False)
    return (x - m) / torch.sqrt(v + eps)

def _scatter_add(tgt, idx, src, axis=0):
    return tgt.clone().index_add_(axis, idx, src)

def _segment_sum(src, seg, n):
    out = torch.zeros((n,) + src.shape[1:], dtype=src.dtype)
    return out.index_add_(0, seg, src)

def _pad(x, pw):
    flat = tuple((v for pair in reversed(pw) for v in pair))
    return torch.nn.functional.pad(x, flat)
kernel_name = 'concat_heads__memory_aug_recurrent_mem_tr__memory_aug_recurrent_mem_tr__prompt'

def setup_inputs():

    _w = lambda a: (lambda t: t.to(torch.bfloat16) if t.is_floating_point() else t)(torch.as_tensor(a))

    def _A_setup():
        B, S, Dm = (1, 2048, 640)
        H, Dh = (32, 192)
        M, seg = (8, 32)
        seg = min(seg, S)
        S = S // seg * seg
        return {'x': _w((lambda *s: torch.randn(*s, dtype=torch.bfloat16) * 0.05)(B, S, Dm)), 'mem0': _w((lambda *s: torch.randn(*s, dtype=torch.bfloat16) * 0.4)(B, M, Dm)), 'Wq': _w((lambda *s: torch.randn(*s, dtype=torch.bfloat16) * 6.4)(Dm, H, Dh) * Dm ** (-0.5)), 'Wk': _w((lambda *s: torch.randn(*s, dtype=torch.bfloat16) * 6.4)(Dm, H, Dh) * Dm ** (-0.5)), 'Wv': _w((lambda *s: torch.randn(*s, dtype=torch.bfloat16) * 0.4)(Dm, H, Dh) * Dm ** (-0.5)), 'Wo': _w((lambda *s: torch.randn(*s, dtype=torch.bfloat16) * 0.4)(H, Dh, Dm) * (H * Dh) ** (-0.5)), 'seg_len': seg}
    _A_in = _A_setup()

    def _B_setup():
        B, S, Dm = (1, 2048, 640)
        H, Dh = (32, 192)
        M, seg = (8, 32)
        seg = min(seg, S)
        S = S // seg * seg
        return {'x': _w((lambda *s: torch.randn(*s, dtype=torch.bfloat16) * 0.05)(B, S, Dm)), 'mem0': _w((lambda *s: torch.randn(*s, dtype=torch.bfloat16) * 0.4)(B, M, Dm)), 'Wq': _w((lambda *s: torch.randn(*s, dtype=torch.bfloat16) * 6.4)(Dm, H, Dh) * Dm ** (-0.5)), 'Wk': _w((lambda *s: torch.randn(*s, dtype=torch.bfloat16) * 6.4)(Dm, H, Dh) * Dm ** (-0.5)), 'Wv': _w((lambda *s: torch.randn(*s, dtype=torch.bfloat16) * 0.4)(Dm, H, Dh) * Dm ** (-0.5)), 'Wo': _w((lambda *s: torch.randn(*s, dtype=torch.bfloat16) * 0.4)(H, Dh, Dm) * (H * Dh) ** (-0.5)), 'seg_len': seg}
    _B_in = _B_setup()
    return {'A_x': _A_in['x'], 'A_mem0': _A_in['mem0'], 'A_Wq': _A_in['Wq'], 'A_Wk': _A_in['Wk'], 'A_Wv': _A_in['Wv'], 'A_Wo': _A_in['Wo'], 'A_seg_len': _A_in['seg_len'], 'B_x': _B_in['x'], 'B_mem0': _B_in['mem0'], 'B_Wq': _B_in['Wq'], 'B_Wk': _B_in['Wk'], 'B_Wv': _B_in['Wv'], 'B_Wo': _B_in['Wo'], 'B_seg_len': _B_in['seg_len']}

def reference(A_x, A_mem0, A_Wq, A_Wk, A_Wv, A_Wo, A_seg_len, B_x, B_mem0, B_Wq, B_Wk, B_Wv, B_Wo, B_seg_len):

    def _A_ref(x, mem0, Wq, Wk, Wv, Wo, seg_len):
        B, S, Dm = x.shape
        H, Dh = (Wq.shape[1], Wq.shape[2])
        M = mem0.shape[1]
        scale = Dh ** (-0.5)
        n_seg = S // seg_len
        L = M + seg_len
        idx = torch.arange(L)
        mask = (idx[:, None] < M) | (idx[:, None] >= idx[None, :])
        mem = mem0
        outs = []
        for s in range(n_seg):
            xs = x[:, s * seg_len:(s + 1) * seg_len, :].clone()
            h = torch.concatenate([mem, xs], axis=1)
            q = torch.einsum('btd,dhe->bhte', h, Wq)
            k = torch.einsum('btd,dhe->bhte', h, Wk)
            v = torch.einsum('btd,dhe->bhte', h, Wv)
            scores = torch.einsum('bhqe,bhke->bhqk', q, k) * scale
            scores = torch.where(mask[None, None], scores, -1000000000.0)
            p = _softmax(scores, axis=-1)
            o = torch.einsum('bhqk,bhke->bhqe', p, v)
            o = torch.einsum('bhte,hed->btd', o, Wo)
            mem = o[:, :M, :].clone()
            outs.append(o[:, M:, :])
        return torch.concatenate(outs, axis=1)

    def _B_ref(x, mem0, Wq, Wk, Wv, Wo, seg_len):
        B, S, Dm = x.shape
        H, Dh = (Wq.shape[1], Wq.shape[2])
        M = mem0.shape[1]
        scale = Dh ** (-0.5)
        n_seg = S // seg_len
        L = M + seg_len
        idx = torch.arange(L)
        mask = (idx[:, None] < M) | (idx[:, None] >= idx[None, :])
        mem = mem0
        outs = []
        for s in range(n_seg):
            xs = x[:, s * seg_len:(s + 1) * seg_len, :].clone()
            h = torch.concatenate([mem, xs], axis=1)
            q = torch.einsum('btd,dhe->bhte', h, Wq)
            k = torch.einsum('btd,dhe->bhte', h, Wk)
            v = torch.einsum('btd,dhe->bhte', h, Wv)
            scores = torch.einsum('bhqe,bhke->bhqk', q, k) * scale
            scores = torch.where(mask[None, None], scores, -1000000000.0)
            p = _softmax(scores, axis=-1)
            o = torch.einsum('bhqk,bhke->bhqe', p, v)
            o = torch.einsum('bhte,hed->btd', o, Wo)
            mem = o[:, :M, :].clone()
            outs.append(o[:, M:, :])
        return torch.concatenate(outs, axis=1)
    a = _A_ref(A_x, A_mem0, A_Wq, A_Wk, A_Wv, A_Wo, A_seg_len)
    b = _B_ref(B_x, B_mem0, B_Wq, B_Wk, B_Wv, B_Wo, B_seg_len)
    return torch.concatenate([a, b], axis=-1)
```

```python
KNAME = "concat_heads__memory_aug_recurrent_mem_tr__memory_aug_recurrent_mem_tr__prompt"

class Asm:
    def __init__(self):
        self.lines = []
        self.nlab = 0
        self.stubs = []
    def __call__(self, s, *a):
        if a:
            s = s % a
        for ln in s.split("\n"):
            self.lines.append("    " + ln.strip())
    def label(self, name):
        self.lines.append(name + ":")
    def newlabel(self, p="L"):
        self.nlab += 1
        return "%s_%d" % (p, self.nlab)
    def comment(self, s):
        self.lines.append("    ; " + s)
    def raw(self, s):
        self.lines.append(s)
    def text(self):
        return "\n".join(self.lines) + "\n"

def v(i, n=1):
    return "v%d" % i if n == 1 else "v[%d:%d]" % (i, i + n - 1)
def a(i, n=1):
    return "a%d" % i if n == 1 else "a[%d:%d]" % (i, i + n - 1)
def s(i, n=1):
    return "s%d" % i if n == 1 else "s[%d:%d]" % (i, i + n - 1)

HEADER_COMMENT = """; Kernarg layout for this problem (136 bytes, ptrs only, base s[0:1]):
"""

def kernel_desc(name, vgpr, sgpr, accum):
    return """.p2align 6
.amdhsa_kernel %s
  .amdhsa_next_free_vgpr %d
  .amdhsa_next_free_sgpr %d
  .amdhsa_accum_offset %d
  .amdhsa_group_segment_fixed_size 0
  .amdhsa_kernarg_size 136
  .amdhsa_user_sgpr_count 2
  .amdhsa_user_sgpr_kernarg_segment_ptr 1
  .amdhsa_system_sgpr_workgroup_id_x 1
.end_amdhsa_kernel
""" % (name, vgpr, sgpr, accum)

def build_file(launches, kernels):
    out = HEADER_COMMENT
    for (k, g, b, l) in launches:
        out += "; @launch kernel=%s grid=(%d,1,1) block=(%d,1,1) lds=%d\n" % (k, g, b, l)
    out += '.amdgcn_target "amdgcn-amd-amdhsa--gfx950"\n.text\n'
    for (k, asm, vg, sg, ac) in kernels:
        out += ".globl %s\n.p2align 8\n.type %s,@function\n%s:\n" % (k, k, k)
        out += asm.text()
    out += '.section .rodata,"a"\n'
    for (k, asm, vg, sg, ac) in kernels:
        out += kernel_desc(k, vg, sg, ac)
    return out
```

```python
from asmlib import *
from layout import *
from chain import wait_flags, sexpr, spin_stub, sW, sB, sH, sT0, sT1, sT2, sT3, WS, VAlloc, f32bits, sSPIN
import math

sMAT = 18
sXO = 34
sXB = 35
sSEG = 36
sST0, sST1 = 37, 38
sFLG = 39
sG0, sL0, sG1 = 40, 41, 42
sKA = 88
X_BUF = 40960
L_X = 0
L_QI = 5*20480

def load_w(A, ptr_off, tag):
    vD = [1, 2, 3]; vTR = 4; t0, t1, t2, vN, vG = 5, 6, 7, 8, 9
    A("s_mul_i32 s%d, s%d, 56\ns_add_u32 s%d, s0, s%d\ns_addc_u32 s%d, s1, 0", sT0, sB, sKA, sT0, sKA+1)
    ptr_off(A)
    A("s_mov_b32 s10, %d\ns_mov_b32 s11, 0x20000", 640*6144*2)
    A("v_and_b32 v%d, 15, v0\nv_lshrrev_b32 v%d, 4, v0", vN, vG)
    sexpr(A, sT1, 0, (384, sH), (32*12288, sW))
    for i in range(3):
        A("v_add_u32 v%d, %d, v0\nv_mul_u32_u24 v%d, 171, v%d\nv_lshrrev_b32 v%d, 12, v%d", t0, 64*i, t1, t0, t1, t1)
        A("v_mul_u32_u24 v%d, 24, v%d\nv_sub_u32 v%d, v%d, v%d", t2, t1, t2, t0, t2)
        A("v_mul_u32_u24 v%d, 12288, v%d\nv_lshl_add_u32 v%d, v%d, 4, v%d\nv_add_u32 v%d, s%d, v%d", t1, t1, t1, t2, t1, vD[i], sT1, t1)
    A("v_lshrrev_b32 v%d, 2, v%d\nv_lshl_add_u32 v%d, v%d, 3, v%d\nv_mul_u32_u24 v%d, 384, v%d", t0, vN, t0, vG, t0, t0, t0)
    A("v_and_b32 v%d, 3, v%d\nv_lshl_add_u32 v%d, v%d, 3, v%d\ns_mul_i32 s%d, s%d, 96\nv_add_u32 v%d, s%d, v%d", t1, vN, t0, t1, t0, sT1, sW, vTR, sT1, t0)
    sexpr(A, sL0, 0, (12288, sW))
    A("s_waitcnt lgkmcnt(0)")
    def dma(c):
        for i in range(12):
            A("s_mov_b32 s%d, %d\ns_add_u32 m0, s%d, %d", sT0, (c*128 + (i//3)*8)*12288, sL0, (c % 2)*49152 + i*1024)
            A("s_nop 0\nbuffer_load_dwordx4 v%d, s[8:11], s%d offen lds", vD[i % 3], sT0)
    A("s_barrier")
    dma(0); dma(1)
    for c in range(5):
        A("s_waitcnt vmcnt(%d)\ns_barrier", 12 if c < 4 else 0)
        for kk in range(4):
            for t in range(3):
                for hf in range(2):
                    A("ds_read_b64_tr_b16 %s, v%d offset:%d", a(80*t + 4*(4*c+kk) + 2*hf, 2), vTR, (32*kk + 4*hf)*384 + 32*t)
        A("v_%s_u32 v%d, 49152, v%d", "add" if c % 2 == 0 else "subrev", vTR, vTR)
        A("s_waitcnt lgkmcnt(0)\ns_barrier")
        if c + 2 < 5: dma(c+2)

OPT = {"il": 1}
class VM:
    def __init__(self, A): self.A = A; self.ops = []; self.waits = []
    def op(self, tag, n=1): self.ops += [tag]*n
    def wait(self, needs):
        self.A("s_waitcnt vmcnt(@@)")
        self.waits.append((len(self.A.lines)-1, len(self.ops), needs))
    def resolve(self):
        n = len(self.ops)
        for line, p, needs in self.waits:
            best = 63
            for tag, back in needs:
                idx = [i for i, t in enumerate(self.ops) if t == tag and (back > 0 or i < p)]
                q = max(idx)
                best = min(best, p - q - 1 + back*n)
            assert best >= 0
            self.A.lines[line] = self.A.lines[line].replace("@@", str(best))

HB = 20480
class Proj:
    def __init__(self, A, vXD, vXr, vXF, vACC, vTmp, NR=6):
        self.A, self.vXD, self.vXr, self.vXF, self.vACC, self.vTmp = A, vXD, vXr, vXF, vACC, vTmp; self.NR = NR
    def setup(self):
        A = self.A
        A("s_load_dwordx2 s[8:9], s[%d:%d], 0", sKA, sKA+1)
        A("s_mov_b32 s10, %d", 2048*1280)
        A("v_and_b32 v5, 15, v0\nv_lshrrev_b32 v6, 4, v0\nv_mul_u32_u24 v5, 1280, v5\nv_lshl_add_u32 v5, v6, 4, v5")
        A("s_lshr_b32 s%d, s%d, 1\ns_and_b32 s%d, s%d, 1", sT1, sW, sT2, sW)
        sexpr(A, sT1, 0, (16*1280, sT1), (320, sT2))
        A("v_add_u32 v%d, s%d, v5", self.vXD, sT1)
        sexpr(A, sL0, L_X, (5120, sW))
        A("v_lshlrev_b32 v%d, 4, v0\nv_add_u32 v%d, %d, v%d", self.vXr, self.vXr+1, HB, self.vXr)
        A("s_mov_b32 s%d, 0\ns_mov_b32 s%d, s%d", sXO, sXB, sL0)
        A("s_waitcnt lgkmcnt(0)")
        for j in range(self.NR-2):
            for f in self.dma_fillers(j % 2): A(f)
        A("s_waitcnt vmcnt(0)\ns_barrier")
        self.rd(0, 0); self.rd(0, 1)
    def dma_fillers(self, kh):
        out = []
        for i in range(5):
            t = "s_add_u32 m0, s%d, %d\ns_nop 0\nbuffer_load_dwordx4 v%d, s[8:11], s%d offen offset:%d lds" % (sXB, i*1024 - i*64, self.vXD, sXO, i*64)
            if i == 4:
                t += "\ns_add_u32 s%d, s%d, %d\ns_add_u32 s%d, s%d, %d" % (sXO, sXO, 640 if kh == 0 else 32*1280 - 640, sXB, sXB, HB)
                t += "\ns_add_u32 s%d, s%d, %d\ns_cmp_ge_u32 s%d, s%d\ns_cselect_b32 s%d, s%d, s%d" % (sT0, sL0, self.NR*HB, sXB, sT0, sXB, sL0, sXB)
            out.append(t)
        return out
    def rd(self, kh, k, only=None):
        for tt in range(2):
            if only is not None and tt != only: continue
            self.A("ds_read_b128 %s, v%d offset:%d", v(self.vXF + 8*((10*kh+k) % 4) + 4*tt, 4), self.vXr + kh, tt*10240 + k*1024)
    def half(self, kh, w_is_a, fill, vm, xtag, needs):
        A = self.A
        dm = self.dma_fillers((kh + self.NR) % 2)
        for k in range(10):
            if k == 8:
                vm.wait(needs)
                A("s_barrier")
                r, t = self.vXr + kh, self.vTmp
                A("v_add_u32 v%d, %d, v%d\nv_cmp_le_u32 vcc, %d, v%d\nv_subrev_u32 v%d, %d, v%d\nv_cndmask_b32 v%d, v%d, v%d, vcc", r, 2*HB, r, self.NR*HB, r, t, self.NR*HB, r, r, r, t)
            nk = (kh, k+2) if k < 8 else (1-kh, k-8)
            if not OPT.get("il"): self.rd(*nk)
            A("s_waitcnt lgkmcnt(%d)", 4 if not OPT.get("il") else 2)
            kk = 10*kh + k
            for t in range(3):
                for tt in range(2):
                    acc = v(self.vACC + 8*t + 4*tt, 4); w = a(80*t + 4*kk, 4); x = v(self.vXF + 8*(kk % 4) + 4*tt, 4)
                    A("v_mfma_f32_16x16x32_bf16 %s, %s, %s, %s", acc, w if w_is_a else x, x if w_is_a else w, "0" if kk == 0 else acc)
                    if OPT.get("il") and tt == 0 and t < 2: self.rd(*nk, only=t)
                    if t == 2 and tt == 0 and k < 5:
                        A(dm[k]); vm.op(xtag)
            if k in fill:
                A(fill[k][0])
                for tag, n in fill[k][1]: vm.op(tag, n)

def emit_kv(A):
    ws = WS
    def ptr(A):
        A("s_lshl_b32 s%d, s%d, 3\ns_add_u32 s%d, s%d, s%d\ns_addc_u32 s%d, s%d, 0", sT0, sMAT, 90, sKA, sT0, 91, sKA+1)
        A("s_load_dwordx2 s[8:9], s[90:91], 24")
    load_w(A, ptr, "kv")
    vXD, vXr, vL16, vZ, vF, vTmp = 1, 2, 4, 10, 11, 12
    vXF, vACC, vO = 16, 48, 72
    P = Proj(A, vXD, vXr, vXF, vACC, vTmp)
    A("v_lshlrev_b32 v%d, 4, v0\nv_mov_b32 v%d, 0\ns_mov_b32 s%d, 0", vL16, vZ, sSEG)
    sexpr(A, sT2, 0, (32, sB), (1, sH))
    sexpr(A, sFLG, F_KV, (256, sT2), (128, sMAT))
    A("s_lshr_b32 s%d, s%d, 1\ns_and_b32 s%d, s%d, 1", sT1, sW, sT3, sW)
    sexpr(A, sST0, KX_OFF-12288, (HS, sT2), (6144, sT1), (1024, sT3))
    sexpr(A, sST1, KX_OFF+4096-12288, (HS, sT2), (6144, sT1), (1024, sT3))
    A("s_cmp_eq_u32 s%d, 0\ns_cbranch_scc1 L_kv_st", sMAT)
    sexpr(A, sST0, VX_OFF-12288, (HS, sT2), (3072, sW))
    A.label("L_kv_st")
    A("s_mov_b32 s%d, s%d\ns_mov_b32 s%d, s%d", sG0, sST0, sG1, sST1)
    sexpr(A, sST0, SCRATCH_OFF, (16384, 2))
    A("s_mov_b32 s%d, s%d", sST1, sST0)
    P.setup()
    A("s_cmp_eq_u32 s%d, 1\ns_cbranch_scc1 L_kv1_loop", sMAT)
    for mat in range(2):
        L = "L_kv%d" % mat
        NST = 3
        def stores():
            if mat == 0:
                o = ["buffer_store_dwordx4 %s, v%d, %s, s%d offen offset:%d sc1" % (v(vO+4*i, 4), vL16, ws, sST0 if i < 2 else sST1, 2048 if i == 1 else 0) for i in range(3)]
                return [o[0] + "\n" + o[1], o[2]]
            o = ["buffer_store_dwordx4 %s, v%d, %s, s%d offen offset:%d sc1" % (v(vO+4*t, 4), vL16, ws, sST0, 1024*t) for t in range(3)]
            return [o[0] + "\n" + o[1], o[2]]
        A.label(L+"_loop")
        st = stores()
        l3 = A.newlabel()
        vm = VM(A)
        P.half(0, mat == 0, {5: (st[0], [("S", 2)]), 6: (st[1], [("S", NST-2)])}, vm, "X0", [("X1", 2)])
        flag = ("s_cmp_lg_u32 s%d, 0\ns_cbranch_scc1 %s\ns_cmp_lt_u32 s%d, 2\ns_cbranch_scc1 %s\n" % (sW, l3, sSEG, l3) +
                "s_sub_u32 s%d, s%d, 1\nv_mov_b32 v%d, s%d\ns_mov_b64 exec, 1\n" % (sT0, sSEG, vF, sT0) +
                "buffer_store_dword v%d, v%d, %s, s%d offen sc1\ns_mov_b64 exec, -1\n%s:" % (vF, vZ, ws, sFLG, l3))
        P.half(1, mat == 0, {8: (flag, [])}, vm, "X1", [("X0", 1), ("S", 1)])
        vm.resolve()
        A("s_cmp_eq_u32 s%d, 0\ns_cselect_b32 s%d, s%d, s%d\ns_cselect_b32 s%d, s%d, s%d", sSEG, sST0, sG0, sST0, sST1, sG1, sST1)
        A("s_add_u32 s%d, s%d, 12288\ns_add_u32 s%d, s%d, 12288\ns_add_u32 s%d, s%d, 1", sST0, sST0, sST1, sST1, sSEG, sSEG)
        A("s_nop 1")
        if mat == 0:
            for t in range(3):
                for tt in range(2):
                    for h2 in range(2):
                        A("v_cvt_pk_bf16_f32 v%d, v%d, v%d", vO + (4*tt + 2*t if t < 2 else 8 + 2*tt) + h2, vACC + 8*t + 4*tt + 2*h2, vACC + 8*t + 4*tt + 2*h2 + 1)
        else:
            for t in range(3):
                for i in range(4):
                    A("v_cvt_pk_bf16_f32 v%d, v%d, v%d", vO + 4*t + i, vACC + 8*t + 2*i, vACC + 8*t + 2*i + 1)
        A("s_cmp_lt_u32 s%d, 64\ns_cbranch_scc1 %s_loop", sSEG, L)
        for x in stores(): A(x)
        if mat == 0: A("s_branch L_kv_fin")
    A.label("L_kv_fin")
    A("s_waitcnt vmcnt(0) lgkmcnt(0)\ns_barrier")
    lab = A.newlabel()
    A("s_cmp_lg_u32 s%d, 0\ns_cbranch_scc1 %s", sW, lab)
    A("v_mov_b32 v%d, 64\ns_mov_b64 exec, 1", vF)
    A("buffer_store_dword v%d, v%d, %s, s%d offen sc1\ns_mov_b64 exec, -1", vF, vZ, ws, sFLG)
    A.label(lab)


sUN = 36
sKXa, sKMa, sOXa = 37, 38, 39
sAV = 43
sSC2 = 44
sFCH = 45
sKXb, sKXc, sVXa, sVXb, sVXc, sVMa = 46, 47, 48, 49, 50, 51

def merge(A, M, Vv):
    n = len(M); done = 0
    for i, m in enumerate(M):
        A(m)
        upto = (len(Vv)*(i+1))//n
        for x in Vv[done:upto]:
            if callable(x): x()
            else: A(x)
        done = upto

def softmax_stream(vS, nv, vP, vP0, bias, t0, t1, t2, sSC):
    o = ["s_nop 7"]
    o += bias
    r = list(range(vS, vS+nv))
    o.append("v_max3_f32 v%d, v%d, v%d, v%d" % (t0, r[0], r[1], r[2]))
    o.append("v_max3_f32 v%d, v%d, v%d, v%d" % (t1, r[3], r[4], r[5]))
    o.append("v_max3_f32 v%d, v%d, v%d, v%d" % (t0, t0, r[6], r[7]))
    if nv == 12:
        o.append("v_max3_f32 v%d, v%d, v%d, v%d" % (t1, t1, r[8], r[9]))
        o.append("v_max3_f32 v%d, v%d, v%d, v%d" % (t0, t0, r[10], r[11]))
    o += ["v_max_f32 v%d, v%d, v%d" % (t2, t0, t1), "v_max_f32 v%d, v%d, v%d" % (t0, t0, t1), "s_nop 1", "v_permlane32_swap_b32 v%d, v%d" % (t0, t2)]
    o += ["v_max_f32 v%d, v%d, v%d" % (t1, t0, t2), "v_max_f32 v%d, v%d, v%d" % (t0, t0, t2), "s_nop 1", "v_permlane16_swap_b32 v%d, v%d" % (t0, t1)]
    o += ["v_max_f32 v%d, v%d, v%d" % (t0, t0, t1), "v_mul_f32 v%d, s%d, v%d" % (t0, sSC, t0)]
    o += ["v_fma_f32 v%d, v%d, s%d, -v%d" % (x, x, sSC, t0) for x in r]
    o += ["v_exp_f32 v%d, v%d" % (x, x) for x in r]
    o += ["v_cvt_pk_bf16_f32 v%d, v%d, v%d" % (vP0+i, vS+2*i, vS+2*i+1) for i in range(2)]
    o += ["v_cvt_pk_bf16_f32 v%d, v%d, v%d" % (vP+i, vS+4+2*i, vS+5+2*i) for i in range((nv-4)//2)]
    if nv == 8: o += ["v_mov_b32 v%d, 0" % (vP+2), "v_mov_b32 v%d, 0" % (vP+3)]
    pk = lambda d, x: "v_pk_add_f32 %s, %s, %s" % (v(d,2), v(d,2), v(x,2))
    o += [pk(vS, vS+2), pk(vS+4, vS+6)]
    if nv == 12: o += [pk(vS+8, vS+10), pk(vS, vS+8)]
    o += [pk(vS, vS+4), "v_add_f32 v%d, v%d, v%d" % (t0, vS, vS+1), "v_add_f32 v%d, v%d, v%d" % (t1, vS, vS+1), "s_nop 1",
          "v_permlane32_swap_b32 v%d, v%d" % (t0, t1), "v_add_f32 v%d, v%d, v%d" % (t2, t0, t1), "v_add_f32 v%d, v%d, v%d" % (t0, t0, t1), "s_nop 1",
          "v_permlane16_swap_b32 v%d, v%d" % (t0, t2), "v_add_f32 v%d, v%d, v%d" % (t0, t0, t2), "v_rcp_f32 v%d, v%d" % (vS, t0), "s_nop 1"]
    return o

def emit_qa(A, nunits=16):
    ws = WS
    load_w(A, lambda A: A("s_load_dwordx2 s[8:9], s[%d:%d], 16", sKA, sKA+1), "qa")
    vXD, vXr, vL16, vZ, vTmp = 1, 2, 4, 10, 12
    pKM, pVM, vQw, vQw2, vQr, vFL = 5, 6, 7, 8, 9, 11
    t0, t1, t2 = 13, 14, 15
    vXF, vACC, vK, vV, vVm = 16, 48, 72, 144, 192
    vB0, vDG, vS0, vS1, vPa, vPb, vP0a, vP0b = 216, 220, 224, 232, 244, 248, 252, 254
    vN, vG = 218, 219
    P = Proj(A, vXD, vXr, vXF, vACC, vTmp, NR=5)
    P.setup()
    A("v_lshlrev_b32 v%d, 4, v0\nv_mov_b32 v%d, 0\ns_mov_b32 s%d, 0\ns_mov_b32 s%d, 0", vL16, vZ, sUN, sAV)
    A("v_and_b32 v%d, 15, v0\nv_lshrrev_b32 v%d, 4, v0\nv_lshlrev_b32 v%d, 7, v0", vN, vG, vFL)
    A("v_and_b32 v%d, 7, v%d\nv_lshlrev_b32 v%d, 4, v%d\nv_lshl_add_u32 v%d, v%d, 7, v%d", t0, vN, t0, t0, pKM, vG, t0)
    A("v_and_b32 v%d, 31, v0\nv_lshlrev_b32 v%d, 4, v%d", t0, pVM, t0)
    A("s_lshr_b32 s%d, s%d, 1\ns_and_b32 s%d, s%d, 1", sT1, sW, sT3, sW)
    sexpr(A, sT2, L_QI, (3072, sT1), (1024, sT3)); A("v_add_u32 v%d, s%d, v%d", vQw, sT2, vL16)
    sexpr(A, sT2, L_QI+2048, (3072, sT1), (8, sT3)); A("v_add_u32 v%d, s%d, v%d", vQw2, sT2, vL16)
    sexpr(A, sT2, L_QI, (12288, sW)); A("v_add_u32 v%d, s%d, v%d", vQr, sT2, vL16)
    A("v_mov_b32 v%d, 0xf149f2ca\nv_cmp_lt_u32 vcc, 1, v%d\ns_nop 1\nv_cndmask_b32 v%d, 0, v%d, vcc", t1, vG, vB0, t1)
    for r in range(4):
        A("v_lshl_add_u32 v%d, v%d, 2, %d\nv_cmp_gt_u32 vcc, v%d, v%d\ns_nop 1\nv_cndmask_b32 v%d, 0, v%d, vcc", t0, vG, r, t0, vN, vDG+r, t1)
    A("s_mov_b32 s%d, 0x%08x", sSC2, f32bits((192 ** -0.5) * math.log2(math.e)))
    sexpr(A, sT2, 0, (32, sB), (1, sH))
    sexpr(A, sKXa, KX_OFF, (HS, sT2), (12288, sW))
    sexpr(A, sKMa, KM_OFF, (HM, sT2), (3072, sW))
    sexpr(A, sOXa, OX_OFF, (128*32*6144, sB), (2*32*6144, sW), (6144, sH))
    sexpr(A, sFCH, F_CH, (256, sT2))
    sexpr(A, sT1, F_KV, (256, sT2)); A("s_mov_b32 s%d, 64", sT2)
    wait_flags(A, vFL, t0, sT1, sT2, 3)
    A.label("L_qa_loop")
    vm = VM(A)
    def ld4(dst, voff, so, off): return "buffer_load_dwordx4 %s, v%d, %s, s%d offen offset:%d sc1" % (v(dst, 4), voff, ws, so, off)
    A("s_add_u32 s%d, s%d, 4096\ns_add_u32 s%d, s%d, 6144", sKXb, sKXa, sKXc, sKXa)
    A("s_add_u32 s%d, s%d, %d\ns_add_u32 s%d, s%d, 4096\ns_add_u32 s%d, s%d, 8192", sVXa, sKXa, VX_OFF-KX_OFF, sVXb, sVXa, sVXc, sVXa)
    A("s_add_u32 s%d, s%d, %d\ns_add_u32 s%d, s%d, 10240", sVMa, sKMa, VM_OFF-KM_OFF, sG0, sKXa)
    kx = []
    for u in range(2):
        for t in range(2):
            for kap in range(2): kx.append(ld4(vK + 24*(1+t) + 4*(3*u+kap), vL16, sKXa if u == 0 else sKXc, 2048*t + 1024*kap))
            kx.append(ld4(vK + 24*(1+t) + 4*(3*u+2), vL16, sKXb if u == 0 else sG0, 1024*t))
    vx = [ld4(vV + 4*tau, vL16, (sVXa, sVXb, sVXc)[tau//4], 1024*(tau % 4)) for tau in range(12)]
    mm = [ld4(vK + 4*k6, pKM, sKMa, 512*k6) for k6 in range(6)] + [ld4(vVm + 4*p, pVM, sVMa, 512*p) for p in range(6)]
    def spread(lst, ks, tag):
        out = {}
        n = (len(lst) + len(ks) - 1)//len(ks)
        for i, k in enumerate(ks):
            part = lst[i*n:(i+1)*n]
            if part: out[k] = ("\n".join(part), [(tag, len(part))])
        return out
    l3 = A.newlabel()
    oflag = ("s_cmp_lg_u32 s%d, 0\ns_cbranch_scc1 %s\ns_cmp_eq_u32 s%d, 0\ns_cbranch_scc1 %s\n" % (sW, l3, sUN, l3) +
             "s_lshl_b32 s%d, s%d, 4\ns_add_u32 s%d, s%d, s%d\ns_lshl_b32 s%d, s%d, 2\n" % (sT1, sB, sT0, sUN, sT1, sT0, sT0) +
             "v_mov_b32 v%d, 1\ns_mov_b64 exec, 1\nbuffer_atomic_add v%d, v%d, s[12:15], s%d offen offset:%d\ns_mov_b64 exec, -1\n%s:" % (t0, t0, vZ, sT0, D_FO-4, l3))
    def qout(sg):
        A("s_nop 1")
        for t in range(3):
            for tt in range(2):
                for h2 in range(2):
                    A("v_cvt_pk_bf16_f32 v%d, v%d, v%d", vS0 + (4*tt + 2*t if t < 2 else 8 + 2*tt) + h2, vACC + 8*t + 4*tt + 2*h2, vACC + 8*t + 4*tt + 2*h2 + 1)
        for tt in range(2):
            A("ds_write_b128 v%d, %s offset:%d", vQw, v(vS0+4*tt, 4), (2*sg+tt)*6144)
            A("ds_write_b64 v%d, %s offset:%d", vQw2, v(vS0+8+2*tt, 2), (2*sg+tt)*6144)
    fills = {1: spread(kx[:6], range(5, 8), "K"), 2: spread(kx[6:], range(5, 8), "K"), 3: spread(vx[:6], range(5, 8), "V"), 4: spread(vx[6:], range(5, 8), "V"),
             7: spread(mm, range(0, 6), "M")}
    fills[1][8] = (oflag, [])
    for hj in range(8):
        if hj == 7:
            A("s_lshl_b32 s%d, s%d, 2\ns_add_u32 s%d, s%d, s%d\ns_add_u32 s%d, s%d, 1", sG1, sUN, sG1, sG1, sW, sG1, sG1)
            wait_flags(A, vFL, t0, sFCH, sG1, 3, cache_sgpr=sAV)
        src = hj + 1 - 3
        needs = [("X%d" % (src % 8), 1 if src < 0 else 0)]
        if hj == 1: needs.append(("O", 1))
        P.half(hj % 2, True, fills.get(hj, {}), vm, "X%d" % hj, needs)
        if hj % 2 == 1: qout(hj//2)
    A("s_waitcnt lgkmcnt(0)\ns_barrier")
    vQ = vACC
    def qrd(qh):
        for k6 in range(6): A("ds_read_b128 %s, v%d offset:%d", v(vQ+4*k6, 4), vQr, 6144*qh + 1024*k6)
    qrd(0)
    vm.wait([("M", 0)])
    for u in range(2):
        for i in range(2): A("v_swap_b32 v%d, v%d", vK + 24 + 4*(3*u+2) + 2 + i, vK + 48 + 4*(3*u+2) + i)
    mf = "v_mfma_f32_16x16x32_bf16 %s, %s, %s, %s"
    for k6 in range(6):
        A("s_waitcnt lgkmcnt(%d)", 5-k6)
        for tl in range(2):
            A(mf, v(vS0+4*tl, 4), v(vK+24*tl+4*k6, 4), v(vQ+4*k6, 4), "0" if k6 == 0 else v(vS0+4*tl, 4))
    qrd(1)
    b0 = lambda S: ["v_pk_add_f32 %s, %s, %s op_sel_hi:[1,0]" % (v(S+2*h2,2), v(S+2*h2,2), v(vB0,2)) for h2 in range(2)]
    dg = lambda S: ["v_pk_add_f32 %s, %s, %s" % (v(S+2*h2,2), v(S+2*h2,2), v(vDG+2*h2,2)) for h2 in range(2)]
    M = []
    for k6 in range(6):
        for tl in range(3):
            M.append(("s_waitcnt lgkmcnt(%d)\n" % (5-k6) if tl == 0 else "") + mf % (v(vS1+4*tl, 4), v(vK+24*tl+4*k6, 4), v(vQ+4*k6, 4), "0" if k6 == 0 else v(vS1+4*tl, 4)))
    for x in softmax_stream(vS0, 8, vPa, vP0a, b0(vS0)+dg(vS0+4), t0, t1, t2, sSC2)[:8]: A(x)
    merge(A, M, softmax_stream(vS0, 8, vPa, vP0a, b0(vS0)+dg(vS0+4), t0, t1, t2, sSC2)[8:])
    oreg = [[vK + 4*t for t in range(12)], [vK + 48 + 4*t for t in range(6)] + [vACC + 4*t for t in range(6)]]
    def pv(qh, vP, vP0):
        o = []
        for t in range(12):
            o.append(mf % (v(oreg[qh][t],4), v(vV+4*t,4), v(vP,4), "0"))
        for t in range(12):
            o.append("v_mfma_f32_16x16x16_bf16 %s, %s, %s, %s" % (v(oreg[qh][t],4), v(vVm+2*t,2), v(vP0,2), v(oreg[qh][t],4)))
        return o
    def ofin(qh, vS):
        o = ["s_nop 7"]
        for kap in range(6):
            a0, a1 = oreg[qh][2*kap], oreg[qh][2*kap+1]
            for i, src in enumerate((a0, a0+2, a1, a1+2)):
                o.append("v_pk_mul_f32 %s, %s, %s op_sel_hi:[1,0]" % (v(src,2), v(src,2), v(vS,2)))
                o.append("v_cvt_pk_bf16_f32 v%d, v%d, v%d" % (a0+i, src, src+1))
            def st(kap=kap, a0=a0):
                A("buffer_store_dwordx4 %s, v%d, %s, s%d offen offset:%d sc1", v(a0,4), vL16, ws, (sOXa if kap < 4 else sT1) if qh == 0 else (sG0 if kap < 4 else sG1), 1024*(kap % 4))
                vm.op("O")
            o.append(st)
        return o
    A("s_add_u32 s%d, s%d, 4096\ns_add_u32 s%d, s%d, %d\ns_add_u32 s%d, s%d, %d", sT1, sOXa, sG0, sOXa, 32*6144, sG1, sOXa, 32*6144+4096)
    merge(A, pv(0, vPa, vP0a), softmax_stream(vS1, 12, vPb, vP0b, b0(vS1)+dg(vS1+8), t0, t1, t2, sSC2))
    merge(A, pv(1, vPb, vP0b), ofin(0, vS0))
    for x in ofin(1, vS1):
        if callable(x): x()
        else: A(x)
    vm.resolve()
    A("s_add_u32 s%d, s%d, %d\ns_add_u32 s%d, s%d, %d\ns_add_u32 s%d, s%d, %d", sKXa, sKXa, 4*12288, sKMa, sKMa, 4*3072, sOXa, sOXa, 8*32*6144)
    A("s_add_u32 s%d, s%d, 1\ns_cmp_lt_u32 s%d, %d\ns_cbranch_scc1 L_qa_loop", sUN, sUN, sUN, nunits)
    A("s_waitcnt vmcnt(0) lgkmcnt(0)\ns_barrier")
    A(oflag.replace(l3, l3+"b"))


def dbg_wait(A, byte_off_sgpr, const_off, need, vz, vt):
    l0 = A.newlabel(); l1 = A.newlabel()
    A.label(l0)
    A("buffer_load_dword v%d, v%d, s[12:15], %s offen offset:%d sc1\ns_waitcnt vmcnt(0)", vt, vz, "s%d" % byte_off_sgpr if byte_off_sgpr is not None else "0", const_off)
    A("v_cmp_gt_u32 vcc, %d, v%d\ns_cbranch_vccz %s\ns_sleep 8\ns_branch %s", need, vt, l1, spin_stub(A, l0))
    A.label(l1)

def emit_wof(A):
    ws = WS
    vD, vTR, vL16, vZ, t0, t1 = 1, 2, 3, 4, 5, 6
    vF = 16
    A("s_load_dwordx2 s[8:9], s[%d:%d], 40", sKA, sKA+1)
    A("s_mov_b32 s10, %d\ns_mov_b32 s11, 0x20000", 6144*1280)
    A("v_lshlrev_b32 v%d, 4, v0\nv_mov_b32 v%d, 0", vL16, vZ)
    A("v_lshrrev_b32 v%d, 2, v0\nv_mul_u32_u24 v%d, 1280, v%d\nv_and_b32 v%d, 3, v0\nv_lshl_add_u32 v%d, v%d, 3, v%d", t0, t0, t0, t1, t0, t1, t0)
    A("s_mul_i32 s%d, s%d, 320\nv_add_u32 v%d, s%d, v%d", sT0, sW, vTR, sT0, t0)
    sexpr(A, sG0, 0, (192*1280, sH), (10240, sW))
    sexpr(A, sL0, 0, (10240, sW))
    sexpr(A, sST0, WOF_OFF, (192*40960, sB), (6*40960, sH), (10240, sW))
    A("s_waitcnt vmcnt(0) lgkmcnt(0)\ns_barrier")
    def dma(k):
        for i in range(10):
            if i % 4 == 0: A("s_add_u32 m0, s%d, %d\ns_add_u32 s%d, s%d, %d", sL0, (k % 3)*40960 + i*1024, sT0, sG0, k*40960 + i*1024)
            A("buffer_load_dwordx4 v%d, s[8:11], s%d offen offset:%d lds", vL16, sT0, (i % 4)*1024)
    dma(0); dma(1)
    for k in range(6):
        A("s_waitcnt vmcnt(%d)\ns_barrier", (10 if k < 5 else 0) + (10 if k > 0 else 0))
        if k + 2 < 6: dma(k+2)
        for ct in range(10):
            for hf in range(2):
                A("ds_read_b64_tr_b16 %s, v%d offset:%d", v(vF + 4*ct + 2*hf, 2), vTR, 16*1280*hf + 32*ct)
        A("v_add_u32 v%d, %d, v%d", vTR, (40960 if k % 3 != 2 else -81920) & 0xffffffff, vTR)
        for ct in range(10):
            if ct % 4 == 0: A("s_add_u32 s%d, s%d, %d", sT0, sST0, k*40960 + ct*1024)
            A("s_waitcnt lgkmcnt(%d)\nbuffer_store_dwordx4 %s, v%d, %s, s%d offen offset:%d sc1", min(15, 18-2*ct), v(vF+4*ct, 4), vL16, ws, sT0, (ct % 4)*1024)
        A("s_nop 1")
    A("s_waitcnt vmcnt(0)\ns_barrier")
    lab = A.newlabel()
    A("s_cmp_lg_u32 s%d, 0\ns_cbranch_scc1 %s", sW, lab)
    A("v_mov_b32 v%d, 1\ns_mov_b64 exec, 1\nbuffer_atomic_add v%d, v%d, s[12:15], 0 offen offset:%d\ns_mov_b64 exec, -1", t0, t0, vZ, D_WOF)
    A.label(lab)

sBLK, sCB, sKS, sSP, sNB = 20, 21, 22, 23, 24
sAO, sAB, sBO0, sBO1, sIT = 34, 35, 36, 37, 38
def emit_op(A):
    ws = WS
    NRA = 6
    vL16, vZ, vAr, vAn, pOUT, t0, t1, t2 = 1, 2, 3, 4, 5, 6, 7, 8
    vAF, vBF, vE = 64, 144, 16
    A("v_lshlrev_b32 v%d, 4, v0\nv_mov_b32 v%d, 0", vL16, vZ)
    A("s_load_dwordx2 s[8:9], s[0:1], 112\ns_mov_b32 s10, %d\ns_mov_b32 s11, 0x20000", 2048*2560)
    A("v_and_b32 v%d, 15, v0\nv_mul_u32_u24 v%d, 2560, v%d\nv_bfe_u32 v%d, v0, 4, 1\nv_lshl_add_u32 v%d, v%d, 5, v%d\nv_lshrrev_b32 v%d, 5, v0\nv_lshl_add_u32 v%d, v%d, 4, v%d", t0, t0, t0, t1, t0, t1, t0, t1, pOUT, t1, t0)
    dbg_wait(A, None, D_WOF, 64, vZ, t0)
    A("s_lshr_b32 s%d, s%d, 1\ns_and_b32 s%d, s%d, 1", sT1, sW, sT2, sW)
    sexpr(A, sG0, WOF_OFF, (40960, sT1), (5120, sT2))
    sexpr(A, sL0, 0, (5120, sW))
    A.label("L_op_next")
    A("s_waitcnt vmcnt(0) lgkmcnt(0)\ns_barrier")
    lab = A.newlabel()
    A("s_cmp_lg_u32 s%d, 0\ns_cbranch_scc1 %s", sW, lab)
    A("v_mov_b32 v%d, 1\ns_mov_b64 exec, 1\nbuffer_atomic_add v%d, v%d, s[12:15], 0 offen offset:%d sc0\nv_mov_b32 v%d, %d\ns_waitcnt vmcnt(0)\nds_write_b32 v%d, v%d\ns_waitcnt lgkmcnt(0)\ns_mov_b64 exec, -1", t0, t0, vZ, D_QUEUE, t1, NRA*HB, t1, t0)
    A.label(lab)
    A("s_barrier\nv_mov_b32 v%d, %d\nds_read_b32 v%d, v%d\ns_waitcnt lgkmcnt(0)\nv_readfirstlane_b32 s%d, v%d", t1, NRA*HB, t0, t1, sIT, t0)
    total = sum(8*x for x in SPLIT)
    A("s_cmp_ge_u32 s%d, %d\ns_cbranch_scc1 L_op_done", sIT, total)
    base = 0; blk = 0; runs = []
    while blk < 16:
        e = blk
        while e < 16 and SPLIT[e] == SPLIT[blk]: e += 1
        runs.append((base, blk, SPLIT[blk])); base += 8*SPLIT[blk]*(e-blk); blk = e
    for (bs, bk, sp) in runs:
        lg = sp.bit_length()-1
        lab = A.newlabel()
        if bs: A("s_cmp_lt_u32 s%d, %d\ns_cbranch_scc1 %s", sIT, bs, lab)
        A("s_sub_u32 s%d, s%d, %d\ns_lshr_b32 s%d, s%d, %d\ns_add_u32 s%d, s%d, %d", sT0, sIT, bs, sBLK, sT0, 3+lg, sBLK, sBLK, bk)
        A("s_and_b32 s%d, s%d, %d\ns_lshr_b32 s%d, s%d, %d\ns_mov_b32 s%d, %d\ns_mov_b32 s%d, %d", sKS, sT0, sp-1, sT1, sT0, lg, sSP, sp, sNB, 24//sp)
        A.label(lab)
    A("s_and_b32 s%d, s%d, 3\ns_bfe_u32 s%d, s%d, 0x10002", sCB, sT1, sB, sT1)
    A("s_mul_i32 s%d, s%d, s%d\ns_lshl_b32 s%d, s%d, 3", sT2, sKS, sNB, sT2, sT2)
    sexpr(A, sAO, 0, (1, sG0), (192*40960, sB), (40960, sT2), (10240, sCB))
    sexpr(A, sBO0, OX_OFF, (128*196608, sB), (8*196608, sBLK), (2*196608, sW), (1024, sT2))
    A("s_add_u32 s%d, s%d, 196608\ns_mov_b32 s%d, s%d", sBO1, sBO0, sAB, sL0)
    def adma():
        o = []
        for i in range(5):
            t = ""
            if i == 0: t = "s_mov_b32 m0, s%d\ns_nop 0\n" % sAB
            if i == 4: t = "s_add_u32 m0, s%d, 4096\ns_add_u32 s%d, s%d, 4096\n" % (sAB, sT0, sAO)
            t += "buffer_load_dwordx4 v%d, %s, s%d offen offset:%d sc1 lds" % (vL16, ws, sAO if i < 4 else sT0, 1024*(i % 4))
            if i == 4:
                t += "\ns_add_u32 s%d, s%d, %d\ns_add_u32 s%d, s%d, %d" % (sAO, sAO, 81920, sAB, sAB, HB)
                t += "\ns_add_u32 s%d, s%d, %d\ns_cmp_ge_u32 s%d, s%d\ns_cselect_b32 s%d, s%d, s%d" % (sT0, sL0, NRA*HB, sAB, sT0, sAB, sL0, sAB)
            o.append(t)
        return o
    def bld(slot):
        o = []
        for ks in range(2):
            for tt in range(2):
                o.append("buffer_load_dwordx4 %s, v%d, %s, s%d offen offset:%d sc1" % (v(vBF + 16*slot + 8*ks + 4*tt, 4), vL16, ws, sBO0 if tt == 0 else sBO1, 1024*ks))
        o[-1] += "\ns_add_u32 s%d, s%d, 2048\ns_add_u32 s%d, s%d, 2048" % (sBO0, sBO0, sBO1, sBO1)
        return o
    for st in range(NRA-2):
        for x in adma(): A(x)
    sexpr(A, sT1, 0, (64, sB), (4, sBLK))
    dbg_wait(A, sT1, D_FO, 32, vZ, t0)
    for st in range(3):
        for x in bld(st): A(x)
    for r in range(80): A("v_accvgpr_write_b32 a%d, 0", r)
    A("v_mov_b32 v%d, v%d\nv_add_u32 v%d, %d, v%d", vAr, vL16, vAn, HB, vL16)
    A("s_waitcnt vmcnt(0)\ns_barrier")
    def ard(ks, ct, reg): A("ds_read_b128 %s, v%d offset:%d", v(vAF + 40*ks + 4*ct, 4), reg, 10240*ks + 1024*ct)
    for ct in range(10): ard(0, ct, vAr)
    A.label("L_op_loop")
    vm = VM(A)
    for st in range(4):
        dm = adma(); bl = bld((st+3) % 4)
        for ks in range(2):
            if ks == 1:
                vm.wait([("A%d" % ((st+1) % 4), 1 if st < 3 else 0)])
                A("s_barrier")
            else:
                vm.wait([("B%d" % ((st+1) % 4), 1 if st < 3 else 0)])
            for ct in range(10):
                A("s_waitcnt lgkmcnt(9)")
                for tt in range(2):
                    A("v_mfma_f32_16x16x32_bf16 %s, %s, %s, %s", a(8*ct+4*tt, 4), v(vAF + 40*ks + 4*ct, 4), v(vBF + 16*st + 8*ks + 4*tt, 4), a(8*ct+4*tt, 4))
                    if tt == 0: ard(1-ks, ct, vAr if ks == 0 else vAn)
                if ks == 0 and ct % 2 == 0: A(dm[ct//2]); vm.op("A%d" % st)
                if ks == 1 and ct % 2 == 1 and ct < 8: A(bl[ct//2]); vm.op("B%d" % st)
        A("v_mov_b32 v%d, v%d\nv_add_u32 v%d, %d, v%d\nv_cmp_le_u32 vcc, %d, v%d\nv_subrev_u32 v%d, %d, v%d\nv_cndmask_b32 v%d, v%d, v%d, vcc", vAr, vAn, vAn, HB, vAn, NRA*HB, vAn, t0, NRA*HB, vAn, vAn, vAn, t0)
    vm.resolve()
    A("s_sub_u32 s%d, s%d, 1\ns_cmp_lg_u32 s%d, 0\ns_cbranch_scc1 L_op_loop", sNB, sNB, sNB)
    A("s_nop 7")
    for r in range(80): A("v_accvgpr_read_b32 v%d, a%d", vAF + r, r)
    A("s_cmp_eq_u32 s%d, 1\ns_cbranch_scc1 L_op_out", sSP)
    first = sum(8*x for x in SPLIT if x == 1)
    sexpr(A, sT1, (PART_OFF - first*81920) & 0xffffffff, (81920, sIT), (20480, sW))
    for i in range(20):
        if i % 4 == 0: A("s_add_u32 s%d, s%d, %d", sT0, sT1, 1024*i)
        A("buffer_store_dwordx4 %s, v%d, %s, s%d offen offset:%d sc1", v(vAF+4*i, 4), vL16, ws, sT0, 1024*(i % 4))
    A("s_waitcnt vmcnt(0)\ns_barrier")
    lab = A.newlabel()
    sexpr(A, sT2, D_SK - 12*8, (8, sBLK), (4, sB))
    A("s_lshl_b32 s%d, s%d, 3", sT3, sCB)
    A("s_cmp_lg_u32 s%d, 0\ns_cbranch_scc1 %s", sW, lab)
    A("s_lshl_b32 s%d, 1, s%d\nv_mov_b32 v%d, s%d\ns_mov_b64 exec, 1\nbuffer_atomic_add v%d, v%d, s[12:15], s%d offen sc0\nv_mov_b32 v%d, %d\ns_waitcnt vmcnt(0)\nds_write_b32 v%d, v%d\ns_waitcnt lgkmcnt(0)\ns_mov_b64 exec, -1", sT0, sT3, t0, sT0, t0, vZ, sT2, t1, NRA*HB+4, t1, t0)
    A.label(lab)
    A("s_barrier\nv_mov_b32 v%d, %d\nds_read_b32 v%d, v%d\ns_waitcnt lgkmcnt(0)\nv_readfirstlane_b32 s%d, v%d", t1, NRA*HB+4, t0, t1, sT0, t0)
    A("s_nop 3\ns_lshr_b32 s%d, s%d, s%d\ns_and_b32 s%d, s%d, 255\ns_add_u32 s%d, s%d, 1\ns_cmp_lg_u32 s%d, s%d\ns_cbranch_scc1 L_op_next", sT0, sT0, sT3, sT0, sT0, sT0, sT0, sT0, sSP)
    A("s_mul_i32 s%d, s%d, 81920\ns_sub_u32 s%d, s%d, s%d\ns_mov_b32 s%d, 0", sT0, sKS, sT1, sT1, sT0, sT2)
    A.label("L_op_red")
    lab = A.newlabel()
    A("s_cmp_eq_u32 s%d, s%d\ns_cbranch_scc1 %s", sT2, sKS, lab)
    for i in range(20):
        if i % 4 == 0: A("s_add_u32 s%d, s%d, %d", sT0, sT1, 1024*i)
        A("buffer_load_dwordx4 %s, v%d, %s, s%d offen offset:%d sc1", v(vBF+4*i, 4), vL16, ws, sT0, 1024*(i % 4))
    for i in range(20):
        A("s_waitcnt vmcnt(%d)", 19-i)
        for h2 in range(2): A("v_pk_add_f32 %s, %s, %s", v(vAF+4*i+2*h2, 2), v(vAF+4*i+2*h2, 2), v(vBF+4*i+2*h2, 2))
    A.label(lab)
    A("s_add_u32 s%d, s%d, 81920\ns_add_u32 s%d, s%d, 1\ns_cmp_lt_u32 s%d, s%d\ns_cbranch_scc1 L_op_red", sT1, sT1, sT2, sT2, sT2, sSP)
    A.label("L_op_out")
    sexpr(A, sT1, 0, (128*2560, sBLK), (32*2560, sW), (1280, sB), (320, sCB))
    A("s_add_u32 s%d, s%d, %d", sT2, sT1, 16*2560)
    for cp in range(5):
        for tt in range(2):
            e = vE + 8*(cp % 2) + 4*tt
            x0, x1 = vAF + 8*(2*cp) + 4*tt, vAF + 8*(2*cp+1) + 4*tt
            A("v_cvt_pk_bf16_f32 v%d, v%d, v%d\nv_cvt_pk_bf16_f32 v%d, v%d, v%d", e, x0, x0+1, e+1, x0+2, x0+3)
            A("v_cvt_pk_bf16_f32 v%d, v%d, v%d\nv_cvt_pk_bf16_f32 v%d, v%d, v%d", e+2, x1, x1+1, e+3, x1+2, x1+3)
            A("s_nop 1\nv_permlane16_swap_b32 v%d, v%d\nv_permlane16_swap_b32 v%d, v%d", e, e+2, e+1, e+3)
            A("buffer_store_dwordx4 %s, v%d, s[8:11], s%d offen offset:%d", v(e, 4), pOUT, sT1 if tt == 0 else sT2, 64*cp)
    A("s_branch L_op_next")
    A.label("L_op_done")

def main_op():
    import chain
    A = Asm(); K = "op_kernel"
    chain.emit_common_prologue(A)
    A("s_cmp_lt_u32 s%d, 4\ns_cbranch_scc1 L_end", sT3)
    A("s_cmp_ge_u32 s%d, 32\ns_cbranch_scc1 L_end", chain.sJ)
    A("s_bfe_u32 s%d, s%d, 0x10001\ns_and_b32 s%d, s%d, 1\ns_lshr_b32 s%d, s%d, 1", sB, sT3, sT1, sT3, sT2, chain.sJ)
    sexpr(A, sH, 0, (16, sT1), (1, sT2))
    A("s_and_b32 s%d, s%d, 1\ns_cbranch_scc1 L_end", sMAT, chain.sJ)
    A("s_mul_i32 s%d, s%d, 56\ns_add_u32 s%d, s0, s%d\ns_addc_u32 s%d, s1, 0", sT0, sB, sKA, sT0, sKA+1)
    A("v_mov_b32 v1, 1\nv_lshlrev_b32 v2, 2, v0\ns_lshl_b32 s%d, s%d, 6\ns_mov_b64 exec, 0xffff\ns_cmp_lg_u32 s%d, 0\ns_cbranch_scc1 L_t1\nbuffer_atomic_add v1, v2, s[12:15], s%d offen offset:%d\nL_t1:\ns_mov_b64 exec, -1", sT0, sB, sW, sT0, D_FO)
    A("s_memrealtime s[92:93]\ns_memtime s[96:97]")
    emit_wof(A)
    A("s_memrealtime s[90:91]")
    emit_op(A)
    A("s_waitcnt lgkmcnt(0)\ns_sub_u32 s90, s90, s92\ns_mov_b64 exec, 1\nv_mov_b32 v1, s90\nv_mov_b32 v2, 60\nbuffer_atomic_umax v1, v2, s[12:15], 0 offen\ns_nop 1")
    A("s_memtime s[98:99]\ns_waitcnt lgkmcnt(0)\ns_sub_u32 s98, s98, s96\ns_mov_b64 exec, 1\nv_mov_b32 v1, s98\nv_mov_b32 v2, 56\nbuffer_atomic_umax v1, v2, s[12:15], 0 offen\ns_nop 1")
    A("s_memrealtime s[94:95]\ns_waitcnt lgkmcnt(0)\ns_sub_u32 s94, s94, s92\ns_mov_b64 exec, 1\nv_mov_b32 v1, s94\nv_mov_b32 v2, 52\nbuffer_atomic_umax v1, v2, s[12:15], 0 offen")
    A.label("L_end"); A("s_endpgm")
    chain.emit_stubs(A, "L_end")
    open("op.s", "w").write(build_file([(K, 256, 256, 163840)], [(K, A, 512, 102, 256)]))

def main_qa():
    import chain
    A = Asm(); K = "qa_kernel"
    chain.emit_common_prologue(A)
    A("s_cmp_lt_u32 s%d, 4\ns_cbranch_scc1 L_end", sT3)
    A("s_cmp_ge_u32 s%d, 32\ns_cbranch_scc1 L_end", chain.sJ)
    A("s_bfe_u32 s%d, s%d, 0x10001\ns_and_b32 s%d, s%d, 1\ns_lshr_b32 s%d, s%d, 1", sB, sT3, sT1, sT3, sT2, chain.sJ)
    sexpr(A, sH, 0, (16, sT1), (1, sT2))
    A("s_and_b32 s%d, s%d, 1\ns_cbranch_scc1 L_end", sMAT, chain.sJ)
    A("s_memrealtime s[92:93]\ns_memtime s[96:97]")
    emit_qa(A)
    A("s_memtime s[98:99]\ns_waitcnt lgkmcnt(0)\ns_sub_u32 s98, s98, s96\ns_mov_b64 exec, 1\nv_mov_b32 v1, s98\nv_mov_b32 v2, 52\nbuffer_atomic_umax v1, v2, s[12:15], 0 offen\ns_nop 1")
    A("s_memrealtime s[94:95]\ns_waitcnt lgkmcnt(0)\ns_sub_u32 s94, s94, s92\ns_mov_b64 exec, 1\nv_mov_b32 v1, s94\nv_mov_b32 v2, 48\nbuffer_atomic_umax v1, v2, s[12:15], 0 offen")
    A.label("L_end"); A("s_endpgm")
    chain.emit_stubs(A, "L_end")
    open("qa.s", "w").write(build_file([(K, 256, 256, 163840)], [(K, A, 512, 102, 256)]))

def main(sfx):
    import chain
    A = Asm(); K = "kv_kernel"
    chain.emit_common_prologue(A)
    A("s_cmp_lt_u32 s%d, 4\ns_cbranch_scc1 L_end", sT3)
    A("s_cmp_ge_u32 s%d, 32\ns_cbranch_scc1 L_end", chain.sJ)
    A("s_bfe_u32 s%d, s%d, 0x10001\ns_and_b32 s%d, s%d, 1\ns_lshr_b32 s%d, s%d, 1", sB, sT3, sT1, sT3, sT2, chain.sJ)
    sexpr(A, sH, 0, (16, sT1), (1, sT2))
    A("s_and_b32 s%d, s%d, 1", sMAT, chain.sJ)
    A("s_memrealtime s[92:93]\ns_memtime s[96:97]")
    emit_kv(A)
    A("s_memtime s[98:99]\ns_waitcnt lgkmcnt(0)\ns_sub_u32 s98, s98, s96\ns_mov_b64 exec, 1\nv_mov_b32 v1, s98\nv_mov_b32 v2, 68\nbuffer_atomic_umax v1, v2, s[12:15], 0 offen\ns_nop 1")
    A("s_memrealtime s[94:95]\ns_waitcnt lgkmcnt(0)\ns_sub_u32 s94, s94, s92\ns_mov_b64 exec, 1\nv_mov_b32 v1, s94\nv_mov_b32 v2, 64\nbuffer_atomic_umax v1, v2, s[12:15], 0 offen\ns_lshl_b32 s94, s18, 2\ns_add_u32 s94, s94, 72\nv_mov_b32 v2, s94\nbuffer_atomic_umax v1, v2, s[12:15], 0 offen")
    A.label("L_end"); A("s_endpgm")
    chain.emit_stubs(A, "L_end")
    txt = build_file([(K, 256, 256, 163840)], [(K, A, 512, 102, 256)])
    open("kv%s.s" % sfx, "w").write(txt)
    import re
    open("kv_plain.s", "w").write(re.sub(r"(buffer_store_dwordx[24] .*) sc1", r"\1", txt))
    open("kv_nt.s", "w").write(re.sub(r"(buffer_store_dwordx[24] .*) sc1", r"\1 nt", txt))
    open("kv_nost.s", "w").write(re.sub(r"buffer_store_dwordx[24] .*", r"s_nop 0", txt))
    open("kv_nodma%s.s" % sfx, "w").write(re.sub(r"buffer_load_dwordx4 v1, s\[8:11\], s34 .*", r"s_nop 0", re.sub(r"buffer_store_dwordx[24] .*", r"s_nop 0", txt)))

if __name__ == "__main__":
    main("")
    main_qa()
    main_op()
```

```python
import struct, math
from asmlib import *
from layout import *

sW, sB, sX, sJ = 16, 17, 18, 19
sH, sU, sGRP, sM = 20, 21, 22, 23
sFCHo, sFKVo, sNEED = 28, 42, 40
sSTEP, sSLOTI, sPAR, sME = 24, 25, 26, 27
sPW = 25
sT0, sT1, sT2, sT3 = 29, 30, 31, 32
sRW = 33
sKXO, sVXO = 34, 35
sKMO, sVMO = 36, 37
sRB = 38
sSCL = 39
sWM1 = 40
sKVD = 41
sAVAIL = 43
sEVEN = 44
sDELTA, sKVB = 46, 47
(oSCst, oSCld, oPBst, oPBst2, oPB0, oPB1, oPB2, oPB3, oXPst, oXPstr, oXPl0, oXPl1, oXPlB, oXPr0, oXPr1, oXPrB) = range(48, 64)
sPTR = 64
sTS = 64
sSPIN = 3
SPIN_LIMIT = 100000
sKA = 88
WS = "s[4:7]"

def f32bits(x): return struct.unpack("<I", struct.pack("<f", x))[0]

def sexpr(A, dst, const, *terms, tmp=sT0):
    first = True
    for (coef, reg) in terms:
        tgt = dst if first else tmp
        if coef == 1:
            if first: A("s_mov_b32 s%d, s%d", dst, reg)
            else: A("s_add_u32 s%d, s%d, s%d", dst, dst, reg)
        else:
            A("s_mul_i32 s%d, s%d, %d", tgt, reg, coef)
            if not first: A("s_add_u32 s%d, s%d, s%d", dst, dst, tmp)
        first = False
    if first: A("s_mov_b32 s%d, %d", dst, const)
    elif const: A("s_add_u32 s%d, s%d, %d", dst, dst, const)

def emit_common_prologue(A):
    A("s_cmp_ge_u32 s2, 256\ns_cbranch_scc1 L_end")
    A("s_mov_b32 s%d, 0", sSPIN)
    A("s_load_dwordx2 s[4:5], s[0:1], 128")
    A("s_load_dwordx2 s[12:13], s[0:1], 120")
    A("v_lshrrev_b32 v1, 6, v0")
    A("v_and_b32 v0, 63, v0")
    A("s_getreg_b32 s%d, hwreg(HW_REG_XCC_ID)", sT3)
    A("v_readfirstlane_b32 s%d, v1", sW)
    A("s_and_b32 s%d, s%d, 7", sT3, sT3)
    A("s_mov_b32 s6, 0x10000000\ns_mov_b32 s7, 0x20000")
    A("s_mov_b32 s14, 256\ns_mov_b32 s15, 0x20000")
    A("s_waitcnt lgkmcnt(0)")
    A("s_cmp_lg_u32 s%d, 0\ns_cbranch_scc1 L_tk_done", sW)
    A("s_mov_b64 exec, 1")
    A("s_lshl_b32 s%d, s%d, 2", sT0, sT3)
    A("v_mov_b32 v1, 1\nv_mov_b32 v2, s%d\nv_mov_b32 v3, %d", sT0, L_BCAST)
    A("buffer_atomic_add v1, v2, s[12:15], 0 offen sc0")
    A("s_waitcnt vmcnt(0)")
    A("ds_write_b32 v3, v1")
    A("s_waitcnt lgkmcnt(0)")
    A("s_mov_b64 exec, -1")
    A.label("L_tk_done")
    A("s_barrier")
    A("v_mov_b32 v3, %d\nds_read_b32 v1, v3\ns_waitcnt lgkmcnt(0)", L_BCAST)
    A("v_readfirstlane_b32 s%d, v1", sJ)

class VAlloc:
    def __init__(self, start, end):
        self.n = start; self.end = end
    def __call__(self, cnt=1, align=1):
        self.n = (self.n + align - 1)//align*align
        r = self.n; self.n += cnt
        assert self.n <= self.end, "out of vgprs"
        return r

def spin_stub(A, lab_retry):
    st = A.newlabel("L_spin")
    A.stubs.append((st, lab_retry))
    return st

def emit_stubs(A, lab_abort):
    for st, lab in A.stubs:
        A.label(st)
        A("s_add_u32 s%d, s%d, 1\ns_cmp_gt_u32 s%d, %d\ns_cbranch_scc1 %s\ns_branch %s", sSPIN, sSPIN, sSPIN, SPIN_LIMIT, lab_abort, lab)
    A.stubs = []

def wait_flags(A, voff, vt, soff, need_sgpr, lanes_mask, cache_sgpr=None):
    l0 = A.newlabel(); l1 = A.newlabel()
    if cache_sgpr is not None:
        A("s_cmp_ge_u32 s%d, s%d\ns_cbranch_scc1 %s", cache_sgpr, need_sgpr, l1)
    A("s_mov_b64 exec, %d", lanes_mask)
    A.label(l0)
    A("buffer_load_dword v%d, v%d, %s, s%d offen sc1\ns_waitcnt vmcnt(0)", vt, voff, WS, soff)
    A("v_cmp_gt_u32 vcc, s%d, v%d", need_sgpr, vt)
    l2 = A.newlabel()
    A("s_cbranch_vccz %s\ns_sleep 4\ns_branch %s", l2, spin_stub(A, l0))
    A.label(l2)
    if cache_sgpr is not None:
        A("v_readlane_b32 s%d, v%d, 0\nv_readlane_b32 s%d, v%d, 1\ns_nop 3\ns_min_u32 s%d, s%d, s%d", cache_sgpr, vt, sT0, vt, cache_sgpr, cache_sgpr, sT0)
    A("s_mov_b64 exec, -1")
    A.label(l1)

def tagcheck(A, regs, vt, lab_retry):
    lab_retry = spin_stub(A, lab_retry)
    def tree(op):
        r = list(regs)
        A(op % (vt, r[0], r[1], r[2])); i = 3
        while i + 1 < len(r):
            A(op % (vt, vt, r[i], r[i+1])); i += 2
        if i < len(r):
            A(op % (vt, vt, r[i], r[i]))
    l0 = A.newlabel(); l1 = A.newlabel()
    A("s_cmp_eq_u32 s%d, 0\ns_cbranch_scc1 %s", sPAR, l0)
    tree("v_bitop3_b32 v%d, v%d, v%d, v%d bitop3:0x80")
    A("v_and_b32 v%d, 1, v%d\nv_cmp_ne_u32 vcc, 1, v%d\ns_cbranch_vccnz %s\ns_branch %s", vt, vt, vt, lab_retry, l1)
    A.label(l0)
    tree("v_or3_b32 v%d, v%d, v%d, v%d")
    A("v_and_b32 v%d, 1, v%d\nv_cmp_ne_u32 vcc, 0, v%d\ns_cbranch_vccnz %s", vt, vt, vt, lab_retry)
    A.label(l1)

def emit_chain(A, timing=False, nsteps=64, opt={}):
    V = VAlloc(1, 152)
    vAmem = V()
    vBias = V(1, 2)
    vL16 = V()
    vT = [V() for _ in range(8)]
    assert vT[0] % 4 == 0
    t0, t1, t2, t3, t4, t5, vN, vG = vT
    vSC = vT[4]
    vSEL = V(4, 4)
    vIdxQK, vIdxWo = V(), V()
    vQKw, vQrd, vKrd = V(), V(), V()
    vWVrd = vKrd
    pSC, pVMst, pA, pB, pPB, pXP, pL8 = V(), V(), V(), V(), V(), V(), V()
    pKM = pVMst
    vVMIr, vKVr = V(), V()
    vMEMw, vMEMw4 = V(), V()
    vAF = V(40, 4)
    vVX = V(24, 4)
    vBUF = V(24, 4)
    vKX = V(12, 4)
    vACC = V(20, 4)
    assert vKX == vBUF+24 and vACC == vKX+12
    NVB = 6
    WO_V = 152
    def wo_oct(i): return a(240 + 8*i, 8) if i < 2 else v(WO_V + 8*(i-2), 8)
    def wo_reg(i, r): return a(240 + 8*i + r) if i < 2 else v(WO_V + 8*(i-2) + r)
    ws = WS
    def ts(i):
        if timing: A("s_mem%stime s[%d:%d]", "real" if opt.get("rt") else "", sTS+2*i, sTS+2*i+1)
    def adv(*regs):
        for r in regs: A("s_add_u32 s%d, s%d, s%d", r, r, sDELTA)

    def stamp(i):
        if not timing: return
        A("s_memrealtime s[96:97]\ns_waitcnt lgkmcnt(0)\ns_mov_b64 exec, 1\nv_mov_b32 v%d, s96\nv_mov_b32 v%d, 0", vACC+18, vACC+19)
        sexpr(A, 98, DBG_OFF+65536, (256, 2), (64, sW), tmp=99)
        A("buffer_store_dword v%d, v%d, %s, s98 offen offset:%d\ns_mov_b64 exec, -1", vACC+18, vACC+19, ws, 4*i)
    stamp(0)
    A("s_lshr_b32 s%d, s%d, 1", sT1, sJ); sexpr(A, sH, 0, (16, sX), (1, sT1))
    A("s_and_b32 s%d, s%d, 1", sU, sJ)
    sexpr(A, sRW, 0, (32, sW), (1, sJ))
    sexpr(A, sRB, RING_OFF, (RING*SLOT, sB))
    sexpr(A, sME, 0, (32, sX), (1, sJ))
    A("s_max_u32 s%d, s%d, 1\ns_sub_u32 s%d, s%d, 1", sWM1, sW, sWM1, sWM1)
    A("s_mov_b32 s%d, 0x%08x", sSCL, f32bits((192 ** -0.5) * math.log2(math.e)))
    A("s_mov_b32 s%d, 0x55555555\ns_mov_b32 s%d, 0x55555555", sEVEN, sEVEN+1)
    A("s_mul_i32 s%d, s%d, 56", sT0, sB)
    A("s_add_u32 s%d, s0, s%d\ns_addc_u32 s%d, s1, 0", sKA, sT0, sKA+1)
    A("s_load_dwordx2 s[%d:%d], s[%d:%d], 8", sPTR, sPTR+1, sKA, sKA+1)
    A("s_load_dwordx4 s[%d:%d], s[%d:%d], 16", sPTR+4, sPTR+7, sKA, sKA+1)
    A("s_load_dwordx4 s[%d:%d], s[%d:%d], 32", sPTR+8, sPTR+11, sKA, sKA+1)
    sexpr(A, oSCst, 0, (1, sRB), (REC, sME), (512, sW))
    A("s_xor_b32 s%d, s%d, 1", sT1, sME)
    sexpr(A, oSCld, 0, (1, sRB), (REC, sT1))
    sexpr(A, oPBst, R_PB, (1, sRB), (10240, sME), (2048, sW))
    sexpr(A, oPBst2, R_PB+8192, (1, sRB), (10240, sME), (512, sW))
    sexpr(A, oPB0, R_PB, (1, sRB), (32*10240, sX), (128, sRW))
    for i in (1, 2, 3): sexpr(A, oPB0+i, i*8*10240, (1, oPB0))
    sexpr(A, oXPst, R_XPL, (1, sRB), (20480, sX), (128, sRW))
    sexpr(A, oXPstr, R_XPR-R_XPL, (1, oXPst))
    sexpr(A, oXPl0, R_XPL, (1, sRB), (20480, sX), (2048, sW))
    sexpr(A, oXPl1, 10240, (1, oXPl0))
    sexpr(A, oXPlB, R_XPL+8192, (1, sRB), (20480, sX), (512, sW))
    A("s_xor_b32 s%d, s%d, 1", sT1, sX)
    sexpr(A, oXPr0, R_XPR, (1, sRB), (20480, sT1), (2048, sW))
    sexpr(A, oXPr1, 10240, (1, oXPr0))
    sexpr(A, oXPrB, R_XPR+8192, (1, sRB), (20480, sT1), (512, sW))
    sexpr(A, sT2, 0, (32, sB), (1, sH))
    sexpr(A, sKMO, KM_OFF, (HM, sT2), (1536, sU))
    sexpr(A, sVMO, VM_OFF, (HM, sT2), (1536, sU))
    sexpr(A, sKXO, KX_OFF, (HS, sT2), (6144, sU))
    sexpr(A, sVXO, VX_OFF, (HS, sT2), (6144, sU))
    A("v_and_b32 v%d, 15, v0\nv_lshrrev_b32 v%d, 4, v0", vN, vG)
    A("v_lshlrev_b32 v%d, 4, v0\nv_lshlrev_b32 v%d, 3, v0", vL16, pL8)
    A("v_lshrrev_b32 v%d, 1, v%d\nv_mul_u32_u24 v%d, %d, v%d", t0, vN, t0, MEM_RS, t0)
    A("v_and_b32 v%d, 1, v%d\nv_lshl_add_u32 v%d, v%d, 1, v%d\nv_lshl_add_u32 v%d, v%d, 4, v%d\nv_add_u32 v%d, %d, v%d", t1, vN, t2, vG, t1, vAmem, t2, t0, vAmem, L_MEM, vAmem)
    A("v_cmp_eq_u32 vcc, 1, v%d", t1)
    A("v_mov_b32 v%d, 0x4444\nv_mov_b32 v%d, 0xeeee\nv_cndmask_b32 v%d, v%d, v%d, vcc", t2, t3, vIdxQK, t2, t3)
    A("v_mov_b32 v%d, 0x8888\nv_mov_b32 v%d, 0xdddd\nv_cndmask_b32 v%d, v%d, v%d, vcc", t2, t3, vIdxWo, t2, t3)
    A("v_mov_b32 v%d, 0x3f80\nv_mov_b32 v%d, 0x3f800000\nv_cndmask_b32 v%d, v%d, v%d, vcc\nv_lshrrev_b32 v%d, 1, v%d", t2, t3, t2, t2, t3, t3, vN)
    for r in range(4):
        A("v_cmp_eq_u32 vcc, %d, v%d\ns_nop 1\nv_cndmask_b32 v%d, 0, v%d, vcc", r, t3, vSEL+r, t2)
    A("v_lshl_add_u32 v%d, v%d, 3, v%d\nv_lshlrev_b32 v%d, 4, v%d", t0, vG, t3, pSC, t0)
    A("v_mul_u32_u24 v%d, 10240, v%d\nv_add_u32 v%d, v%d, v%d", t0, t1, pB, t0, pSC)
    A("s_lshr_b32 s%d, s%d, 1\ns_and_b32 s%d, s%d, 1", sT1, sW, sT2, sW)
    sexpr(A, sT1, L_Q, (8*QK_RS, sT1), (96, sT2))
    A("v_mul_u32_u24 v%d, %d, v%d\nv_add_u32 v%d, s%d, v%d\nv_lshl_add_u32 v%d, v%d, 1, v%d", t0, 2*QK_RS, vG, t0, sT1, t0, vQKw, vN, t0)
    A("v_mul_u32_u24 v%d, %d, v%d\nv_lshl_add_u32 v%d, v%d, 4, v%d\nv_add_u32 v%d, %d, v%d", t0, QK_RS, t3, vQrd, vG, t0, vQrd, L_Q, vQrd)
    A("v_and_b32 v%d, 1, v%d\nv_lshlrev_b32 v%d, 8, v%d\nv_lshl_add_u32 v%d, v%d, 4, v%d\nv_add_u32 v%d, %d, v%d", t0, vG, t0, t0, vVMIr, vN, t0, vVMIr, L_VMI, vVMIr)
    A("v_lshlrev_b32 v%d, 4, v%d\nv_lshl_add_u32 v%d, v%d, 9, v%d", t0, vN, pA, vG, t0)
    A("v_lshrrev_b32 v%d, 3, v%d\nv_lshl_add_u32 v%d, v%d, 2, v%d\nv_mul_u32_u24 v%d, 10240, v%d\nv_and_b32 v%d, 7, v%d\nv_lshl_add_u32 v%d, v%d, 4, v%d", t1, vN, t1, t1, vG, t1, t1, t2, vN, pPB, t2, t1)
    A("v_mul_u32_u24 v%d, 10240, v%d\nv_add_u32 v%d, v%d, v%d", t1, vG, pXP, t1, t0)
    lw = A.newlabel(); lw2 = A.newlabel()
    A("s_cmp_eq_u32 s%d, 0\ns_cbranch_scc1 %s", sW, lw)
    A("v_lshrrev_b32 v%d, 1, v%d\nv_lshl_add_u32 v%d, v%d, 8, v%d\nv_and_b32 v%d, 1, v%d\nv_lshl_add_u32 v%d, v%d, 2, v%d", t1, vG, t1, t1, t0, pVMst, vG, pVMst, pVMst, t1)
    sexpr(A, sT1, 0, (512, sWM1)); A("v_add_u32 v%d, s%d, v%d", pVMst, sT1, pVMst)
    sexpr(A, sT1, L_WV, (4096, sWM1)); A("v_add_u32 v%d, s%d, v%d", vWVrd, sT1, vL16)
    A("s_branch %s", lw2)
    A.label(lw)
    A("v_lshlrev_b32 v%d, 4, v%d\nv_lshl_add_u32 v%d, v%d, 7, v%d", t1, t2, pKM, vG, t1)
    A("v_mul_u32_u24 v%d, %d, v%d\nv_lshl_add_u32 v%d, v%d, 4, v%d\nv_add_u32 v%d, %d, v%d", t0, QK_RS, t2, vKrd, vG, t0, vKrd, L_K, vKrd)
    A.label(lw2)
    A("v_add_u32 v%d, %d, v%d", vKVr, L_KVB, vL16)
    sexpr(A, sT1, L_MEM, (320, sW))
    A("v_mul_u32_u24 v%d, %d, v%d\nv_add_u32 v%d, s%d, v%d", t0, 2*MEM_RS, vG, t0, sT1, t0)
    A("v_lshl_add_u32 v%d, v%d, 4, v%d\nv_lshl_add_u32 v%d, v%d, 2, v%d\nv_add_u32 v%d, 256, v%d", vMEMw, vN, t0, vMEMw4, vN, t0, vMEMw4, vMEMw4)
    A("v_cmp_lt_u32 vcc, 1, v%d\nv_mov_b32 v%d, 0\nv_mov_b32 v%d, 0xf149f2ca\nv_cndmask_b32 v%d, v%d, v%d, vcc", vG, t0, t1, vBias, t0, t1)

    for k in range(RING):
        inv = 1 - (k & 1)
        for r in range(4): A("v_mov_b32 v%d, %d", vBUF+r, inv)
        A("s_add_u32 s%d, s%d, %d\nbuffer_store_dwordx4 %s, v%d, %s, s%d offen", sT0, oSCst, k*SLOT, v(vBUF,4), pSC, ws, sT0)
        A("s_add_u32 s%d, s%d, %d\nbuffer_store_dwordx4 %s, v%d, %s, s%d offen", sT0, oPBst, k*SLOT, v(vBUF,4), pA, ws, sT0)
        A("buffer_store_dwordx4 %s, v%d, %s, s%d offen offset:256", v(vBUF,4), pA, ws, sT0)
        A("s_add_u32 s%d, s%d, %d\nbuffer_store_dwordx2 %s, v%d, %s, s%d offen", sT0, oPBst2, k*SLOT, v(vBUF,2), pL8, ws, sT0)
        lab = A.newlabel()
        A("s_cmp_ge_u32 s%d, 80\ns_cbranch_scc1 %s", sRW, lab)
        A("s_mov_b64 exec, 0x00ff00ff")
        A("s_add_u32 s%d, s%d, %d\nbuffer_store_dwordx4 %s, v%d, %s, s%d offen", sT0, oXPst, k*SLOT, v(vBUF,4), pXP, ws, sT0)
        A("s_add_u32 s%d, s%d, %d\nbuffer_store_dwordx4 %s, v%d, %s, s%d offen sc1", sT0, oXPstr, k*SLOT, v(vBUF,4), pXP, ws, sT0)
        A("s_mov_b64 exec, -1")
        A.label(lab)
        A("s_nop 1")
    sexpr(A, sFCHo, F_CH, (64*128, sB), (128, sME))
    sexpr(A, sFKVo, F_KV, (32*256, sB), (256, sH))
    A("v_mov_b32 v%d, 0\ns_mov_b64 exec, 1\nbuffer_store_dword v%d, v%d, %s, s%d offen sc1\ns_mov_b64 exec, -1", t0, t0, t0, ws, sFCHo)
    A("s_waitcnt vmcnt(0) lgkmcnt(0)")
    A("s_barrier")
    A("s_cmp_lg_u32 s%d, 0\ns_cbranch_scc1 L_ch_rdy", sW)
    A("s_mov_b64 exec, 1\nv_mov_b32 v%d, 1", t1)
    A("buffer_atomic_add v%d, v%d, s[12:15], 0 offen offset:%d", t1, t0, D_READY)
    A("s_mov_b64 exec, -1")
    A.label("L_ch_rdy")

    stamp(1)
    vD = [vAF, vAF+1, vAF+2]
    vTRq = [vAF+3, vAF+4, vAF+5]
    vTRv = vAF+6
    sexpr(A, sT1, 0, (384, sH), (192, sU))
    for i in range(3):
        A("v_add_u32 v%d, %d, v0\nv_mul_u32_u24 v%d, 171, v%d\nv_lshrrev_b32 v%d, 11, v%d", t0, 64*i, t1, t0, t1, t1)
        A("v_mul_u32_u24 v%d, 12, v%d\nv_sub_u32 v%d, v%d, v%d", t2, t1, t2, t0, t2)
        A("v_mul_u32_u24 v%d, 12288, v%d\nv_lshl_add_u32 v%d, v%d, 4, v%d\nv_add_u32 v%d, s%d, v%d", t1, t1, t1, t2, t1, vD[i], sT1, t1)
    A("v_lshrrev_b32 v%d, 1, v%d\nv_and_b32 v%d, 1, v%d\nv_lshlrev_b32 v%d, 2, v%d\nv_lshl_add_u32 v%d, v%d, 4, v%d", t0, vG, t1, vG, t1, t1, t0, t0, t1)
    A("v_lshrrev_b32 v%d, 3, v%d\nv_lshl_add_u32 v%d, v%d, 3, v%d\nv_bfe_u32 v%d, v%d, 2, 1\nv_add_u32 v%d, v%d, v%d\nv_mul_u32_u24 v%d, 192, v%d", t1, vN, t0, t1, t0, t1, vN, t0, t0, t1, t5, t0)
    A("v_and_b32 v%d, 3, v%d", t4, vN)
    A("v_add_u32 v%d, %d, v%d", t5, L_WV, t5)
    A("v_lshl_add_u32 v%d, v%d, 3, v%d", vTRv, t4, t5)
    A("s_lshr_b32 s%d, s%d, 1\ns_mul_i32 s%d, s%d, 24576\ns_and_b32 s%d, s%d, 1\ns_mul_i32 s%d, s%d, 48", sT1, sW, sT1, sT1, sT2, sW, sT2, sT2)
    A("v_add_u32 v%d, s%d, v%d", t5, sT1, t5)
    for t in range(3):
        A("v_lshl_add_u32 v%d, v%d, 2, s%d\nv_add_u32 v%d, %d, v%d", t0, t4, sT2, t0, 16*t, t0)
        A("v_bfe_u32 v%d, v%d, 2, 1\nv_lshrrev_b32 v%d, 5, v%d", t3, t0, t2, t0)
        A("v_cmp_eq_u32 vcc, 2, v%d\nv_mad_u32_u24 v%d, v%d, 3, v%d\nv_mad_u32_u24 v%d, v%d, 3, 2", t2, t1, t2, t3, t3, t3)
        A("v_cndmask_b32 v%d, v%d, v%d, vcc\nv_lshlrev_b32 v%d, 4, v%d", t1, t1, t3, t1, t1)
        A("v_bfe_u32 v%d, v%d, 3, 2\nv_lshl_add_u32 v%d, v%d, 2, v%d", t3, t0, t1, t3, t1)
        A("v_lshl_add_u32 v%d, v%d, 1, v%d", vTRq[t], t1, t5)
    A("s_waitcnt lgkmcnt(0)")
    A("s_cmp_lt_u32 s%d, 2\ns_cselect_b32 s8, s%d, s%d\ns_cselect_b32 s9, s%d, s%d", sW, sPTR+4, sPTR+6, sPTR+5, sPTR+7)
    A("s_mov_b32 s10, %d\ns_mov_b32 s11, 0x20000", 640*6144*2)
    sVS = 92
    A("s_mov_b32 s%d, s%d\ns_mov_b32 s%d, s%d\ns_mov_b32 s%d, %d\ns_mov_b32 s%d, 0x20000", sVS, sPTR+8, sVS+1, sPTR+9, sVS+2, 640*6144*2, sVS+3)
    A("s_and_b32 s%d, s%d, 1", sT2, sW)
    sexpr(A, sGRP, 0, (64*12288, sT2))
    sexpr(A, sM, L_WV, (12288, sW))
    def dma64(srd, goff_s, goff_c, lds_s, lds_c):
        for i in range(12):
            A("s_add_u32 s%d, s%d, %d\ns_add_u32 m0, s%d, %d", sT0, goff_s, goff_c + (i//3)*16*12288, lds_s, lds_c + i*1024)
            A("s_nop 0\nbuffer_load_dwordx4 v%d, %s, s%d offen lds", vD[i % 3], srd, sT0)
    def qk_dma(c): dma64("s[8:11]", sGRP, c*128*12288, sM, (c % 2)*49152)
    svs = "s[%d:%d]" % (sVS, sVS+3)
    sexpr(A, sPW, 0, (64*12288, sW))
    def v_dma(kbase):
        dma64(svs, sPW, kbase*64*12288, sM, kbase*12288)
    qk_dma(0); qk_dma(1)
    for c in range(5):
        A("s_waitcnt vmcnt(%d)\ns_barrier", 12 if c < 4 else (12 if True else 0))
        for kk in range(2):
            for t in range(3):
                for q in range(2):
                    for rp in range(2):
                        A("ds_read_b64_tr_b16 %s, v%d offset:%d", a(80*t + 8*(2*c+kk) + 4*q + 2*rp, 2), vTRq[t], (64*kk + 32*q + 2*rp)*192)
        for t in range(3): A("v_%s_u32 v%d, 49152, v%d", "add" if c % 2 == 0 else "subrev", vTRq[t], vTRq[t])
        A("s_waitcnt lgkmcnt(0)\ns_barrier")
        if c + 2 < 5: qk_dma(c+2)
        elif c == 3: v_dma(4)
        else: v_dma(0)
    lab = A.newlabel()
    A("s_cmp_ge_u32 s%d, 2\ns_cbranch_scc1 %s", sW, lab)
    v_dma(8)
    A.label(lab)
    stamp(2)
    A("s_mov_b32 s8, s%d\ns_mov_b32 s9, s%d", sPTR+10, sPTR+11)
    A("v_and_b32 v%d, 1, v%d\nv_lshrrev_b32 v%d, 1, v%d\nv_lshlrev_b32 v%d, 2, v%d\nv_lshl_add_u32 v%d, v%d, 4, v%d\nv_mul_u32_u24 v%d, 1280, v%d", t0, vG, t1, vG, t1, t1, t0, t0, t1, t0, t0)
    sexpr(A, sT1, 0, (96*1280, sME), (320, sW))
    A("v_add_u32 v%d, s%d, v%d", t0, sT1, t0)
    A("v_lshl_add_u32 v%d, v%d, 4, v%d", t1, vN, t0)
    A("v_lshl_add_u32 v%d, v%d, 2, v%d\nv_add_u32 v%d, 256, v%d", t2, vN, t0, t2, t2)
    tb = vAF + 8
    areas = [vAF+8, vVX+0, vKX]
    for kap in range(3):
        for q in range(2):
            for r in range(4):
                A("s_mov_b32 s%d, %d", sT0, (32*kap + 8*q + r)*1280)
                A("buffer_load_dwordx4 %s, v%d, s[8:11], s%d offen", v(areas[kap] + 4*(4*q+r), 4), t1, sT0)
                A("buffer_load_dword %s, v%d, s[8:11], s%d offen", wo_reg(12+kap, q*4+r), t2, sT0)
    A("s_waitcnt vmcnt(0)\ns_barrier")
    for kap in range(3):
        for qr in range(8):
            for be in range(4):
                i = be*3+kap
                if i < 2: A("v_accvgpr_write_b32 %s, v%d", wo_reg(i, qr), areas[kap] + 4*qr + be)
                else: A("v_mov_b32 %s, v%d", wo_reg(i, qr), areas[kap] + 4*qr + be)
    stamp(3)
    A("s_mov_b32 s%d, s%d", sT2, sW)
    A.label("L_wv_loop")
    A("s_mul_i32 s%d, s%d, 12288\nv_add_u32 v%d, s%d, v%d\nv_add_u32 v%d, s%d, v%d\nv_add_u32 v%d, %d, v%d", sT0, sT2, t0, sT0, vTRv, t1, sT0, vL16, t1, L_WV, t1)
    for tau in range(6):
        for q in range(2):
            for rp in range(2):
                A("ds_read_b64_tr_b16 %s, v%d offset:%d", v(vVX + 8*tau + 4*q + 2*rp, 2), t0, (32*q + 2*rp)*192 + 32*tau)
    A("s_waitcnt lgkmcnt(0)")
    for i in range(12):
        A("ds_write_b128 v%d, %s offset:%d", t1, v(vVX+4*i,4), 1024*i)
    A("s_waitcnt lgkmcnt(0)")
    A("s_add_u32 s%d, s%d, 4\ns_cmp_lt_u32 s%d, 10\ns_cbranch_scc1 L_wv_loop", sT2, sT2, sT2)

    stamp(4)
    A("s_mov_b32 s8, s%d\ns_mov_b32 s9, s%d\ns_mov_b32 s10, 10240", sPTR, sPTR+1)
    A("s_lshl_b32 s%d, s%d, 6\nv_add_u32 v%d, s%d, v0", sT0, sW, t0, sT0)
    for i in range(3):
        A("v_add_u32 v%d, %d, v%d", t1, 256*i, t0)
        A("v_mul_u32_u24 v%d, 205, v%d\nv_lshrrev_b32 v%d, 14, v%d", t2, t1, t2, t2)
        A("v_lshlrev_b32 v%d, 4, v%d", t3, t1)
        A("buffer_load_dwordx4 %s, v%d, s[8:11], 0 offen", v(vBUF,4), t3)
        A("v_mul_u32_u24 v%d, %d, v%d\nv_add_u32 v%d, v%d, v%d\nv_add_u32 v%d, %d, v%d", t2, MEM_RS-1280, t2, t4, t3, t2, t4, L_MEM, t4)
        A("v_cmp_gt_u32 vcc, 640, v%d\ns_waitcnt vmcnt(0)\ns_and_b64 exec, exec, vcc", t1)
        A("ds_write_b128 v%d, %s", t4, v(vBUF,4))
        A("s_mov_b64 exec, -1\ns_waitcnt lgkmcnt(0)")

    def kv_dma():
        A("s_mov_b32 m0, s%d\ns_add_u32 s%d, s%d, %d", sKVB, sT0, sKXO, 6144-3072)
        for k in range(3): A("buffer_load_dwordx4 v%d, %s, s%d offen offset:%d sc1 lds", vL16, ws, sKXO, 1024*k)
        A("s_add_u32 m0, s%d, 3072\ns_add_u32 s%d, s%d, 3072", sKVB, sT0, sKXO)
        for k in range(3): A("buffer_load_dwordx4 v%d, %s, s%d offen offset:%d sc1 lds", vL16, ws, sT0, 1024*k)
        A("s_add_u32 m0, s%d, 6144\ns_add_u32 s%d, s%d, 3072", sKVB, sT0, sVXO)
        for k in range(3): A("buffer_load_dwordx4 v%d, %s, s%d offen offset:%d sc1 lds", vL16, ws, sVXO, 1024*k)
        A("s_add_u32 m0, s%d, 9216\ns_nop 0", sKVB)
        for k in range(3): A("buffer_load_dwordx4 v%d, %s, s%d offen offset:%d sc1 lds", vL16, ws, sT0, 1024*k)
        A("s_add_u32 s%d, s%d, 12288\ns_add_u32 s%d, s%d, 12288", sKXO, sKXO, sVXO, sVXO)
        A("s_sub_u32 s%d, %d, s%d", sKVB, 2*L_KVB+12288, sKVB)
    A("s_mov_b32 s%d, %d\ns_mov_b32 s%d, 12288\ns_mov_b32 s%d, 0\ns_mov_b32 s%d, 1", sKVB, L_KVB, sKVD, sAVAIL, sNEED)
    A("v_mov_b32 v%d, 0", t0)
    A.label("L_ch_wait")
    A("buffer_load_dword v%d, v%d, s[12:15], 0 offen offset:%d sc1\ns_waitcnt vmcnt(0)", t1, t0, D_READY)
    A("v_cmp_gt_u32 vcc, %d, v%d\ns_cbranch_vccz L_ch_go0\ns_sleep 8\ns_branch %s", opt.get("nready", 256), t1, spin_stub(A, "L_ch_wait"))
    A.label("L_ch_go0")
    def kv_next():
        if not opt.get("noflags"):
            A("v_lshlrev_b32 v%d, 7, v0", t0)
            wait_flags(A, t0, t1, sFKVo, sNEED, 3, cache_sgpr=sAVAIL)
            A("s_add_u32 s%d, s%d, 1\ns_min_u32 s%d, s%d, 64", sNEED, sNEED, sNEED, sNEED)
        kv_dma()
    lab = A.newlabel()
    A("s_cmp_lg_u32 s%d, 3\ns_cbranch_scc1 %s", sW, lab)
    kv_next()
    A("s_waitcnt vmcnt(0)")
    A.label(lab)
    A.label("L_ch_go")
    stamp(5)
    A("s_mov_b32 s%d, 0\ns_mov_b32 s%d, 0\ns_mov_b32 s%d, 0", sSTEP, sSLOTI, sPAR)
    if timing:
        for i in range(90, 102): A("s_mov_b32 s%d, 0", i)
    A("s_waitcnt lgkmcnt(0)")

    A.label("L_step")
    A("s_barrier")
    ts(0)
    for kap in range(10):
        A("ds_read_b128 %s, v%d offset:%d", v(vAF+4*kap,4), vAmem, 128*kap)
    lk = A.newlabel(); lk2 = A.newlabel()
    A("s_cmp_eq_u32 s%d, 2\ns_cbranch_scc1 %s", sW, lk)
    def kxr(t):
        for kap in range(2): A("ds_read_b128 %s, v%d offset:%d", v(vKX+4*kap,4), vKVr, 2048*t + 1024*kap)
        for hi in range(2): A("ds_read_b64 %s, v%d offset:%d", v(vKX+8+2*hi,2), vKVr, 4096 + 1024*hi + 8*t)
    kxr(0)
    A("s_branch %s", lk2)
    A.label(lk)
    kxr(1)
    A.label(lk2)
    for r in range(12): A("v_mov_b32 v%d, 0", vACC+r)
    lab = A.newlabel()
    A("s_cmp_lg_u32 s%d, 3\ns_cbranch_scc1 %s", sW, lab)
    A("v_mov_b32 v%d, 0\nv_mov_b32 v%d, s%d\ns_mov_b64 exec, 1\nbuffer_store_dword v%d, v%d, %s, s%d offen sc1\ns_mov_b64 exec, -1", t0, t1, sSTEP, t1, t0, ws, sFCHo)
    A.label(lab)
    A("s_mov_b32 s%d, %d", sT0, SLOT)
    A("s_cmp_eq_u32 s%d, %d\ns_cselect_b32 s%d, %d, s%d", sSLOTI, RING-1, sDELTA, (-(RING-1)*SLOT) & 0xffffffff, sT0)
    for kap in range(10):
        A("s_waitcnt lgkmcnt(%d)", 13-kap)
        for t in range(3):
            A("v_smfmac_f32_16x16x64_bf16 %s, %s, %s, v%d", v(vACC+4*t,4), v(vAF+4*kap,4), a(80*t+8*kap,8), vIdxQK)
    def vread(i):
        kap, tt = i//2, i % 2
        if i == 10: A("v_add_u32 v%d, %d, v%d", vWVrd, 5*12288, vWVrd)
        for q in range(2):
            A("ds_read_b128 %s, v%d offset:%d", v(vBUF+8*(i % NVB)+4*q,4), vWVrd, (kap % 5)*12288 + tt*2048 + q*1024)
        if i == 19: A("v_subrev_u32 v%d, %d, v%d", vWVrd, 5*12288, vWVrd)
    for r in range(8): A("v_mov_b32 v%d, 0", vACC+12+r)
    for t in range(3):
        A("v_add_f32 v%d, v%d, v%d\nv_add_f32 v%d, v%d, v%d", vACC+4*t, vACC+4*t, vACC+4*t+1, vACC+4*t+2, vACC+4*t+2, vACC+4*t+3)
        A("v_cvt_pk_bf16_f32 v%d, v%d, v%d", vT[t], vACC+4*t, vACC+4*t+2)
        A("ds_write_b16 v%d, v%d offset:%d\nds_write_b16_d16_hi v%d, v%d offset:%d", vQKw, vT[t], 32*t, vQKw, vT[t], 32*t+QK_RS)
    for i in range(3): vread(i)
    A("s_waitcnt lgkmcnt(6)\ns_barrier")
    ts(1)
    A("s_cmp_eq_u32 s%d, 3\ns_cbranch_scc1 L_vproj", sW)
    for kap in range(3):
        A("ds_read_b128 %s, v%d offset:%d", v(vACC+4*kap,4), vQrd, 64*kap)
    A("s_cmp_lg_u32 s%d, 0\ns_cbranch_scc1 L_sc_x", sW)
    for kap in range(3):
        A("ds_read_b128 %s, v%d offset:%d", v(vKX+4*kap,4), vKrd, 64*kap)
    A.label("L_sc_x")
    A("s_waitcnt lgkmcnt(0)")
    A("v_mfma_f32_16x16x32_bf16 %s, %s, %s, 0", v(vSC,4), v(vKX,4), v(vACC,4))
    for kap in (1, 2):
        A("v_mfma_f32_16x16x32_bf16 %s, %s, %s, %s", v(vSC,4), v(vKX+4*kap,4), v(vACC+4*kap,4), v(vSC,4))
    A("s_mov_b64 exec, s[%d:%d]", sEVEN, sEVEN+1)
    A("s_lshl_b32 s%d, s%d, 9\nv_add_u32 v%d, s%d, v%d", sT0, sW, t0, sT0, pSC)
    A("s_nop 5")
    for r in range(4): A("v_and_or_b32 v%d, v%d, -2, s%d", vSC+r, vSC+r, sPAR)
    A("buffer_store_dwordx4 %s, v%d, %s, s%d offen", v(vSC,4), pSC, ws, oSCst)
    A("ds_write_b128 v%d, %s offset:%d", t0, v(vSC,4), L_SCO)
    A("s_mov_b64 exec, -1")
    A("s_cmp_eq_u32 s%d, 0\ns_cbranch_scc1 L_hopa", sW)
    A("s_waitcnt lgkmcnt(0)")
    A.label("L_vproj")
    for i in range(3, 6): vread(i)
    for i in range(20):
        A("s_waitcnt lgkmcnt(%d)", min(2*(NVB-1), 2*(19-i)))
        A("v_smfmac_f32_16x16x64_bf16 %s, %s, %s, v%d", v(vACC+12+4*(i % 2),4), v(vAF+4*(i//2),4), v(vBUF+8*(i % NVB),8), vIdxQK)
        if i + NVB < 20: vread(i+NVB)
    A("s_nop 7")
    vVMv = [vACC+13, vACC+17]
    for tt in range(2):
        A("v_add_f32 v%d, v%d, v%d\nv_add_f32 v%d, v%d, v%d", vACC+12+4*tt, vACC+12+4*tt, vACC+13+4*tt, vACC+14+4*tt, vACC+14+4*tt, vACC+15+4*tt)
        A("v_cvt_pk_bf16_f32 v%d, v%d, v%d\nds_write_b32 v%d, v%d offset:%d", vVMv[tt], vACC+12+4*tt, vACC+14+4*tt, pVMst, vVMv[tt], L_VMI+8*tt)
    A.label("L_hopa")
    vEXP = vT[6]
    def exports():
        l0 = A.newlabel(); l1 = A.newlabel()
        A("s_cmp_eq_u32 s%d, 0\ns_cbranch_scc1 %s", sW, l0)
        for tt in range(2):
            A("buffer_store_dword v%d, v%d, %s, s%d offen offset:%d sc1", vEXP+tt, pVMst, ws, sVMO, 8*tt)
        A("s_branch %s", l1)
        A.label(l0)
        A("s_mov_b32 exec_lo, 0x00ff00ff\ns_mov_b32 exec_hi, 0x00ff00ff")
        for kap in range(3):
            A("buffer_store_dwordx4 %s, v%d, %s, s%d offen offset:%d sc1", v(vKX+4*kap,4), pKM, ws, sKMO, 512*kap)
        A("s_mov_b64 exec, -1")
        A.label(l1)
        A("s_add_u32 s%d, s%d, %d\ns_add_u32 s%d, s%d, %d", sKMO, sKMO, 3072, sVMO, sVMO, 3072)
    A("v_mov_b32 v%d, v%d\nv_mov_b32 v%d, v%d", vEXP, vVMv[0], vEXP+1, vVMv[1])
    A("s_cmp_eq_u32 s%d, %d\ns_cbranch_scc1 L_ch_done", sSTEP, nsteps-1)
    def sc_loads():
        for t in range(3):
            A("buffer_load_dwordx4 %s, v%d, %s, s%d offen offset:%d sc1", v(vBUF+4*t,4), pSC, ws, oSCld, 512*t)
    sc_loads()
    A("s_waitcnt lgkmcnt(0)\ns_barrier")
    ts(2)
    vVm = vAF
    vS = vAF + 12
    vP = vAF + 24
    vP0 = vT[4]
    for t in range(3): A("ds_read_b128 %s, v%d offset:%d", v(vS+4*t,4), pSC, L_SCO+512*t)
    for t in range(6): A("ds_read_b128 %s, v%d offset:%d", v(vVX+4*t,4), vKVr, 6144+1024*t)
    for t in range(3): A("ds_read_b128 %s, v%d offset:%d", v(vVm+4*t,4), vVMIr, 512*t)
    A("s_branch L_pa1")
    A.label("L_pa")
    sc_loads()
    A.label("L_pa1")
    A("s_waitcnt vmcnt(0)")
    tagcheck(A, range(vBUF, vBUF+12), t0, "L_pa")
    ts(3)
    A("s_waitcnt lgkmcnt(9)")
    for t in range(3):
        for h2 in range(2):
            A("v_pk_add_f32 %s, %s, %s", v(vS+4*t+2*h2,2), v(vS+4*t+2*h2,2), v(vBUF+4*t+2*h2,2))
    for h2 in range(2):
        A("v_pk_add_f32 %s, %s, %s op_sel_hi:[1,0]", v(vS+2*h2,2), v(vS+2*h2,2), v(vBias,2))
    A("v_max3_f32 v%d, v%d, v%d, v%d", t0, vS+4, vS+5, vS+6)
    A("v_max3_f32 v%d, v%d, v%d, v%d", t1, vS+7, vS+8, vS+9)
    A("v_max3_f32 v%d, v%d, v%d, v%d", t0, t0, vS+10, vS+11)
    A("v_max3_f32 v%d, v%d, v%d, v%d", t1, t1, vS, vS+1)
    A("v_max3_f32 v%d, v%d, v%d, v%d", t0, t0, vS+2, vS+3)
    A("v_max_f32 v%d, v%d, v%d\nv_max_f32 v%d, v%d, v%d", t2, t0, t1, t0, t0, t1)
    A("s_nop 1\nv_permlane32_swap_b32 v%d, v%d", t0, t2)
    A("v_max_f32 v%d, v%d, v%d\nv_max_f32 v%d, v%d, v%d", t1, t0, t2, t0, t0, t2)
    A("s_nop 1\nv_permlane16_swap_b32 v%d, v%d", t0, t1)
    A("v_max_f32 v%d, v%d, v%d\nv_mul_f32 v%d, s%d, v%d", t0, t0, t1, t0, sSCL, t0)
    order = list(range(4, 12)) + list(range(4))
    for r in order:
        A("v_fma_f32 v%d, v%d, s%d, -v%d", vS+r, vS+r, sSCL, t0)
    for r in order:
        A("v_exp_f32 v%d, v%d", vS+r, vS+r)
    A("v_cvt_pk_bf16_f32 v%d, v%d, v%d\nv_cvt_pk_bf16_f32 v%d, v%d, v%d", vP, vS+4, vS+5, vP+1, vS+6, vS+7)
    A("v_cvt_pk_bf16_f32 v%d, v%d, v%d\nv_cvt_pk_bf16_f32 v%d, v%d, v%d", vP+2, vS+8, vS+9, vP+3, vS+10, vS+11)
    A("v_cvt_pk_bf16_f32 v%d, v%d, v%d\nv_cvt_pk_bf16_f32 v%d, v%d, v%d", vP0, vS, vS+1, vP0+1, vS+2, vS+3)
    A("s_waitcnt lgkmcnt(0)")
    ts(4)
    vO = vBUF
    for t in range(6):
        A("v_mfma_f32_16x16x32_bf16 %s, %s, %s, 0", v(vO+4*t,4), v(vVX+4*t,4), v(vP,4))
        if t == 0:
            A("v_pk_add_f32 %s, %s, %s\nv_pk_add_f32 %s, %s, %s", v(vS,2), v(vS,2), v(vS+2,2), v(vS+4,2), v(vS+4,2), v(vS+6,2))
        if t == 1:
            A("v_pk_add_f32 %s, %s, %s\nv_pk_add_f32 %s, %s, %s", v(vS+8,2), v(vS+8,2), v(vS+10,2), v(vS,2), v(vS,2), v(vS+4,2))
        if t == 2:
            A("v_pk_add_f32 %s, %s, %s\nv_add_f32 v%d, v%d, v%d\nv_add_f32 v%d, v%d, v%d\ns_nop 0", v(vS,2), v(vS,2), v(vS+8,2), t0, vS, vS+1, t1, vS, vS+1)
        if t == 3:
            A("v_permlane32_swap_b32 v%d, v%d\nv_add_f32 v%d, v%d, v%d\nv_add_f32 v%d, v%d, v%d\ns_nop 0", t0, t1, t2, t0, t1, t0, t0, t1)
        if t == 4:
            A("v_permlane16_swap_b32 v%d, v%d\nv_add_f32 v%d, v%d, v%d\nv_rcp_f32 v%d, v%d", t0, t2, t0, t0, t2, vS, t0)
    for t in range(6):
        A("v_mfma_f32_16x16x16_bf16 %s, %s, %s, %s", v(vO+4*t,4), v(vVm+2*t,2), v(vP0,2), v(vO+4*t,4))
        for r in range(4*t, min(4*t+4, 20)): A("v_mov_b32 v%d, 0", vACC+r)
    vOA = vAF + 28
    A("s_nop 1")
    def ocvt(t):
        for h2 in range(2):
            A("v_pk_mul_f32 %s, %s, %s op_sel_hi:[1,0]", v(vO+4*t+2*h2,2), v(vO+4*t+2*h2,2), v(vS,2))
            A("v_cvt_pk_bf16_f32 v%d, v%d, v%d", vOA+2*t+h2, vO+4*t+2*h2, vO+4*t+2*h2+1)
    ocvt(0); ocvt(1); ocvt(2)
    ts(5)
    for kap in range(3):
        for be in range(5):
            A("v_smfmac_f32_16x16x64_bf16 %s, %s, %s, v%d", v(vACC+4*be,4), v(vOA+4*kap,4), wo_oct(be*3+kap), vIdxWo)
            if kap == 0 and be < 3: ocvt(3+be)
    adv(oSCst, oSCld)
    A("s_nop 1")
    for be in range(5):
        for h2 in range(2):
            dst = vBUF + 4*h2 + be if be < 4 else vBUF + 8 + h2
            if be == 4 and h2 == 0: A("s_nop 0")
            A("v_cvt_pk_bf16_f32 v%d, v%d, v%d", dst, vACC+4*be+2*h2, vACC+4*be+2*h2+1)
        if be == 3:
            for r in (0, 2, 4, 6): A("v_and_or_b32 v%d, v%d, -2, s%d", vBUF+r, vBUF+r, sPAR)
            A("buffer_store_dwordx4 %s, v%d, %s, s%d offen", v(vBUF,4), pA, ws, oPBst)
            A("buffer_store_dwordx4 %s, v%d, %s, s%d offen offset:256", v(vBUF+4,4), pA, ws, oPBst)
    A("v_and_or_b32 v%d, v%d, -2, s%d", vBUF+8, vBUF+8, sPAR)
    A("buffer_store_dwordx2 %s, v%d, %s, s%d offen", v(vBUF+8,2), pL8, ws, oPBst2)
    ts(6)
    if timing: ts(7)
    A("s_cmp_ge_u32 s%d, 80\ns_cbranch_scc1 L_nored", sRW)
    A.label("L_pb")
    for i in range(4):
        A("buffer_load_dwordx4 %s, v%d, %s, s%d offen sc1", v(vVX+4*i,4), pPB, ws, oPB0+i)
    A("s_waitcnt vmcnt(0)")
    A("v_mfma_f32_16x16x32_bf16 %s, %s, %s, 0", v(vACC,4), v(vSEL,4), v(vVX,4))
    for i in (1, 2, 3):
        A("v_mfma_f32_16x16x32_bf16 %s, %s, %s, %s", v(vACC,4), v(vSEL,4), v(vVX+4*i,4), v(vACC,4))
    tagcheck(A, range(vVX, vVX+16, 2), t1, "L_pb")
    for r in range(4): A("v_add_f32_dpp v%d, v%d, v%d row_ror:8 row_mask:0xf bank_mask:0xf", vACC+4+r, vACC+r, vACC+r)
    A("s_mov_b64 exec, 0x00ff00ff")
    for r in range(4): A("v_and_or_b32 v%d, v%d, -2, s%d", vACC+4+r, vACC+4+r, sPAR)
    if opt.get("swap"): A("buffer_store_dwordx4 %s, v%d, %s, s%d offen", v(vACC+4,4), pXP, ws, oXPst)
    A("buffer_store_dwordx4 %s, v%d, %s, s%d offen sc1", v(vACC+4,4), pXP, ws, oXPstr)
    if not opt.get("swap"): A("buffer_store_dwordx4 %s, v%d, %s, s%d offen", v(vACC+4,4), pXP, ws, oXPst)
    A("s_mov_b64 exec, -1")
    ts(7)
    if opt.get("sleepr"): A("s_sleep %d", opt["sleepr"])
    A.label("L_nored")
    if not opt.get("noexp"): exports()
    lab = A.newlabel()
    A("s_cmp_lg_u32 s%d, 3\ns_cbranch_scc1 %s", sW, lab)
    if not opt.get("nokv"): kv_next()
    A.label(lab)
    if opt.get("sleep"):
        lab = A.newlabel()
        A("s_cmp_lt_u32 s%d, 80\ns_cbranch_scc1 %s\ns_sleep %d", sRW, lab, opt["sleep"])
        A.label(lab)
    adv(oPBst, oPBst2, oPB0, oPB1, oPB2, oPB3, oXPst, oXPstr)
    A("v_add_u32 v%d, s%d, v%d\ns_sub_u32 s%d, 0, s%d", vKVr, sKVD, vKVr, sKVD, sKVD)
    ts(8)
    def xp_loads(base, o0, o1, oB):
        for rho in range(2):
            A("buffer_load_dwordx4 %s, v%d, %s, s%d offen offset:%d sc1", v(base+8*rho,4), pA, ws, o0, 256*rho)
            A("buffer_load_dwordx4 %s, v%d, %s, s%d offen offset:%d sc1", v(base+8*rho+4,4), pA, ws, o1, 256*rho)
        A("buffer_load_dwordx4 %s, v%d, %s, s%d offen sc1", v(base+16,4), pB, ws, oB)
    A.label("L_pc")
    xp_loads(vAF, oXPl0, oXPl1, oXPlB)
    A("s_waitcnt vmcnt(0)")
    tagcheck(A, range(vAF, vAF+20), t1, "L_pc")
    ts(9)
    A.label("L_pr")
    xp_loads(vAF+20, oXPr0, oXPr1, oXPrB)
    A("s_waitcnt vmcnt(0)")
    tagcheck(A, range(vAF+20, vAF+40), t1, "L_pr")
    ts(10)
    for i in range(10):
        A("v_pk_add_f32 %s, %s, %s", v(vAF+2*i,2), v(vAF+2*i,2), v(vAF+20+2*i,2))
        A("v_cvt_pk_bf16_f32 v%d, v%d, v%d", vBUF+i, vAF+2*i, vAF+2*i+1)
        if i == 3: A("ds_write_b128 v%d, %s", vMEMw, v(vBUF,4))
        if i == 7: A("ds_write_b128 v%d, %s offset:%d", vMEMw, v(vBUF+4,4), MEM_RS)
    A("ds_write_b32 v%d, v%d\nds_write_b32 v%d, v%d offset:%d", vMEMw4, vBUF+8, vMEMw4, vBUF+9, MEM_RS)
    adv(oXPl0, oXPl1, oXPlB, oXPr0, oXPr1, oXPrB)
    A("s_add_u32 s%d, s%d, 1\ns_xor_b32 s%d, s%d, 1", sSTEP, sSTEP, sPAR, sPAR)
    A("s_add_u32 s%d, s%d, 1\ns_cmp_eq_u32 s%d, %d\ns_cselect_b32 s%d, 0, s%d", sSLOTI, sSLOTI, sSLOTI, RING, sSLOTI, sSLOTI)
    if timing:
        ts(11); ts(12)
        A("s_waitcnt lgkmcnt(0)")
        if opt.get("rt"):
            lab = A.newlabel()
            A("s_cmp_lg_u32 s%d, 41\ns_cbranch_scc1 %s", sSTEP, lab)
            for i in range(12): A("s_mov_b32 s%d, s%d", 90+i, sTS+2*i)
            A.label(lab)
        else:
          for i in range(12):
            A("s_sub_u32 s%d, s%d, s%d\ns_add_u32 s%d, s%d, s%d", sT0, sTS+2*(i+1), sTS+2*i, 90+i, 90+i, sT0)
    A("s_waitcnt lgkmcnt(0)")
    A("s_branch L_step")
    A.label("L_ch_done")
    if timing: A("s_mov_b32 s%d, s98\ns_mov_b32 s%d, s99\ns_mov_b32 s%d, s96\ns_mov_b32 s%d, s97", 64, 65, 66, 67)
    stamp(6)
    if timing: A("s_mov_b32 s98, s64\ns_mov_b32 s99, s65\ns_mov_b32 s96, s66\ns_mov_b32 s97, s67")
    exports()
    if timing:
        sexpr(A, sT1, DBG_OFF, (256, 2), (64, sW))
        A("s_mov_b64 exec, 1\nv_mov_b32 v2, 0")
        for i in range(12):
            A("v_mov_b32 v1, s%d\nbuffer_store_dword v1, v2, %s, s%d offen offset:%d\ns_nop 1", 90+i, ws, sT1, 4*i)
        A("v_mov_b32 v1, s%d\nbuffer_store_dword v1, v2, %s, s%d offen offset:56\ns_nop 1", sME, ws, sT1)
        A("v_mov_b32 v1, s%d\nbuffer_store_dword v1, v2, %s, s%d offen offset:52\ns_nop 1", sB, ws, sT1)
        A("v_mov_b32 v1, 1\nbuffer_store_dword v1, v2, %s, s%d offen offset:60", ws, sT1)
        A("s_mov_b64 exec, -1")
    A("s_waitcnt vmcnt(0) lgkmcnt(0)\ns_barrier")
    lab = A.newlabel()
    A("s_cmp_lg_u32 s%d, 3\ns_cbranch_scc1 %s", sW, lab)
    A("v_mov_b32 v%d, 0\nv_mov_b32 v%d, 64\ns_mov_b64 exec, 1\nbuffer_store_dword v%d, v%d, %s, s%d offen sc1\ns_mov_b64 exec, -1", t0, t1, t1, t0, ws, sFCHo)
    A.label(lab)

def gen_chain_only(timing=True, opt={}):
    A = Asm()
    K = "chain_kernel"
    emit_common_prologue(A)
    A("s_cmp_ge_u32 s%d, 4\ns_cbranch_scc1 L_end", sT3)
    A("s_cmp_ge_u32 s%d, 32\ns_cbranch_scc1 L_end", sJ)
    A("s_lshr_b32 s%d, s%d, 1\ns_and_b32 s%d, s%d, 1", sB, sT3, sX, sT3)
    emit_chain(A, timing=timing, opt=opt)
    A.label("L_end")
    A("s_endpgm")
    emit_stubs(A, "L_abort")
    A.label("L_abort")
    A("s_mov_b64 exec, 1\nv_mov_b32 v1, 1\nv_mov_b32 v2, 252\nbuffer_atomic_add v1, v2, s[12:15], 0 offen\ns_endpgm")
    return build_file([(K, 256, 256, 163840)], [(K, A, 512, 102, 256)])

if __name__ == "__main__":
    open("chain_t.s", "w").write(gen_chain_only(True, dict(nready=128, noflags=1)))
```

```python
NSEG = 64
HS = 64*12288 + 4352
HM = 64*3072 + 1280
KX_OFF = 0
VX_OFF = KX_OFF + 64*HS
OX_OFF = VX_OFF + 64*HS
KM_OFF = OX_OFF + 2*64*32*12288
VM_OFF = KM_OFF + 64*HM
RING_OFF = VM_OFF + 64*HM
REC = 2048
R_SC = 0
R_PB = 64*REC
R_XPL = R_PB + 64*10240
R_XPR = R_XPL + 2*20480
SLOT = R_XPR + 2*20480
RING = 3
FLAG_OFF = RING_OFF + 2*RING*SLOT
F_KV = FLAG_OFF
F_CH = F_KV + 128*128
F_END = F_CH + 128*128
WOF_OFF = 184*1024*1024
PART_OFF = 208*1024*1024
SCRATCH_OFF = 180*1024*1024
DBG_OFF = 202*1024*1024
L_MEM = 0
MEM_RS = 1344
L_SCO = L_MEM
L_VMI = L_MEM + 2048
L_Q = L_MEM + 8*MEM_RS
QK_RS = 224
L_K = L_Q + 8*QK_RS
L_KVB = L_K + 8*QK_RS
L_BCAST = L_KVB + 2*12288
L_WV = 40960

assert F_END < SCRATCH_OFF and SCRATCH_OFF + 256*16384 <= WOF_OFF and WOF_OFF + 2*192*40960 < DBG_OFF
D_TICKET = 0
D_CHRDY = 32
D_READY = 40
D_QUEUE = 44
D_WOF = 48
D_FO = 64
D_SK = 192
SPLIT = [1]*12 + [2, 2, 4, 8]
```

```python
import sys
from asmlib import *
from layout import *
import chain, bulk
from chain import sexpr, sW, sB, sX, sJ, sH, sT0, sT1, sT2, sT3, WS

def gen(opt={}, listform=False, prof=False):
    A = Asm(); K = KNAME + "_kernel"
    chain.emit_common_prologue(A)
    def stamp(i):
        if not prof: return
        A("s_memrealtime s[96:97]\ns_waitcnt lgkmcnt(0)\ns_mov_b64 exec, 1\nv_mov_b32 v1, s96\nv_mov_b32 v2, 0")
        sexpr(A, 98, DBG_OFF+131072, (256, 2), (64, sW), tmp=99)
        A("buffer_store_dword v1, v2, %s, s98 offen offset:%d\ns_mov_b64 exec, -1\ns_nop 1", WS, 4*i)
    stamp(0)
    A("s_cmp_ge_u32 s%d, 32\ns_cbranch_scc1 L_end", sJ)
    A("s_cmp_ge_u32 s%d, 4\ns_cbranch_scc1 L_bulk", sT3)
    A("s_lshr_b32 s%d, s%d, 1\ns_and_b32 s%d, s%d, 1", sB, sT3, sX, sT3)
    chain.emit_chain(A, timing=False, opt=opt)
    stamp(1)
    A("s_branch L_op")
    A.label("L_bulk")
    A("s_bfe_u32 s%d, s%d, 0x10001\ns_and_b32 s%d, s%d, 1\ns_lshr_b32 s%d, s%d, 1", sB, sT3, sT1, sT3, sT2, sJ)
    sexpr(A, sH, 0, (16, sT1), (1, sT2))
    A("s_and_b32 s%d, s%d, 1", bulk.sMAT, sJ)
    sexpr(A, sT1, F_KV, (32*256, sB), (256, sH), (128, bulk.sMAT))
    lab = A.newlabel()
    A("s_cmp_lg_u32 s%d, 0\ns_cbranch_scc1 %s", sW, lab)
    A("v_mov_b32 v1, 0\nv_mov_b32 v2, 1\ns_mov_b64 exec, 1\nbuffer_store_dword v1, v1, %s, s%d offen sc1\ns_waitcnt vmcnt(0)", WS, sT1)
    A("buffer_atomic_add v2, v1, s[12:15], 0 offen offset:%d\ns_mov_b64 exec, -1", D_READY)
    A.label(lab)
    bulk.emit_kv(A)
    stamp(2)
    A("s_cmp_eq_u32 s%d, 1\ns_cbranch_scc1 L_wof", bulk.sMAT)
    A("v_mov_b32 v1, 0")
    bulk.dbg_wait(A, None, D_READY, 256, 1, 2)
    bulk.emit_qa(A)
    stamp(3)
    A("s_branch L_op")
    A.label("L_wof")
    bulk.emit_wof(A)
    stamp(4)
    A.label("L_op")
    bulk.emit_op(A)
    stamp(5)
    A.label("L_end")
    A("s_endpgm")
    chain.emit_stubs(A, "L_abort")
    A.label("L_abort")
    A("s_mov_b64 exec, 1\nv_mov_b32 v1, 1\nv_mov_b32 v2, 252\nbuffer_atomic_add v1, v2, s[12:15], 0 offen\ns_endpgm")
    txt = build_file([(K, 256, 256, 163840)], [(K, A, 512, 102, 256)])
    if not listform: txt = txt.replace("; @launch kernel=%s grid" % K, "; @launch grid")
    return txt

if __name__ == "__main__":
    open("cdna_kernels/%s.s" % KNAME, "w").write(gen())
    open("all_l.s", "w").write(gen(listform=True, prof=True))
```

```python
from asmlib import *
from layout import *
from chain import wait_flags, sexpr, spin_stub, sW, sB, sH, sT0, sT1, sT2, sT3, WS, VAlloc, f32bits, sSPIN
import math

sMAT = 18
sXO = 34
sXB = 35
sSEG = 36
sST0, sST1 = 37, 38
sFLG = 39
sG0, sL0, sG1 = 40, 41, 42
sKA = 88
X_BUF = 40960
L_X = 0
L_QI = 5*20480

def load_w(A, ptr_off, tag):
    vD = [1, 2, 3]; vTR = 4; t0, t1, t2, vN, vG = 5, 6, 7, 8, 9
    A("s_mul_i32 s%d, s%d, 56\ns_add_u32 s%d, s0, s%d\ns_addc_u32 s%d, s1, 0", sT0, sB, sKA, sT0, sKA+1)
    ptr_off(A)
    A("s_mov_b32 s10, %d\ns_mov_b32 s11, 0x20000", 640*6144*2)
    A("v_and_b32 v%d, 15, v0\nv_lshrrev_b32 v%d, 4, v0", vN, vG)
    sexpr(A, sT1, 0, (384, sH), (32*12288, sW))
    for i in range(3):
        A("v_add_u32 v%d, %d, v0\nv_mul_u32_u24 v%d, 171, v%d\nv_lshrrev_b32 v%d, 12, v%d", t0, 64*i, t1, t0, t1, t1)
        A("v_mul_u32_u24 v%d, 24, v%d\nv_sub_u32 v%d, v%d, v%d", t2, t1, t2, t0, t2)
        A("v_mul_u32_u24 v%d, 12288, v%d\nv_lshl_add_u32 v%d, v%d, 4, v%d\nv_add_u32 v%d, s%d, v%d", t1, t1, t1, t2, t1, vD[i], sT1, t1)
    A("v_lshrrev_b32 v%d, 2, v%d\nv_lshl_add_u32 v%d, v%d, 3, v%d\nv_mul_u32_u24 v%d, 384, v%d", t0, vN, t0, vG, t0, t0, t0)
    A("v_and_b32 v%d, 3, v%d\nv_lshl_add_u32 v%d, v%d, 3, v%d\ns_mul_i32 s%d, s%d, 96\nv_add_u32 v%d, s%d, v%d", t1, vN, t0, t1, t0, sT1, sW, vTR, sT1, t0)
    sexpr(A, sL0, 0, (12288, sW))
    A("s_waitcnt lgkmcnt(0)")
    def dma(c):
        for i in range(12):
            A("s_mov_b32 s%d, %d\ns_add_u32 m0, s%d, %d", sT0, (c*128 + (i//3)*8)*12288, sL0, (c % 2)*49152 + i*1024)
            A("s_nop 0\nbuffer_load_dwordx4 v%d, s[8:11], s%d offen lds", vD[i % 3], sT0)
    A("s_barrier")
    dma(0); dma(1)
    for c in range(5):
        A("s_waitcnt vmcnt(%d)\ns_barrier", 12 if c < 4 else 0)
        for kk in range(4):
            for t in range(3):
                for hf in range(2):
                    A("ds_read_b64_tr_b16 %s, v%d offset:%d", a(80*t + 4*(4*c+kk) + 2*hf, 2), vTR, (32*kk + 4*hf)*384 + 32*t)
        A("v_%s_u32 v%d, 49152, v%d", "add" if c % 2 == 0 else "subrev", vTR, vTR)
        A("s_waitcnt lgkmcnt(0)\ns_barrier")
        if c + 2 < 5: dma(c+2)

OPT = {"il": 1}
class VM:
    def __init__(self, A): self.A = A; self.ops = []; self.waits = []
    def op(self, tag, n=1): self.ops += [tag]*n
    def wait(self, needs):
        self.A("s_waitcnt vmcnt(@@)")
        self.waits.append((len(self.A.lines)-1, len(self.ops), needs))
    def resolve(self):
        n = len(self.ops)
        for line, p, needs in self.waits:
            best = 63
            for tag, back in needs:
                idx = [i for i, t in enumerate(self.ops) if t == tag and (back > 0 or i < p)]
                q = max(idx)
                best = min(best, p - q - 1 + back*n)
            assert best >= 0
            self.A.lines[line] = self.A.lines[line].replace("@@", str(best))

HB = 20480
class Proj:
    def __init__(self, A, vXD, vXr, vXo, vXF, vACC, vTmp, NR=6):
        self.A, self.vXD, self.vXr, self.vXF, self.vACC, self.vTmp = A, vXD, vXr, vXF, vACC, vTmp; self.NR = NR; self.vXo = vXo
    def setup(self, x0=None):
        A = self.A
        A("s_load_dwordx2 s[8:9], s[%d:%d], 0", sKA, sKA+1)
        A("s_mov_b32 s10, %d", 2048*1280)
        A("v_lshrrev_b32 v5, 3, v0\nv_xor_b32 v6, v5, v0\nv_and_b32 v6, 7, v6\nv_mul_u32_u24 v5, 1280, v5\nv_lshl_add_u32 v5, v6, 4, v5")
        sexpr(A, sT1, 0, (8*1280, sW))
        A("v_add_u32 v%d, s%d, v5", self.vXD, sT1)
        sexpr(A, sL0, L_X, (5120, sW))
        r = self.vXr
        A("v_lshrrev_b32 v5, 4, v0\nv_xor_b32 v5, v5, v0\nv_and_b32 v5, 7, v5\nv_and_b32 v6, 7, v0\nv_lshlrev_b32 v6, 7, v6\nv_lshl_add_u32 v5, v5, 4, v6")
        A("v_bfe_u32 v6, v0, 3, 1\nv_mul_u32_u24 v6, 5120, v6\nv_add_u32 v%d, v5, v6\nv_add_u32 v%d, %d, v%d", r, r+1, HB, r)
        A("v_xor_b32 v%d, 64, v%d\nv_xor_b32 v%d, 64, v%d", self.vXo, r, self.vXo+1, r+1)
        A("s_mov_b32 s%d, %s\ns_mov_b32 s%d, s%d", sXO, "0" if x0 is None else "s%d" % x0, sXB, sL0)
        A("s_waitcnt lgkmcnt(0)")
        for j in range(self.NR-2):
            for f in self.dma_fillers(j % 2): A(f)
        A("s_waitcnt vmcnt(0)\ns_barrier")
        self.rd(0, 0); self.rd(0, 1)
    def dma_fillers(self, kh):
        out = []
        for i in range(5):
            t = "s_add_u32 m0, s%d, %d\ns_nop 0\nbuffer_load_dwordx4 v%d, s[8:11], s%d offen offset:%d lds" % (sXB, i*1024 - i*128, self.vXD, sXO, i*128)
            if i == 4:
                t += "\ns_add_u32 s%d, s%d, %d\ns_add_u32 s%d, s%d, %d" % (sXO, sXO, 640 if kh == 0 else 32*1280 - 640, sXB, sXB, HB)
                t += "\ns_add_u32 s%d, s%d, %d\ns_cmp_ge_u32 s%d, s%d\ns_cselect_b32 s%d, s%d, s%d" % (sT0, sL0, self.NR*HB, sXB, sT0, sXB, sL0, sXB)
            out.append(t)
        return out
    def rd(self, kh, k, only=None):
        for tt in range(2):
            if only is not None and tt != only: continue
            self.A("ds_read_b128 %s, v%d offset:%d", v(self.vXF + 8*((10*kh+k) % 4) + 4*tt, 4), (self.vXr if k % 2 == 0 else self.vXo) + kh, tt*10240 + (k//2)*1024)
    def half(self, kh, w_is_a, fill, vm, xtag, needs, gap=None):
        A = self.A
        dm = self.dma_fillers((kh + self.NR) % 2)
        if gap is not None: dm[4] += "\ns_add_u32 s%d, s%d, s%d" % (sXO, sXO, gap)
        for k in range(10):
            if k == 8:
                vm.wait(needs)
                A("s_barrier")
                r, t = self.vXr + kh, self.vTmp
                A("v_add_u32 v%d, %d, v%d\nv_cmp_le_u32 vcc, %d, v%d\nv_subrev_u32 v%d, %d, v%d\nv_cndmask_b32 v%d, v%d, v%d, vcc", r, 2*HB, r, self.NR*HB, r, t, self.NR*HB, r, r, r, t)
                A("v_xor_b32 v%d, 64, v%d", self.vXo + kh, r)
            nk = (kh, k+2) if k < 8 else (1-kh, k-8)
            if not OPT.get("il"): self.rd(*nk)
            A("s_waitcnt lgkmcnt(%d)", 4 if not OPT.get("il") else 2)
            kk = 10*kh + k
            for t in range(3):
                for tt in range(2):
                    acc = v(self.vACC + 8*t + 4*tt, 4); w = a(80*t + 4*kk, 4); x = v(self.vXF + 8*(kk % 4) + 4*tt, 4)
                    A("v_mfma_f32_16x16x32_bf16 %s, %s, %s, %s", acc, w if w_is_a else x, x if w_is_a else w, "0" if kk == 0 else acc)
                    if OPT.get("il") and tt == 0 and t < 2: self.rd(*nk, only=t)
                    if t == 2 and tt == 0 and k < 5:
                        A(dm[k]); vm.op(xtag)
            if k in fill:
                A(fill[k][0])
                for tag, n in fill[k][1]: vm.op(tag, n)

def emit_kv(A):
    ws = WS
    def ptr(A):
        A("s_lshl_b32 s%d, s%d, 3\ns_add_u32 s%d, s%d, s%d\ns_addc_u32 s%d, s%d, 0", sT0, sMAT, 90, sKA, sT0, 91, sKA+1)
        A("s_load_dwordx2 s[8:9], s[90:91], 24")
    load_w(A, ptr, "kv")
    vXD, vXr, vL16, vZ, vF, vTmp = 1, 2, 4, 10, 11, 12
    vXF, vACC, vO = 16, 48, 72
    P = Proj(A, vXD, vXr, 14, vXF, vACC, vTmp)
    A("v_lshlrev_b32 v%d, 4, v0\nv_mov_b32 v%d, 0\ns_mov_b32 s%d, 0", vL16, vZ, sSEG)
    sexpr(A, sT2, 0, (32, sB), (1, sH))
    sexpr(A, sFLG, F_KV, (256, sT2), (128, sMAT))
    A("s_lshr_b32 s%d, s%d, 1\ns_and_b32 s%d, s%d, 1", sT1, sW, sT3, sW)
    sexpr(A, sST0, KX_OFF-12288, (HS, sT2), (6144, sT1), (1024, sT3))
    sexpr(A, sST1, KX_OFF+4096-12288, (HS, sT2), (6144, sT1), (1024, sT3))
    A("s_cmp_eq_u32 s%d, 0\ns_cbranch_scc1 L_kv_st", sMAT)
    sexpr(A, sST0, VX_OFF-12288, (HS, sT2), (3072, sW))
    A.label("L_kv_st")
    A("s_mov_b32 s%d, s%d\ns_mov_b32 s%d, s%d", sG0, sST0, sG1, sST1)
    sexpr(A, sST0, SCRATCH_OFF, (16384, 2))
    A("s_mov_b32 s%d, s%d", sST1, sST0)
    P.setup()
    A("s_cmp_eq_u32 s%d, 1\ns_cbranch_scc1 L_kv1_loop", sMAT)
    for mat in range(2):
        L = "L_kv%d" % mat
        NST = 3
        def stores():
            if mat == 0:
                o = ["buffer_store_dwordx4 %s, v%d, %s, s%d offen offset:%d sc1" % (v(vO+4*i, 4), vL16, ws, sST0 if i < 2 else sST1, 2048 if i == 1 else 0) for i in range(3)]
                return [o[0] + "\n" + o[1], o[2]]
            o = ["buffer_store_dwordx4 %s, v%d, %s, s%d offen offset:%d sc1" % (v(vO+4*t, 4), vL16, ws, sST0, 1024*t) for t in range(3)]
            return [o[0] + "\n" + o[1], o[2]]
        A.label(L+"_loop")
        st = stores()
        l3 = A.newlabel()
        vm = VM(A)
        P.half(0, mat == 0, {5: (st[0], [("S", 2)]), 6: (st[1], [("S", NST-2)])}, vm, "X0", [("X1", 2)])
        flag = ("s_cmp_lg_u32 s%d, 0\ns_cbranch_scc1 %s\ns_cmp_lt_u32 s%d, 2\ns_cbranch_scc1 %s\n" % (sW, l3, sSEG, l3) +
                "s_sub_u32 s%d, s%d, 1\nv_mov_b32 v%d, s%d\ns_mov_b64 exec, 1\n" % (sT0, sSEG, vF, sT0) +
                "buffer_store_dword v%d, v%d, %s, s%d offen sc1\ns_mov_b64 exec, -1\n%s:" % (vF, vZ, ws, sFLG, l3))
        P.half(1, mat == 0, {8: (flag, [])}, vm, "X1", [("X0", 1), ("S", 1)])
        vm.resolve()
        A("s_cmp_eq_u32 s%d, 0\ns_cselect_b32 s%d, s%d, s%d\ns_cselect_b32 s%d, s%d, s%d", sSEG, sST0, sG0, sST0, sST1, sG1, sST1)
        A("s_add_u32 s%d, s%d, 12288\ns_add_u32 s%d, s%d, 12288\ns_add_u32 s%d, s%d, 1", sST0, sST0, sST1, sST1, sSEG, sSEG)
        A("s_nop 1")
        if mat == 0:
            for t in range(3):
                for tt in range(2):
                    for h2 in range(2):
                        A("v_cvt_pk_bf16_f32 v%d, v%d, v%d", vO + (4*tt + 2*t if t < 2 else 8 + 2*tt) + h2, vACC + 8*t + 4*tt + 2*h2, vACC + 8*t + 4*tt + 2*h2 + 1)
        else:
            for t in range(3):
                for i in range(4):
                    A("v_cvt_pk_bf16_f32 v%d, v%d, v%d", vO + 4*t + i, vACC + 8*t + 2*i, vACC + 8*t + 2*i + 1)
        A("s_cmp_lt_u32 s%d, 64\ns_cbranch_scc1 %s_loop", sSEG, L)
        for x in stores(): A(x)
        if mat == 0: A("s_branch L_kv_fin")
    A.label("L_kv_fin")
    A("s_waitcnt vmcnt(0) lgkmcnt(0)\ns_barrier")
    lab = A.newlabel()
    A("s_cmp_lg_u32 s%d, 0\ns_cbranch_scc1 %s", sW, lab)
    A("v_mov_b32 v%d, 64\ns_mov_b64 exec, 1", vF)
    A("buffer_store_dword v%d, v%d, %s, s%d offen sc1\ns_mov_b64 exec, -1", vF, vZ, ws, sFLG)
    A.label(lab)


sUN = 36
sKXa, sKMa, sOXa = 37, 38, 39
sAV = 43
sSC2 = 44
sFCH = 45
sKXb, sKXc, sVXa, sVXb, sVXc, sVMa = 46, 47, 48, 49, 50, 51
sGAP, sSTR, sPREV = 56, 57, 58

def merge(A, M, Vv):
    n = len(M); done = 0
    for i, m in enumerate(M):
        A(m)
        upto = (len(Vv)*(i+1))//n
        for x in Vv[done:upto]:
            if callable(x): x()
            else: A(x)
        done = upto

def softmax_stream(vS, nv, vP, vP0, bias, t0, t1, t2, sSC):
    o = ["s_nop 7"]
    o += bias
    r = list(range(vS, vS+nv))
    o.append("v_max3_f32 v%d, v%d, v%d, v%d" % (t0, r[0], r[1], r[2]))
    o.append("v_max3_f32 v%d, v%d, v%d, v%d" % (t1, r[3], r[4], r[5]))
    o.append("v_max3_f32 v%d, v%d, v%d, v%d" % (t0, t0, r[6], r[7]))
    if nv == 12:
        o.append("v_max3_f32 v%d, v%d, v%d, v%d" % (t1, t1, r[8], r[9]))
        o.append("v_max3_f32 v%d, v%d, v%d, v%d" % (t0, t0, r[10], r[11]))
    o += ["v_max_f32 v%d, v%d, v%d" % (t2, t0, t1), "v_max_f32 v%d, v%d, v%d" % (t0, t0, t1), "s_nop 1", "v_permlane32_swap_b32 v%d, v%d" % (t0, t2)]
    o += ["v_max_f32 v%d, v%d, v%d" % (t1, t0, t2), "v_max_f32 v%d, v%d, v%d" % (t0, t0, t2), "s_nop 1", "v_permlane16_swap_b32 v%d, v%d" % (t0, t1)]
    o += ["v_max_f32 v%d, v%d, v%d" % (t0, t0, t1), "v_mul_f32 v%d, s%d, v%d" % (t0, sSC, t0)]
    o += ["v_fma_f32 v%d, v%d, s%d, -v%d" % (x, x, sSC, t0) for x in r]
    o += ["v_exp_f32 v%d, v%d" % (x, x) for x in r]
    o += ["v_cvt_pk_bf16_f32 v%d, v%d, v%d" % (vP0+i, vS+2*i, vS+2*i+1) for i in range(2)]
    o += ["v_cvt_pk_bf16_f32 v%d, v%d, v%d" % (vP+i, vS+4+2*i, vS+5+2*i) for i in range((nv-4)//2)]
    if nv == 8: o += ["v_mov_b32 v%d, 0" % (vP+2), "v_mov_b32 v%d, 0" % (vP+3)]
    pk = lambda d, x: "v_pk_add_f32 %s, %s, %s" % (v(d,2), v(d,2), v(x,2))
    o += [pk(vS, vS+2), pk(vS+4, vS+6)]
    if nv == 12: o += [pk(vS+8, vS+10), pk(vS, vS+8)]
    o += [pk(vS, vS+4), "v_add_f32 v%d, v%d, v%d" % (t0, vS, vS+1), "v_add_f32 v%d, v%d, v%d" % (t1, vS, vS+1), "s_nop 1",
          "v_permlane32_swap_b32 v%d, v%d" % (t0, t1), "v_add_f32 v%d, v%d, v%d" % (t2, t0, t1), "v_add_f32 v%d, v%d, v%d" % (t0, t0, t1), "s_nop 1",
          "v_permlane16_swap_b32 v%d, v%d" % (t0, t2), "v_add_f32 v%d, v%d, v%d" % (t0, t0, t2), "v_rcp_f32 v%d, v%d" % (vS, t0), "s_nop 1"]
    return o

def emit_qa(A, nunits=16, timing=False):
    ws = WS
    load_w(A, lambda A: A("s_load_dwordx2 s[8:9], s[%d:%d], 16", sKA, sKA+1), "qa")
    vXD, vXr, vL16, vZ, vTmp = 1, 2, 4, 10, 12
    pKM, pVM, vQw, vQw2, vQr, vFL = 5, 6, 7, 8, 9, 11
    t0, t1, t2 = 13, 14, 15
    vXF, vACC, vK, vV, vVm = 16, 48, 72, 144, 192
    vB0, vDG, vS0, vS1, vPa, vPb, vP0a, vP0b = 216, 220, 224, 232, 244, 248, 252, 254
    vN, vG = vS0, vS0+1
    P = Proj(A, vXD, vXr, 218, vXF, vACC, vTmp, NR=5)
    A("s_mul_i32 s%d, s%d, %d", sGAP, sMAT, 128*1280)
    P.setup(sGAP)
    A("v_lshlrev_b32 v%d, 4, v0\nv_mov_b32 v%d, 0\ns_mov_b32 s%d, s%d\ns_mov_b32 s%d, 0\ns_mov_b32 s%d, -1", vL16, vZ, sUN, sMAT, sAV, sPREV)
    A("v_and_b32 v%d, 15, v0\nv_lshrrev_b32 v%d, 4, v0\nv_lshlrev_b32 v%d, 7, v0", vN, vG, vFL)
    A("v_and_b32 v%d, 7, v%d\nv_lshlrev_b32 v%d, 4, v%d\nv_lshl_add_u32 v%d, v%d, 7, v%d", t0, vN, t0, t0, pKM, vG, t0)
    A("v_and_b32 v%d, 31, v0\nv_lshlrev_b32 v%d, 4, v%d", t0, pVM, t0)
    A("s_lshr_b32 s%d, s%d, 1\ns_and_b32 s%d, s%d, 1", sT1, sW, sT3, sW)
    sexpr(A, sT2, L_QI, (3072, sT1), (1024, sT3)); A("v_add_u32 v%d, s%d, v%d", vQw, sT2, vL16)
    sexpr(A, sT2, L_QI+2048, (3072, sT1), (8, sT3)); A("v_add_u32 v%d, s%d, v%d", vQw2, sT2, vL16)
    sexpr(A, sT2, L_QI, (12288, sW)); A("v_add_u32 v%d, s%d, v%d", vQr, sT2, vL16)
    A("v_mov_b32 v%d, 0xf149f2ca\nv_cmp_lt_u32 vcc, 1, v%d\ns_nop 1\nv_cndmask_b32 v%d, 0, v%d, vcc", t1, vG, vB0, t1)
    for r in range(4):
        A("v_lshl_add_u32 v%d, v%d, 2, %d\nv_cmp_gt_u32 vcc, v%d, v%d\ns_nop 1\nv_cndmask_b32 v%d, 0, v%d, vcc", t0, vG, r, t0, vN, vDG+r, t1)
    A("s_mov_b32 s%d, 0x%08x", sSC2, f32bits((192 ** -0.5) * math.log2(math.e)))
    sexpr(A, sT2, 0, (32, sB), (1, sH))
    sexpr(A, sKXa, KX_OFF, (HS, sT2), (12288, sW), (4*12288, sMAT))
    sexpr(A, sKMa, KM_OFF, (HM, sT2), (3072, sW), (4*3072, sMAT))
    sexpr(A, sOXa, OX_OFF, (128*32*6144, sB), (2*32*6144, sW), (6144, sH), (8*32*6144, sMAT))
    sexpr(A, sFCH, F_CH, (256, sT2))
    sexpr(A, sT1, F_KV, (256, sT2)); A("s_mov_b32 s%d, 64", sT2)
    wait_flags(A, vFL, t0, sT1, sT2, 3)
    def ts(i):
        if timing: A("s_memtime s[%d:%d]", 60+2*i, 61+2*i)
    if timing:
        for i in range(88, 102): A("s_mov_b32 s%d, 0", i)
    A.label("L_qa_loop")
    ts(0)
    A("s_cmp_lt_u32 s%d, %d\ns_cselect_b32 s%d, 2, 1\ns_cselect_b32 s%d, %d, 0", sUN, QA_U, sSTR, sGAP, 128*1280)
    vm = VM(A)
    def ld4(dst, voff, so, off): return "buffer_load_dwordx4 %s, v%d, %s, s%d offen offset:%d sc1" % (v(dst, 4), voff, ws, so, off)
    A("s_add_u32 s%d, s%d, 4096\ns_add_u32 s%d, s%d, 6144", sKXb, sKXa, sKXc, sKXa)
    A("s_add_u32 s%d, s%d, %d\ns_add_u32 s%d, s%d, 4096\ns_add_u32 s%d, s%d, 8192", sVXa, sKXa, VX_OFF-KX_OFF, sVXb, sVXa, sVXc, sVXa)
    A("s_add_u32 s%d, s%d, %d\ns_add_u32 s%d, s%d, 10240", sVMa, sKMa, VM_OFF-KM_OFF, sG0, sKXa)
    kx = []
    for u in range(2):
        for t in range(2):
            for kap in range(2): kx.append(ld4(vK + 24*(1+t) + 4*(3*u+kap), vL16, sKXa if u == 0 else sKXc, 2048*t + 1024*kap))
            kx.append(ld4(vK + 24*(1+t) + 4*(3*u+2), vL16, sKXb if u == 0 else sG0, 1024*t))
    vx = [ld4(vV + 4*tau, vL16, (sVXa, sVXb, sVXc)[tau//4], 1024*(tau % 4)) for tau in range(12)]
    mm = [ld4(vK + 4*k6, pKM, sKMa, 512*k6) for k6 in range(6)] + [ld4(vVm + 4*p, pVM, sVMa, 512*p) for p in range(6)]
    def spread(lst, ks, tag):
        out = {}
        n = (len(lst) + len(ks) - 1)//len(ks)
        for i, k in enumerate(ks):
            part = lst[i*n:(i+1)*n]
            if part: out[k] = ("\n".join(part), [(tag, len(part))])
        return out
    l3 = A.newlabel()
    oflag = ("s_cmp_lg_u32 s%d, 0\ns_cbranch_scc1 %s\ns_cmp_eq_u32 s%d, -1\ns_cbranch_scc1 %s\n" % (sW, l3, sPREV, l3) +
             "s_lshl_b32 s%d, s%d, 4\ns_add_u32 s%d, s%d, s%d\ns_lshl_b32 s%d, s%d, 2\n" % (sT1, sB, sT0, sPREV, sT1, sT0, sT0) +
             "v_mov_b32 v%d, 1\ns_mov_b64 exec, 1\nbuffer_atomic_add v%d, v%d, s[12:15], s%d offen offset:%d\ns_mov_b64 exec, -1\n%s:" % (t0, t0, vZ, sT0, D_FO, l3))
    def qcvt():
        A("s_nop 1")
        for t in range(3):
            for tt in range(2):
                for h2 in range(2):
                    A("v_cvt_pk_bf16_f32 v%d, v%d, v%d", vS0 + (4*tt + 2*t if t < 2 else 8 + 2*tt) + h2, vACC + 8*t + 4*tt + 2*h2, vACC + 8*t + 4*tt + 2*h2 + 1)
    def qwr(sg, tt):
        return "ds_write_b128 v%d, %s offset:%d\nds_write_b64 v%d, %s offset:%d" % (vQw, v(vS0+4*tt, 4), (2*sg+tt)*6144, vQw2, v(vS0+8+2*tt, 2), (2*sg+tt)*6144)
    lds = [(x, "K") for x in kx + vx]
    fills = {hj: {} for hj in range(8)}
    slots = [(hj, k) for hj in range(1, 6) for k in range(5, 10)]
    for (x, tag), (hj, k) in zip(lds, slots): fills[hj][k] = (x, [(tag, 1)])
    mslots = [(hj, k) for hj in (6, 7) for k in range(4, 10)]
    for x, (hj, k) in zip(mm, mslots):
        lb = A.newlabel()
        fills[hj][k] = ("s_cmp_lt_u32 s%d, s%d\ns_cbranch_scc1 %s\n%s\n%s:" % (sAV, sG1, lb, x, lb), [])
    fills[1][8] = (fills[1][8][0] + "\n" + oflag, fills[1][8][1])
    for hj in (2, 4, 6):
        for tt in range(2): fills[hj][tt] = (qwr(hj//2 - 1, tt), [])
    for hj in range(8):
        if hj == 6:
            A("s_lshl_b32 s%d, s%d, 2\ns_add_u32 s%d, s%d, s%d\ns_add_u32 s%d, s%d, 1", sG1, sUN, sG1, sG1, sW, sG1, sG1)
            wait_flags(A, vFL, t0, sFCH, sG1, 3, cache_sgpr=sAV, once=True)
        src = hj + 1 - 3
        needs = [("X%d" % (src % 8), 1 if src < 0 else 0)]
        if hj == 1: needs.append(("O", 1))
        P.half(hj % 2, True, fills[hj], vm, "X%d" % hj, needs, gap=sGAP if hj == 4 else None)
        if hj % 2 == 1: qcvt()
        ts(hj+1)
    for tt in range(2): A(qwr(3, tt))
    lb = A.newlabel()
    A("s_cmp_ge_u32 s%d, s%d\ns_cbranch_scc1 %s", sAV, sG1, lb)
    wait_flags(A, vFL, t0, sFCH, sG1, 3, cache_sgpr=sAV)
    for x in mm: A(x)
    A.label(lb)
    A("s_waitcnt lgkmcnt(0)\ns_barrier")
    vQ = vACC
    def qrd(qh):
        for k6 in range(6): A("ds_read_b128 %s, v%d offset:%d", v(vQ+4*k6, 4), vQr, 6144*qh + 1024*k6)
    qrd(0)
    A("s_waitcnt vmcnt(0)")
    ts(9)
    for u in range(2):
        for i in range(2): A("v_swap_b32 v%d, v%d", vK + 24 + 4*(3*u+2) + 2 + i, vK + 48 + 4*(3*u+2) + i)
    mf = "v_mfma_f32_16x16x32_bf16 %s, %s, %s, %s"
    for k6 in range(6):
        A("s_waitcnt lgkmcnt(%d)", 5-k6)
        for tl in range(2):
            A(mf, v(vS0+4*tl, 4), v(vK+24*tl+4*k6, 4), v(vQ+4*k6, 4), "0" if k6 == 0 else v(vS0+4*tl, 4))
    qrd(1)
    b0 = lambda S: ["v_pk_add_f32 %s, %s, %s op_sel_hi:[1,0]" % (v(S+2*h2,2), v(S+2*h2,2), v(vB0,2)) for h2 in range(2)]
    dg = lambda S: ["v_pk_add_f32 %s, %s, %s" % (v(S+2*h2,2), v(S+2*h2,2), v(vDG+2*h2,2)) for h2 in range(2)]
    M = []
    for k6 in range(6):
        for tl in range(3):
            M.append(("s_waitcnt lgkmcnt(%d)\n" % (5-k6) if tl == 0 else "") + mf % (v(vS1+4*tl, 4), v(vK+24*tl+4*k6, 4), v(vQ+4*k6, 4), "0" if k6 == 0 else v(vS1+4*tl, 4)))
    for x in softmax_stream(vS0, 8, vPa, vP0a, b0(vS0)+dg(vS0+4), t0, t1, t2, sSC2)[:8]: A(x)
    merge(A, M, softmax_stream(vS0, 8, vPa, vP0a, b0(vS0)+dg(vS0+4), t0, t1, t2, sSC2)[8:])
    oreg = [[vK + 4*t for t in range(12)], [vK + 48 + 4*t for t in range(6)] + [vACC + 4*t for t in range(6)]]
    def pv(qh, vP, vP0):
        o = []
        for t in range(12):
            o.append(mf % (v(oreg[qh][t],4), v(vV+4*t,4), v(vP,4), "0"))
        for t in range(12):
            o.append("v_mfma_f32_16x16x16_bf16 %s, %s, %s, %s" % (v(oreg[qh][t],4), v(vVm+2*t,2), v(vP0,2), v(oreg[qh][t],4)))
        return o
    def ofin(qh, vS):
        o = ["s_nop 7"]
        for kap in range(6):
            a0, a1 = oreg[qh][2*kap], oreg[qh][2*kap+1]
            for i, src in enumerate((a0, a0+2, a1, a1+2)):
                o.append("v_pk_mul_f32 %s, %s, %s op_sel_hi:[1,0]" % (v(src,2), v(src,2), v(vS,2)))
                o.append("v_cvt_pk_bf16_f32 v%d, v%d, v%d" % (a0+i, src, src+1))
            def st(kap=kap, a0=a0):
                A("buffer_store_dwordx4 %s, v%d, %s, s%d offen offset:%d sc1", v(a0,4), vL16, ws, (sOXa if kap < 4 else sT1) if qh == 0 else (sG0 if kap < 4 else sG1), 1024*(kap % 4))
                vm.op("O")
            o.append(st)
        return o
    A("s_add_u32 s%d, s%d, 4096\ns_add_u32 s%d, s%d, %d\ns_add_u32 s%d, s%d, %d", sT1, sOXa, sG0, sOXa, 32*6144, sG1, sOXa, 32*6144+4096)
    merge(A, pv(0, vPa, vP0a), softmax_stream(vS1, 12, vPb, vP0b, b0(vS1)+dg(vS1+8), t0, t1, t2, sSC2))
    ts(10)
    merge(A, pv(1, vPb, vP0b), ofin(0, vS0))
    ts(11)
    for x in ofin(1, vS1):
        if callable(x): x()
        else: A(x)
    vm.resolve()
    if timing:
        ts(12)
        A("s_waitcnt lgkmcnt(0)")
        for i in range(12): A("s_sub_u32 s%d, s%d, s%d\ns_add_u32 s%d, s%d, s%d", sT0, 62+2*i, 60+2*i, 88+i, 88+i, sT0)
    for r_, c_ in ((sKXa, 4*12288), (sKMa, 4*3072), (sOXa, 8*32*6144)):
        A("s_mul_i32 s%d, s%d, %d\ns_add_u32 s%d, s%d, s%d", sT0, sSTR, c_, r_, r_, sT0)
    A("s_mov_b32 s%d, s%d\ns_add_u32 s%d, s%d, s%d", sPREV, sUN, sUN, sUN, sSTR)
    A("s_cmp_eq_u32 s%d, 0\ns_cselect_b32 s%d, %d, %d", sMAT, sT0, nunits, QA_U)
    A("s_cmp_lt_u32 s%d, s%d\ns_cbranch_scc1 L_qa_loop", sUN, sT0)
    A("s_waitcnt vmcnt(0) lgkmcnt(0)\ns_barrier")
    A(oflag.replace(l3, l3+"b"))
    if timing:
        sexpr(A, sT1, DBG_OFF, (256, 2), (64, sW))
        A("s_mov_b64 exec, 1")
        for i in range(12):
            A("v_mov_b32 v1, s%d\nbuffer_store_dword v1, v%d, %s, s%d offen offset:%d\ns_nop 1", 88+i, vZ, ws, sT1, 4*i)
        A("v_mov_b32 v1, 1\nbuffer_store_dword v1, v%d, %s, s%d offen offset:60\ns_mov_b64 exec, -1", vZ, ws, sT1)


def dbg_wait(A, byte_off_sgpr, const_off, need, vz, vt):
    l0 = A.newlabel(); l1 = A.newlabel()
    A.label(l0)
    A("buffer_load_dword v%d, v%d, s[12:15], %s offen offset:%d sc1\ns_waitcnt vmcnt(0)", vt, vz, "s%d" % byte_off_sgpr if byte_off_sgpr is not None else "0", const_off)
    A("v_cmp_gt_u32 vcc, %d, v%d\ns_cbranch_vccz %s\ns_sleep 8\ns_branch %s", need, vt, l1, spin_stub(A, l0))
    A.label(l1)

def emit_wof(A):
    ws = WS
    vD, vTR, vL16, vZ, t0, t1 = 1, 2, 3, 4, 5, 6
    vF = 16
    A("s_load_dwordx2 s[8:9], s[%d:%d], 40", sKA, sKA+1)
    A("s_mov_b32 s10, %d\ns_mov_b32 s11, 0x20000", 6144*1280)
    A("v_lshlrev_b32 v%d, 4, v0\nv_mov_b32 v%d, 0", vL16, vZ)
    A("v_lshrrev_b32 v%d, 2, v0\nv_mul_u32_u24 v%d, 1280, v%d\nv_and_b32 v%d, 3, v0\nv_lshl_add_u32 v%d, v%d, 3, v%d", t0, t0, t0, t1, t0, t1, t0)
    A("s_mul_i32 s%d, s%d, 320\nv_add_u32 v%d, s%d, v%d", sT0, sW, vTR, sT0, t0)
    sexpr(A, sG0, 0, (192*1280, sH), (10240, sW))
    sexpr(A, sL0, 0, (10240, sW))
    sexpr(A, sST0, WOF_OFF, (192*40960, sB), (6*40960, sH), (10240, sW))
    A("s_waitcnt vmcnt(0) lgkmcnt(0)\ns_barrier")
    def dma(k):
        for i in range(10):
            if i % 4 == 0: A("s_add_u32 m0, s%d, %d\ns_add_u32 s%d, s%d, %d", sL0, (k % 3)*40960 + i*1024, sT0, sG0, k*40960 + i*1024)
            A("buffer_load_dwordx4 v%d, s[8:11], s%d offen offset:%d lds", vL16, sT0, (i % 4)*1024)
    dma(0); dma(1)
    for k in range(6):
        A("s_waitcnt vmcnt(%d)\ns_barrier", (10 if k < 5 else 0) + (10 if k > 0 else 0))
        if k + 2 < 6: dma(k+2)
        for ct in range(10):
            for hf in range(2):
                A("ds_read_b64_tr_b16 %s, v%d offset:%d", v(vF + 4*ct + 2*hf, 2), vTR, 16*1280*hf + 32*ct)
        A("v_add_u32 v%d, %d, v%d", vTR, (40960 if k % 3 != 2 else -81920) & 0xffffffff, vTR)
        for ct in range(10):
            if ct % 4 == 0: A("s_add_u32 s%d, s%d, %d", sT0, sST0, k*40960 + ct*1024)
            A("s_waitcnt lgkmcnt(%d)\nbuffer_store_dwordx4 %s, v%d, %s, s%d offen offset:%d sc1", min(15, 18-2*ct), v(vF+4*ct, 4), vL16, ws, sT0, (ct % 4)*1024)
        A("s_nop 1")
    A("s_waitcnt vmcnt(0)\ns_barrier")
    lab = A.newlabel()
    A("s_cmp_lg_u32 s%d, 0\ns_cbranch_scc1 %s", sW, lab)
    A("v_mov_b32 v%d, 1\ns_mov_b64 exec, 1\nbuffer_atomic_add v%d, v%d, s[12:15], 0 offen offset:%d\ns_mov_b64 exec, -1", t0, t0, vZ, D_WOF)
    A.label(lab)

sBLK, sCB, sKS, sSP, sNB, sNB0 = 20, 21, 22, 23, 24, 25
sAO, sAB, sBO0, sBO1, sIT = 34, 35, 36, 37, 38
sXCD, sJJ = 100, 101
def emit_op(A, prof=False):
    ws = WS
    NRA = 6
    vL16, vZ, vAr, vAn, pOUT, t0, t1, t2 = 1, 2, 3, 4, 5, 6, 7, 8
    vAF, vBF, vE = 64, 144, 16
    A("v_lshlrev_b32 v%d, 4, v0\nv_mov_b32 v%d, 0", vL16, vZ)
    A("s_load_dwordx2 s[8:9], s[0:1], 112\ns_mov_b32 s10, %d\ns_mov_b32 s11, 0x20000", 2048*2560)
    A("v_and_b32 v%d, 15, v0\nv_mul_u32_u24 v%d, 2560, v%d\nv_bfe_u32 v%d, v0, 4, 1\nv_lshl_add_u32 v%d, v%d, 5, v%d\nv_lshrrev_b32 v%d, 5, v0\nv_lshl_add_u32 v%d, v%d, 4, v%d", t0, t0, t0, t1, t0, t1, t0, t1, pOUT, t1, t0)
    if prof: A("s_mov_b32 s95, 0")
    dbg_wait(A, None, D_WOF, 64, vZ, t0)
    A("s_lshr_b32 s%d, s%d, 1\ns_and_b32 s%d, s%d, 1", sT1, sW, sT2, sW)
    sexpr(A, sG0, WOF_OFF, (40960, sT1), (5120, sT2))
    sexpr(A, sL0, 0, (5120, sW))
    A("s_cmp_eq_u32 s%d, 0\ns_cbranch_scc1 L_op_next", sIT)
    A("s_bfe_u32 s%d, s%d, 0x10001\ns_and_b32 s%d, s%d, 1\ns_lshr_b32 s%d, s%d, 3\ns_bfe_u32 s%d, s%d, 0x20001", sB, sXCD, sT1, sXCD, sT2, sJJ, sCB, sJJ)
    sexpr(A, sBLK, 0, (4, sT1), (1, sT2))
    A("s_mov_b32 s%d, 0\ns_mov_b32 s%d, 1\ns_mov_b32 s%d, 24\ns_branch L_op_go", sKS, sSP, sNB)
    A.label("L_op_next")
    A("s_waitcnt vmcnt(0) lgkmcnt(0)\ns_barrier")
    if prof:
        A("s_memrealtime s[96:97]\ns_waitcnt lgkmcnt(0)\ns_mov_b64 exec, 1\nv_mov_b32 v%d, s96\ns_min_u32 s95, s95, 9", t0)
        sexpr(A, 98, DBG_OFF+131072+24, (256, 2), (64, sW), (4, 95), tmp=99)
        A("buffer_store_dword v%d, v%d, %s, s98 offen\ns_mov_b64 exec, -1\ns_add_u32 s95, s95, 1", t0, vZ, ws)
    lab = A.newlabel()
    A("s_cmp_lg_u32 s%d, 0\ns_cbranch_scc1 %s", sW, lab)
    A("s_lshl_b32 s%d, s%d, 2\ns_and_b32 s29, s29, 15\nv_mov_b32 v%d, 1\ns_mov_b64 exec, 1\nbuffer_atomic_add v%d, v%d, s[12:15], s%d offen offset:%d sc0\nv_mov_b32 v%d, %d\ns_waitcnt vmcnt(0)\nds_write_b32 v%d, v%d\ns_waitcnt lgkmcnt(0)\ns_mov_b64 exec, -1", sT0, sXCD, t0, t0, vZ, sT0, D_Q8, t1, NRA*HB, t1, t0)
    A.label(lab)
    A("s_barrier\nv_mov_b32 v%d, %d\nds_read_b32 v%d, v%d\ns_waitcnt lgkmcnt(0)\nv_readfirstlane_b32 s%d, v%d", t1, NRA*HB, t0, t1, sIT, t0)
    A("s_nop 3\ns_cmp_ge_u32 s%d, 80\ns_cbranch_scc1 L_op_done", sIT)
    A("s_and_b32 s%d, s%d, 3\ns_and_b32 s%d, s%d, 3\ns_mov_b32 s%d, 4\ns_mov_b32 s%d, 6", sKS, sXCD, sCB, sIT, sSP, sNB)
    A("s_bfe_u32 s%d, s%d, 0x10004\ns_bfe_u32 s%d, s%d, 0x20002\ns_add_u32 s%d, s%d, 8", sB, sIT, sBLK, sIT, sBLK, sBLK)
    A("s_cmp_lt_u32 s%d, 32\ns_cbranch_scc1 L_op_dec", sIT)
    A("s_bfe_u32 s%d, s%d, 0x10003\ns_bfe_u32 s%d, s%d, 0x10002\ns_add_u32 s%d, s%d, 12", sB, sIT, sBLK, sIT, sBLK, sBLK)
    A("s_cmp_lt_u32 s%d, 48\ns_cbranch_scc1 L_op_dec", sIT)
    A("s_sub_u32 s%d, s%d, 48\ns_lshr_b32 s%d, s%d, 4\ns_add_u32 s%d, s%d, 14\ns_bfe_u32 s%d, s%d, 0x10003\ns_bfe_u32 s%d, s%d, 0x20001", sT1, sIT, sBLK, sT1, sBLK, sBLK, sB, sT1, sCB, sT1)
    A("s_and_b32 s%d, s%d, 1\ns_lshl_b32 s%d, s%d, 1\ns_add_u32 s%d, s%d, s%d\ns_mov_b32 s%d, 8\ns_mov_b32 s%d, 3", sT1, sT1, sKS, sKS, sKS, sKS, sT1, sSP, sNB)
    A.label("L_op_dec")
    sexpr(A, sIT, (-8*32) & 0xffffffff, (256, sB), (32, sBLK), (8, sCB), (1, sKS))
    A.label("L_op_go")
    A("s_mov_b32 s%d, s%d", sNB0, sNB)
    A("s_mul_i32 s%d, s%d, s%d\ns_lshl_b32 s%d, s%d, 3", sT2, sKS, sNB, sT2, sT2)
    sexpr(A, sAO, 0, (1, sG0), (192*40960, sB), (40960, sT2), (10240, sCB))
    sexpr(A, sBO0, OX_OFF, (128*196608, sB), (8*196608, sBLK), (2*196608, sW), (1024, sT2))
    A("s_add_u32 s%d, s%d, 196608\ns_mov_b32 s%d, s%d", sBO1, sBO0, sAB, sL0)
    def adma():
        o = []
        for i in range(5):
            t = ""
            if i == 0: t = "s_mov_b32 m0, s%d\ns_nop 0\n" % sAB
            if i == 4: t = "s_add_u32 m0, s%d, 4096\ns_add_u32 s%d, s%d, 4096\n" % (sAB, sT0, sAO)
            t += "buffer_load_dwordx4 v%d, %s, s%d offen offset:%d sc1 lds" % (vL16, ws, sAO if i < 4 else sT0, 1024*(i % 4))
            if i == 4:
                t += "\ns_add_u32 s%d, s%d, %d\ns_add_u32 s%d, s%d, %d" % (sAO, sAO, 81920, sAB, sAB, HB)
                t += "\ns_add_u32 s%d, s%d, %d\ns_cmp_ge_u32 s%d, s%d\ns_cselect_b32 s%d, s%d, s%d" % (sT0, sL0, NRA*HB, sAB, sT0, sAB, sL0, sAB)
            o.append(t)
        return o
    def bld(slot):
        o = []
        for ks in range(2):
            for tt in range(2):
                o.append("buffer_load_dwordx4 %s, v%d, %s, s%d offen offset:%d sc1" % (v(vBF + 16*slot + 8*ks + 4*tt, 4), vL16, ws, sBO0 if tt == 0 else sBO1, 1024*ks))
        o[-1] += "\ns_add_u32 s%d, s%d, 2048\ns_add_u32 s%d, s%d, 2048" % (sBO0, sBO0, sBO1, sBO1)
        return o
    for st in range(NRA-2):
        for x in adma(): A(x)
    sexpr(A, sT1, 0, (64, sB), (4, sBLK))
    dbg_wait(A, sT1, D_FO, 32, vZ, t0)
    for st in range(3):
        for x in bld(st): A(x)
    for r in range(80): A("v_accvgpr_write_b32 a%d, 0", r)
    A("v_mov_b32 v%d, v%d\nv_add_u32 v%d, %d, v%d", vAr, vL16, vAn, HB, vL16)
    A("s_waitcnt vmcnt(0)\ns_barrier")
    def ard(ks, ct, reg): A("ds_read_b128 %s, v%d offset:%d", v(vAF + 40*ks + 4*ct, 4), reg, 10240*ks + 1024*ct)
    for ct in range(10): ard(0, ct, vAr)
    A.label("L_op_loop")
    vm = VM(A)
    for st in range(4):
        dm = adma(); bl = bld((st+3) % 4)
        for ks in range(2):
            if ks == 1:
                vm.wait([("A%d" % ((st+1) % 4), 1 if st < 3 else 0)])
                A("s_barrier")
            else:
                vm.wait([("B%d" % ((st+1) % 4), 1 if st < 3 else 0)])
            for ct in range(10):
                A("s_waitcnt lgkmcnt(9)")
                for tt in range(2):
                    A("v_mfma_f32_16x16x32_bf16 %s, %s, %s, %s", a(8*ct+4*tt, 4), v(vAF + 40*ks + 4*ct, 4), v(vBF + 16*st + 8*ks + 4*tt, 4), a(8*ct+4*tt, 4))
                    if tt == 0: ard(1-ks, ct, vAr if ks == 0 else vAn)
                if ks == 0 and ct % 2 == 0: A(dm[ct//2]); vm.op("A%d" % st)
                if ks == 1 and ct % 2 == 1 and ct < 8: A(bl[ct//2]); vm.op("B%d" % st)
        A("v_mov_b32 v%d, v%d\nv_add_u32 v%d, %d, v%d\nv_cmp_le_u32 vcc, %d, v%d\nv_subrev_u32 v%d, %d, v%d\nv_cndmask_b32 v%d, v%d, v%d, vcc", vAr, vAn, vAn, HB, vAn, NRA*HB, vAn, t0, NRA*HB, vAn, vAn, vAn, t0)
    vm.resolve()
    A("s_sub_u32 s%d, s%d, 1\ns_cmp_lg_u32 s%d, 0\ns_cbranch_scc1 L_op_loop", sNB, sNB, sNB)
    A("s_nop 7")
    for r in range(80): A("v_accvgpr_read_b32 v%d, a%d", vAF + r, r)
    A("s_cmp_eq_u32 s%d, 1\ns_cbranch_scc1 L_op_out", sSP)
    sexpr(A, sT1, PART_OFF, (81920, sIT), (20480, sW))
    for i in range(20):
        if i % 4 == 0: A("s_add_u32 s%d, s%d, %d", sT0, sT1, 1024*i)
        A("buffer_store_dwordx4 %s, v%d, %s, s%d offen offset:%d sc1", v(vAF+4*i, 4), vL16, ws, sT0, 1024*(i % 4))
    A("s_waitcnt vmcnt(0)\ns_barrier")
    lab = A.newlabel()
    sexpr(A, sT2, D_SK - 8*4, (4, sBLK))
    sexpr(A, sT3, 0, (16, sB), (4, sCB))
    A("s_cmp_lg_u32 s%d, 0\ns_cbranch_scc1 %s", sW, lab)
    A("s_lshl_b32 s%d, 1, s%d\nv_mov_b32 v%d, s%d\ns_mov_b64 exec, 1\nbuffer_atomic_add v%d, v%d, s[12:15], s%d offen sc0\nv_mov_b32 v%d, %d\ns_waitcnt vmcnt(0)\nds_write_b32 v%d, v%d\ns_waitcnt lgkmcnt(0)\ns_mov_b64 exec, -1", sT0, sT3, t0, sT0, t0, vZ, sT2, t1, NRA*HB+4, t1, t0)
    A.label(lab)
    A("s_barrier")
    A("s_cmp_eq_u32 s%d, 8\ns_cbranch_scc1 L_op_w", sSP)
    A("v_mov_b32 v%d, %d\nds_read_b32 v%d, v%d\ns_waitcnt lgkmcnt(0)\nv_readfirstlane_b32 s%d, v%d", t1, NRA*HB+4, t0, t1, sT0, t0)
    A("s_nop 3\ns_lshr_b32 s%d, s%d, s%d\ns_and_b32 s%d, s%d, 15\ns_cmp_lg_u32 s%d, 3\ns_cbranch_scc1 L_op_next", sT0, sT0, sT3, sT0, sT0, sT0)
    A("s_mul_i32 s%d, s%d, 81920\ns_sub_u32 s%d, s%d, s%d\ns_mov_b32 s%d, 0", sT0, sKS, sT1, sT1, sT0, sT2)
    A.label("L_op_r4")
    lb = A.newlabel()
    A("s_cmp_eq_u32 s%d, s%d\ns_cbranch_scc1 %s", sT2, sKS, lb)
    for i in range(20):
        if i % 4 == 0: A("s_add_u32 s%d, s%d, %d", sT0, sT1, 1024*i)
        A("buffer_load_dwordx4 %s, v%d, %s, s%d offen offset:%d sc1", v(vBF+4*i, 4), vL16, ws, sT0, 1024*(i % 4))
    for i in range(20):
        A("s_waitcnt vmcnt(%d)", 19-i)
        for h2 in range(2): A("v_pk_add_f32 %s, %s, %s", v(vAF+4*i+2*h2, 2), v(vAF+4*i+2*h2, 2), v(vBF+4*i+2*h2, 2))
    A.label(lb)
    A("s_add_u32 s%d, s%d, 81920\ns_add_u32 s%d, s%d, 1\ns_cmp_lt_u32 s%d, 4\ns_cbranch_scc1 L_op_r4\ns_branch L_op_out", sT1, sT1, sT2, sT2, sT2)
    A.label("L_op_w")
    A("buffer_load_dword v%d, v%d, s[12:15], s%d offen sc1\ns_waitcnt vmcnt(0)", t0, vZ, sT2)
    A("v_lshrrev_b32 v%d, s%d, v%d\nv_and_b32 v%d, 15, v%d\nv_cmp_gt_u32 vcc, s%d, v%d", t0, sT3, t0, t0, t0, sSP, t0)
    A("s_cbranch_vccz L_op_w1\ns_sleep 4\ns_branch %s", spin_stub(A, "L_op_w"))
    A.label("L_op_w1")
    A("s_mul_i32 s%d, s%d, 5\ns_add_u32 s%d, s%d, 5\ns_add_u32 s%d, s%d, s%d", sAO, sKS, sAB, sAO, sAO, sAO, sW)
    A.label("L_op_w2")
    sexpr(A, sBO0, PART_OFF, (81920, sIT))
    A("s_mul_i32 s%d, s%d, 81920\ns_sub_u32 s%d, s%d, s%d", sT0, sKS, sBO0, sBO0, sT0)
    A.label("L_op_red")
    A("s_cmp_ge_u32 s%d, s%d\ns_cbranch_scc1 L_op_next", sAO, sAB)
    A("s_mul_i32 s%d, s%d, 26\ns_lshr_b32 s%d, s%d, 8\ns_mul_i32 s%d, s%d, 10\ns_sub_u32 s%d, s%d, s%d", sT1, sAO, sT1, sT1, sT2, sT1, sT2, sAO, sT2)
    A("s_lshr_b32 s%d, s%d, 1\ns_and_b32 s%d, s%d, 1", sT3, sT2, sT2, sT2)
    sexpr(A, sBO1, 0, (1, sBO0), (20480, sT1), (4096, sT3), (1024, sT2))
    for j in range(8):
        A("s_add_u32 s%d, s%d, %d", sT0, sBO1, j*81920)
        for i in range(2): A("buffer_load_dwordx4 %s, v%d, %s, s%d offen offset:%d sc1", v(vAF+8*j+4*i, 4), vL16, ws, sT0, 2048*i)
    sexpr(A, sT1, 0, (32*2560, sT1), (16*2560, sT2), (64, sT3), (128*2560, sBLK), (1280, sB), (320, sCB))
    for j in range(1, 8):
        A("s_waitcnt vmcnt(%d)", 14-2*j)
        for h2 in range(4): A("v_pk_add_f32 %s, %s, %s", v(vAF+2*h2, 2), v(vAF+2*h2, 2), v(vAF+8*j+2*h2, 2))
    for i in range(4): A("v_cvt_pk_bf16_f32 v%d, v%d, v%d", vE+i, vAF+2*i, vAF+2*i+1)
    A("s_nop 1\nv_permlane16_swap_b32 v%d, v%d\nv_permlane16_swap_b32 v%d, v%d", vE, vE+2, vE+1, vE+3)
    A("buffer_store_dwordx4 %s, v%d, s[8:11], s%d offen", v(vE, 4), pOUT, sT1)
    A("s_add_u32 s%d, s%d, 4\ns_branch L_op_red", sAO, sAO)
    A.label("L_op_out")
    sexpr(A, sT1, 0, (128*2560, sBLK), (32*2560, sW), (1280, sB), (320, sCB))
    A("s_add_u32 s%d, s%d, %d", sT2, sT1, 16*2560)
    for cp in range(5):
        for tt in range(2):
            e = vE + 8*(cp % 2) + 4*tt
            x0, x1 = vAF + 8*(2*cp) + 4*tt, vAF + 8*(2*cp+1) + 4*tt
            A("v_cvt_pk_bf16_f32 v%d, v%d, v%d\nv_cvt_pk_bf16_f32 v%d, v%d, v%d", e, x0, x0+1, e+1, x0+2, x0+3)
            A("v_cvt_pk_bf16_f32 v%d, v%d, v%d\nv_cvt_pk_bf16_f32 v%d, v%d, v%d", e+2, x1, x1+1, e+3, x1+2, x1+3)
            A("s_nop 1\nv_permlane16_swap_b32 v%d, v%d\nv_permlane16_swap_b32 v%d, v%d", e, e+2, e+1, e+3)
            A("buffer_store_dwordx4 %s, v%d, s[8:11], s%d offen offset:%d", v(e, 4), pOUT, sT1 if tt == 0 else sT2, 64*cp)
    A("s_branch L_op_next")
    A.label("L_op_done")

def main_op():
    import chain
    A = Asm(); K = "op_kernel"
    chain.emit_common_prologue(A)
    A("s_cmp_lt_u32 s%d, 4\ns_cbranch_scc1 L_end", sT3)
    A("s_cmp_ge_u32 s%d, 32\ns_cbranch_scc1 L_end", chain.sJ)
    A("s_bfe_u32 s%d, s%d, 0x10001\ns_and_b32 s%d, s%d, 1\ns_lshr_b32 s%d, s%d, 1", sB, sT3, sT1, sT3, sT2, chain.sJ)
    sexpr(A, sH, 0, (16, sT1), (1, sT2))
    A("s_and_b32 s%d, s%d, 1\ns_cbranch_scc1 L_end", sMAT, chain.sJ)
    A("s_mul_i32 s%d, s%d, 56\ns_add_u32 s%d, s0, s%d\ns_addc_u32 s%d, s1, 0", sT0, sB, sKA, sT0, sKA+1)
    A("v_mov_b32 v1, 1\nv_lshlrev_b32 v2, 2, v0\ns_lshl_b32 s%d, s%d, 6\ns_mov_b64 exec, 0xffff\ns_cmp_lg_u32 s%d, 0\ns_cbranch_scc1 L_t1\nbuffer_atomic_add v1, v2, s[12:15], s%d offen offset:%d\nL_t1:\ns_mov_b64 exec, -1", sT0, sB, sW, sT0, D_FO)
    A("s_memrealtime s[92:93]\ns_memtime s[96:97]")
    emit_wof(A)
    A("s_memrealtime s[90:91]")
    emit_op(A)
    A("s_waitcnt lgkmcnt(0)\ns_sub_u32 s90, s90, s92\ns_mov_b64 exec, 1\nv_mov_b32 v1, s90\nv_mov_b32 v2, 60\nbuffer_atomic_umax v1, v2, s[12:15], 0 offen\ns_nop 1")
    A("s_memtime s[98:99]\ns_waitcnt lgkmcnt(0)\ns_sub_u32 s98, s98, s96\ns_mov_b64 exec, 1\nv_mov_b32 v1, s98\nv_mov_b32 v2, 56\nbuffer_atomic_umax v1, v2, s[12:15], 0 offen\ns_nop 1")
    A("s_memrealtime s[94:95]\ns_waitcnt lgkmcnt(0)\ns_sub_u32 s94, s94, s92\ns_mov_b64 exec, 1\nv_mov_b32 v1, s94\nv_mov_b32 v2, 52\nbuffer_atomic_umax v1, v2, s[12:15], 0 offen")
    A.label("L_end"); A("s_endpgm")
    chain.emit_stubs(A, "L_end")
    open("op.s", "w").write(build_file([(K, 256, 256, 163840)], [(K, A, 512, 102, 256)]))

def main_qa():
    import chain
    A = Asm(); K = "qa_kernel"
    chain.emit_common_prologue(A)
    A("s_cmp_lt_u32 s%d, 4\ns_cbranch_scc1 L_end", sT3)
    A("s_cmp_ge_u32 s%d, 32\ns_cbranch_scc1 L_end", chain.sJ)
    A("s_bfe_u32 s%d, s%d, 0x10001\ns_and_b32 s%d, s%d, 1\ns_lshr_b32 s%d, s%d, 1", sB, sT3, sT1, sT3, sT2, chain.sJ)
    sexpr(A, sH, 0, (16, sT1), (1, sT2))
    A("s_and_b32 s%d, s%d, 1", sMAT, chain.sJ)
    A("s_memrealtime s[52:53]\ns_memtime s[54:55]")
    emit_qa(A, timing=True)
    A("s_mov_b64 s[92:93], s[52:53]\ns_mov_b64 s[96:97], s[54:55]")
    A("s_memtime s[98:99]\ns_waitcnt lgkmcnt(0)\ns_sub_u32 s98, s98, s96\ns_mov_b64 exec, 1\nv_mov_b32 v1, s98\nv_mov_b32 v2, 52\nbuffer_atomic_umax v1, v2, s[12:15], 0 offen\ns_nop 1")
    A("s_memrealtime s[94:95]\ns_waitcnt lgkmcnt(0)\ns_sub_u32 s94, s94, s92\ns_mov_b64 exec, 1\nv_mov_b32 v1, s94\nv_mov_b32 v2, 48\nbuffer_atomic_umax v1, v2, s[12:15], 0 offen")
    A.label("L_end"); A("s_endpgm")
    chain.emit_stubs(A, "L_end")
    open("qa.s", "w").write(build_file([(K, 256, 256, 163840)], [(K, A, 512, 102, 256)]))

def main(sfx):
    import chain
    A = Asm(); K = "kv_kernel"
    chain.emit_common_prologue(A)
    A("s_cmp_lt_u32 s%d, 4\ns_cbranch_scc1 L_end", sT3)
    A("s_cmp_ge_u32 s%d, 32\ns_cbranch_scc1 L_end", chain.sJ)
    A("s_bfe_u32 s%d, s%d, 0x10001\ns_and_b32 s%d, s%d, 1\ns_lshr_b32 s%d, s%d, 1", sB, sT3, sT1, sT3, sT2, chain.sJ)
    sexpr(A, sH, 0, (16, sT1), (1, sT2))
    A("s_and_b32 s%d, s%d, 1", sMAT, chain.sJ)
    A("s_memrealtime s[92:93]\ns_memtime s[96:97]")
    emit_kv(A)
    A("s_memtime s[98:99]\ns_waitcnt lgkmcnt(0)\ns_sub_u32 s98, s98, s96\ns_mov_b64 exec, 1\nv_mov_b32 v1, s98\nv_mov_b32 v2, 68\nbuffer_atomic_umax v1, v2, s[12:15], 0 offen\ns_nop 1")
    A("s_memrealtime s[94:95]\ns_waitcnt lgkmcnt(0)\ns_sub_u32 s94, s94, s92\ns_mov_b64 exec, 1\nv_mov_b32 v1, s94\nv_mov_b32 v2, 64\nbuffer_atomic_umax v1, v2, s[12:15], 0 offen\ns_lshl_b32 s94, s18, 2\ns_add_u32 s94, s94, 72\nv_mov_b32 v2, s94\nbuffer_atomic_umax v1, v2, s[12:15], 0 offen")
    A.label("L_end"); A("s_endpgm")
    chain.emit_stubs(A, "L_end")
    txt = build_file([(K, 256, 256, 163840)], [(K, A, 512, 102, 256)])
    open("kv%s.s" % sfx, "w").write(txt)
    import re
    open("kv_plain.s", "w").write(re.sub(r"(buffer_store_dwordx[24] .*) sc1", r"\1", txt))
    open("kv_nt.s", "w").write(re.sub(r"(buffer_store_dwordx[24] .*) sc1", r"\1 nt", txt))
    open("kv_nost.s", "w").write(re.sub(r"buffer_store_dwordx[24] .*", r"s_nop 0", txt))
    open("kv_nodma%s.s" % sfx, "w").write(re.sub(r"buffer_load_dwordx4 v1, s\[8:11\], s34 .*", r"s_nop 0", re.sub(r"buffer_store_dwordx[24] .*", r"s_nop 0", txt)))

if __name__ == "__main__":
    main("")
    main_qa()
```

```python
import struct, math
from asmlib import *
from layout import *

sW, sB, sX, sJ = 16, 17, 18, 19
sH, sU, sGRP, sM = 20, 21, 22, 23
sFCHo, sFKVo, sNEED = 28, 42, 40
sSTEP, sSLOTI, sPAR, sME = 24, 25, 26, 27
sPW = 25
sT0, sT1, sT2, sT3 = 29, 30, 31, 32
sRW = 33
sKXO, sVXO = 34, 35
sKMO, sVMO = 36, 37
sRB = 38
sSCL = 39
sWM1 = 40
sVB = 41
sAVAIL = 43
sEVEN = 44
sDELTA, sKVB = 46, 47
(oSCst, oSCld, oPBst, oPBst2, oPB0, oPB1, oPB2, oPB3, oXPst, oXPstr, oXPl0, oXPlB, oXPr0, oXPrB, sONEL, sONEH) = range(48, 64)
sPTR = 64
sTS = 64
sSPIN = 3
SPIN_LIMIT = 100000
sKA = 88
WS = "s[4:7]"

def f32bits(x): return struct.unpack("<I", struct.pack("<f", x))[0]

def sexpr(A, dst, const, *terms, tmp=sT0):
    first = True
    for (coef, reg) in terms:
        tgt = dst if first else tmp
        if coef == 1:
            if first: A("s_mov_b32 s%d, s%d", dst, reg)
            else: A("s_add_u32 s%d, s%d, s%d", dst, dst, reg)
        else:
            A("s_mul_i32 s%d, s%d, %d", tgt, reg, coef)
            if not first: A("s_add_u32 s%d, s%d, s%d", dst, dst, tmp)
        first = False
    if first: A("s_mov_b32 s%d, %d", dst, const)
    elif const: A("s_add_u32 s%d, s%d, %d", dst, dst, const)

def emit_common_prologue(A):
    A("s_cmp_ge_u32 s2, 256\ns_cbranch_scc1 L_end")
    A("s_mov_b32 s%d, 0", sSPIN)
    A("s_load_dwordx2 s[4:5], s[0:1], 128")
    A("s_load_dwordx2 s[12:13], s[0:1], 120")
    A("v_lshrrev_b32 v1, 6, v0")
    A("v_and_b32 v0, 63, v0")
    A("s_getreg_b32 s%d, hwreg(HW_REG_XCC_ID)", sT3)
    A("v_readfirstlane_b32 s%d, v1", sW)
    A("s_and_b32 s%d, s%d, 7", sT3, sT3)
    A("s_mov_b32 s6, 0x10000000\ns_mov_b32 s7, 0x20000")
    A("s_mov_b32 s14, 256\ns_mov_b32 s15, 0x20000")
    A("s_waitcnt lgkmcnt(0)")
    A("s_cmp_lg_u32 s%d, 0\ns_cbranch_scc1 L_tk_done", sW)
    A("s_mov_b64 exec, 1")
    A("s_lshl_b32 s%d, s%d, 2", sT0, sT3)
    A("v_mov_b32 v1, 1\nv_mov_b32 v2, s%d\nv_mov_b32 v3, %d", sT0, L_BCAST)
    A("buffer_atomic_add v1, v2, s[12:15], 0 offen sc0")
    A("s_waitcnt vmcnt(0)")
    A("ds_write_b32 v3, v1")
    A("s_waitcnt lgkmcnt(0)")
    A("s_mov_b64 exec, -1")
    A.label("L_tk_done")
    A("s_barrier")
    A("v_mov_b32 v3, %d\nds_read_b32 v1, v3\ns_waitcnt lgkmcnt(0)", L_BCAST)
    A("v_readfirstlane_b32 s%d, v1", sJ)

class VAlloc:
    def __init__(self, start, end):
        self.n = start; self.end = end
    def __call__(self, cnt=1, align=1):
        self.n = (self.n + align - 1)//align*align
        r = self.n; self.n += cnt
        assert self.n <= self.end, "out of vgprs"
        return r

def spin_stub(A, lab_retry):
    st = A.newlabel("L_spin")
    A.stubs.append((st, lab_retry))
    return st

def emit_stubs(A, lab_abort):
    for st, lab in A.stubs:
        A.label(st)
        A("s_add_u32 s%d, s%d, 1\ns_cmp_le_u32 s%d, %d\ns_cbranch_scc1 %s", sSPIN, sSPIN, sSPIN, SPIN_LIMIT, lab)
        A("s_movk_i32 s%d, %d\ns_branch %s    ; %s", sSPIN, len([1 for x in A.lines if x.startswith("L_spin")]), lab_abort, lab)
    A.stubs = []

def wait_flags(A, voff, vt, soff, need_sgpr, lanes_mask, cache_sgpr=None, once=False):
    l0 = A.newlabel(); l1 = A.newlabel()
    if cache_sgpr is not None:
        A("s_cmp_ge_u32 s%d, s%d\ns_cbranch_scc1 %s", cache_sgpr, need_sgpr, l1)
    A("s_mov_b64 exec, %d", lanes_mask)
    A.label(l0)
    A("buffer_load_dword v%d, v%d, %s, s%d offen sc1\ns_waitcnt vmcnt(0)", vt, voff, WS, soff)
    if not once:
        A("v_cmp_gt_u32 vcc, s%d, v%d", need_sgpr, vt)
        l2 = A.newlabel()
        A("s_cbranch_vccz %s\ns_sleep 4\ns_branch %s", l2, spin_stub(A, l0))
        A.label(l2)
    if cache_sgpr is not None:
        A("v_readlane_b32 s%d, v%d, 0\nv_readlane_b32 s%d, v%d, 1\ns_nop 3\ns_min_u32 s%d, s%d, s%d", cache_sgpr, vt, sT0, vt, cache_sgpr, cache_sgpr, sT0)
    A("s_mov_b64 exec, -1")
    A.label(l1)

def emit_abort(A):
    A("s_mov_b64 exec, 1\nv_mov_b32 v1, 1\nv_mov_b32 v2, 60\nbuffer_atomic_add v1, v2, s[12:15], 0 offen")
    A("s_lshl_b32 s%d, s%d, 8\ns_or_b32 s%d, s%d, s%d\ns_lshl_b32 s%d, s%d, 8\ns_or_b32 s%d, s%d, s%d\ns_lshl_b32 s%d, s%d, 4\ns_or_b32 s%d, s%d, s%d", sT0, sSTEP, sSPIN, sSPIN, sT0, sSPIN, sSPIN, sSPIN, sSPIN, sME, sSPIN, sSPIN, sSPIN, sSPIN, sW)
    A("s_not_b32 s%d, s%d\nv_mov_b32 v3, s%d\nv_mov_b32 v2, 56\nbuffer_atomic_umax v3, v2, s[12:15], 0 offen\ns_endpgm", sSPIN, sSPIN, sSPIN)

def tagcheck(A, regs, vt, lab_retry):
    lab_retry = spin_stub(A, lab_retry)
    def tree(op):
        r = list(regs)
        A(op % (vt, r[0], r[1], r[2])); i = 3
        while i + 1 < len(r):
            A(op % (vt, vt, r[i], r[i+1])); i += 2
        if i < len(r):
            A(op % (vt, vt, r[i], r[i]))
    l0 = A.newlabel(); l1 = A.newlabel()
    A("s_cmp_eq_u32 s%d, 0\ns_cbranch_scc1 %s", sPAR, l0)
    tree("v_bitop3_b32 v%d, v%d, v%d, v%d bitop3:0x80")
    A("v_and_b32 v%d, 1, v%d\nv_cmp_ne_u32 vcc, 1, v%d\ns_cbranch_vccnz %s\ns_branch %s", vt, vt, vt, lab_retry, l1)
    A.label(l0)
    tree("v_or3_b32 v%d, v%d, v%d, v%d")
    A("v_and_b32 v%d, 1, v%d\nv_cmp_ne_u32 vcc, 0, v%d\ns_cbranch_vccnz %s", vt, vt, vt, lab_retry)
    A.label(l1)

def emit_chain(A, timing=False, nsteps=64, opt={}):
    V = VAlloc(1, 152)
    vAmem = V()
    vBias = V(1, 2)
    vL16 = V()
    vT = [V() for _ in range(8)]
    assert vT[0] % 4 == 0
    t0, t1, t2, t3, t4, t5, vN, vG = vT
    vSC = vT[4]
    vSEL = V(4, 4)
    vIdxQK, vIdxWo = V(), V()
    vQKw, vQrd, vKrd = V(), V(), V()
    vWVrd = vKrd
    pSC, pVMst, pA, pB, pPB, pXP = V(), V(), V(), V(), V(), V()
    pL8 = pB
    pKM = pVMst
    vVMIr, vKVr, pLT = V(), V(), V()
    vMEMw, vMEMw4 = V(), V()
    vAF = V(40, 4)
    vVX = V(24, 4)
    vBUF = V(24, 4)
    vKX = V(12, 4)
    vACC = V(20, 4)
    assert vKX == vBUF+24 and vACC == vKX+12
    NVB = 6
    WO_V = 152
    def wo_oct(i): return a(240 + 8*i, 8) if i < 2 else v(WO_V + 8*(i-2), 8)
    def wo_reg(i, r): return a(240 + 8*i + r) if i < 2 else v(WO_V + 8*(i-2) + r)
    ws = WS
    def ts(i):
        if timing and not opt.get("os"): A("s_mem%stime s[%d:%d]", "real" if opt.get("rt") else "", sTS+2*i, sTS+2*i+1)
    def adv(*regs):
        for r in regs: A("s_add_u32 s%d, s%d, s%d", r, r, sDELTA)

    def advr(*regs):
        if opt.get("ringr"): adv(*regs)
        else:
            for r in regs: A("s_add_u32 s%d, s%d, 20480", r, r)
    def stamp(i):
        if not timing: return
        A("s_memrealtime s[96:97]\ns_waitcnt lgkmcnt(0)\ns_mov_b64 exec, 1\nv_mov_b32 v%d, s96\nv_mov_b32 v%d, 0", vACC+18, vACC+19)
        sexpr(A, 98, DBG_OFF+65536, (256, 2), (64, sW), tmp=99)
        A("buffer_store_dword v%d, v%d, %s, s98 offen offset:%d\ns_mov_b64 exec, -1", vACC+18, vACC+19, ws, 4*i)
    stamp(0)
    A("s_lshr_b32 s%d, s%d, 1", sT1, sJ); sexpr(A, sH, 0, (16, sX), (1, sT1))
    A("s_and_b32 s%d, s%d, 1", sU, sJ)
    sexpr(A, sRW, 0, (32, sW), (1, sJ))
    sexpr(A, sRB, RING_OFF, (RING*SLOT, sB))
    sexpr(A, sME, 0, (32, sX), (1, sJ))
    A("s_max_u32 s%d, s%d, 1\ns_sub_u32 s%d, s%d, 1", sWM1, sW, sWM1, sWM1)
    A("s_mov_b32 s%d, 0x%08x", sSCL, f32bits((192 ** -0.5) * math.log2(math.e)))
    A("s_mov_b32 s%d, 0x55555555\ns_mov_b32 s%d, 0x55555555", sEVEN, sEVEN+1)
    A("s_mul_i32 s%d, s%d, 56", sT0, sB)
    A("s_add_u32 s%d, s0, s%d\ns_addc_u32 s%d, s1, 0", sKA, sT0, sKA+1)
    A("s_load_dwordx2 s[%d:%d], s[%d:%d], 8", sPTR, sPTR+1, sKA, sKA+1)
    A("s_load_dwordx4 s[%d:%d], s[%d:%d], 16", sPTR+4, sPTR+7, sKA, sKA+1)
    A("s_load_dwordx4 s[%d:%d], s[%d:%d], 32", sPTR+8, sPTR+11, sKA, sKA+1)
    sexpr(A, oSCst, 0, (1, sRB), (REC, sME), (512, sW))
    A("s_xor_b32 s%d, s%d, 1", sT1, sME)
    sexpr(A, oSCld, 0, (1, sRB), (REC, sT1))
    sexpr(A, oPBst, R_PB, (1, sRB), (10240, sME), (2048, sW))
    sexpr(A, oPBst2, R_PB+8192, (1, sRB), (10240, sME), (512, sW))
    sexpr(A, oPB0, R_PB, (1, sRB), (32*10240, sX), (128, sRW))
    for i in (1, 2, 3): sexpr(A, oPB0+i, i*8*10240, (1, oPB0))
    sexpr(A, oXPst, R_XPL, (1, sRB), (10240, sX), (128, sRW))
    if opt.get("ringr"): sexpr(A, oXPstr, R_XPR-R_XPL, (1, oXPst))
    else: sexpr(A, oXPstr, XR_OFF, (64*20480, sB), (10240, sX), (128, sRW))
    sexpr(A, oXPl0, R_XPL, (1, sRB), (10240, sX), (2048, sW))
    sexpr(A, oXPlB, R_XPL+8192, (1, sRB), (10240, sX), (512, sW))
    A("s_xor_b32 s%d, s%d, 1", sT1, sX)
    if opt.get("ringr"):
        sexpr(A, oXPr0, R_XPR, (1, sRB), (10240, sT1), (2048, sW))
        sexpr(A, oXPrB, R_XPR+8192, (1, sRB), (10240, sT1), (512, sW))
    else:
        sexpr(A, oXPr0, XR_OFF, (64*20480, sB), (10240, sT1), (2048, sW))
        sexpr(A, oXPrB, XR_OFF+8192, (64*20480, sB), (10240, sT1), (512, sW))
    A("s_mov_b32 s%d, 0x3f80\ns_mov_b32 s%d, 0x3f800000", sONEL, sONEH)
    sexpr(A, sT2, 0, (32, sB), (1, sH))
    sexpr(A, sKMO, KM_OFF, (HM, sT2), (1536, sU))
    sexpr(A, sVMO, VM_OFF, (HM, sT2), (1536, sU))
    sexpr(A, sKXO, KX_OFF, (HS, sT2), (6144, sU), (1536, sW))
    sexpr(A, sVXO, VX_OFF-KX_OFF, (1, sKXO))
    A("v_and_b32 v%d, 15, v0\nv_lshrrev_b32 v%d, 4, v0", vN, vG)
    A("v_lshlrev_b32 v%d, 4, v0", vL16)
    A("v_lshrrev_b32 v%d, 1, v%d\nv_mul_u32_u24 v%d, %d, v%d", t0, vN, t0, MEM_RS, t0)
    A("v_and_b32 v%d, 1, v%d\nv_lshl_add_u32 v%d, v%d, 1, v%d\nv_lshl_add_u32 v%d, v%d, 4, v%d\nv_add_u32 v%d, %d, v%d", t1, vN, t2, vG, t1, vAmem, t2, t0, vAmem, L_MEM, vAmem)
    A("v_cmp_eq_u32 vcc, 1, v%d", t1)
    A("v_mov_b32 v%d, 0x4444\nv_mov_b32 v%d, 0xeeee\nv_cndmask_b32 v%d, v%d, v%d, vcc", t2, t3, vIdxQK, t2, t3)
    A("v_mov_b32 v%d, 0x8888\nv_mov_b32 v%d, 0xdddd\nv_cndmask_b32 v%d, v%d, v%d, vcc", t2, t3, vIdxWo, t2, t3)
    A("v_mov_b32 v%d, 0x3f80\nv_mov_b32 v%d, 0x3f800000\nv_cndmask_b32 v%d, v%d, v%d, vcc\nv_lshrrev_b32 v%d, 1, v%d", t2, t3, t2, t2, t3, t3, vN)
    for r in range(4):
        A("v_cmp_eq_u32 vcc, %d, v%d\ns_nop 1\nv_cndmask_b32 v%d, 0, v%d, vcc", r, t3, vSEL+r, t2)
    A("v_lshl_add_u32 v%d, v%d, 3, v%d\nv_lshlrev_b32 v%d, 4, v%d", t0, vG, t3, pSC, t0)
    A("v_lshlrev_b32 v%d, 3, v0", pB)
    A("s_lshr_b32 s%d, s%d, 1\ns_and_b32 s%d, s%d, 1", sT1, sW, sT2, sW)
    sexpr(A, sT1, L_Q, (8*QK_RS, sT1), (96, sT2))
    A("v_mul_u32_u24 v%d, %d, v%d\nv_add_u32 v%d, s%d, v%d\nv_lshl_add_u32 v%d, v%d, 1, v%d", t0, 2*QK_RS, vG, t0, sT1, t0, vQKw, vN, t0)
    A("v_mul_u32_u24 v%d, %d, v%d\nv_lshl_add_u32 v%d, v%d, 4, v%d\nv_add_u32 v%d, %d, v%d", t0, QK_RS, t3, vQrd, vG, t0, vQrd, L_Q, vQrd)
    A("v_and_b32 v%d, 1, v%d\nv_lshlrev_b32 v%d, 8, v%d\nv_lshl_add_u32 v%d, v%d, 4, v%d\nv_add_u32 v%d, %d, v%d", t0, vG, t0, t0, vVMIr, vN, t0, vVMIr, L_VMI, vVMIr)
    A("v_lshlrev_b32 v%d, 4, v%d\nv_lshl_add_u32 v%d, v%d, 9, v%d", t0, vN, pA, vG, t0)
    A("v_lshrrev_b32 v%d, 3, v%d\nv_lshl_add_u32 v%d, v%d, 2, v%d\nv_mul_u32_u24 v%d, 10240, v%d\nv_and_b32 v%d, 7, v%d\nv_lshl_add_u32 v%d, v%d, 4, v%d", t1, vN, t1, t1, vG, t1, t1, t2, vN, pPB, t2, t1)
    A("v_lshl_add_u32 v%d, v%d, 3, v%d", pXP, vG, t0)
    lw = A.newlabel(); lw2 = A.newlabel()
    A("s_cmp_eq_u32 s%d, 0\ns_cbranch_scc1 %s", sW, lw)
    A("v_lshrrev_b32 v%d, 1, v%d\nv_lshl_add_u32 v%d, v%d, 8, v%d\nv_and_b32 v%d, 1, v%d\nv_lshl_add_u32 v%d, v%d, 2, v%d", t1, vG, t1, t1, t0, pVMst, vG, pVMst, pVMst, t1)
    sexpr(A, sT1, 0, (512, sWM1)); A("v_add_u32 v%d, s%d, v%d", pVMst, sT1, pVMst)
    sexpr(A, sT1, L_WV, (4096, sWM1)); A("v_add_u32 v%d, s%d, v%d", vWVrd, sT1, vL16)
    A("s_branch %s", lw2)
    A.label(lw)
    A("v_lshlrev_b32 v%d, 4, v%d\nv_lshl_add_u32 v%d, v%d, 7, v%d", t1, t2, pKM, vG, t1)
    A("v_mul_u32_u24 v%d, %d, v%d\nv_lshl_add_u32 v%d, v%d, 4, v%d\nv_add_u32 v%d, %d, v%d", t0, QK_RS, t2, vKrd, vG, t0, vKrd, L_K, vKrd)
    A.label(lw2)
    A("v_add_u32 v%d, %d, v%d", vKVr, L_KB, vL16)
    A("v_lshlrev_b32 v%d, 7, v0", pLT)
    sexpr(A, sT1, L_MEM, (320, sW))
    A("v_mul_u32_u24 v%d, %d, v%d\nv_add_u32 v%d, s%d, v%d", t0, 2*MEM_RS, vG, t0, sT1, t0)
    A("v_lshl_add_u32 v%d, v%d, 4, v%d\nv_lshl_add_u32 v%d, v%d, 2, v%d\nv_add_u32 v%d, 256, v%d", vMEMw, vN, t0, vMEMw4, vN, t0, vMEMw4, vMEMw4)
    A("v_cmp_lt_u32 vcc, 1, v%d\nv_mov_b32 v%d, 0\nv_mov_b32 v%d, 0xf149f2ca\nv_cndmask_b32 v%d, v%d, v%d, vcc", vG, t0, t1, vBias, t0, t1)

    for k in range(RING):
        inv = 1 - (k & 1)
        for r in range(4): A("v_mov_b32 v%d, %d", vBUF+r, inv)
        A("s_add_u32 s%d, s%d, %d\nbuffer_store_dwordx4 %s, v%d, %s, s%d offen", sT0, oSCst, k*SLOT, v(vBUF,4), pSC, ws, sT0)
        A("s_add_u32 s%d, s%d, %d\nbuffer_store_dwordx4 %s, v%d, %s, s%d offen", sT0, oPBst, k*SLOT, v(vBUF,4), pA, ws, sT0)
        A("buffer_store_dwordx4 %s, v%d, %s, s%d offen offset:256", v(vBUF,4), pA, ws, sT0)
        A("s_add_u32 s%d, s%d, %d\nbuffer_store_dwordx2 %s, v%d, %s, s%d offen", sT0, oPBst2, k*SLOT, v(vBUF,2), pL8, ws, sT0)
        lab = A.newlabel()
        A("s_cmp_ge_u32 s%d, 80\ns_cbranch_scc1 %s", sRW, lab)
        A("s_mov_b64 exec, 0x00ff00ff")
        A("s_add_u32 s%d, s%d, %d\nbuffer_store_dwordx2 %s, v%d, %s, s%d offen", sT0, oXPst, k*SLOT, v(vBUF,2), pXP, ws, sT0)
        if opt.get("ringr"): A("s_add_u32 s%d, s%d, %d\nbuffer_store_dwordx2 %s, v%d, %s, s%d offen sc1", sT0, oXPstr, k*SLOT, v(vBUF,2), pXP, ws, sT0)
        elif k == 0:
            A("s_mov_b64 exec, -1\nv_mul_u32_u24 v%d, 20480, v%d\nv_and_b32 v%d, 7, v%d\nv_lshl_add_u32 v%d, v%d, 4, v%d", t0, vG, t1, vN, t0, t1, t0)
            A("v_and_b32 v%d, 1, v%d\nv_xor_b32 v%d, 1, v%d", vBUF+4, vG, vBUF+4, vBUF+4)
            for r in range(1, 4): A("v_mov_b32 v%d, v%d", vBUF+4+r, vBUF+4)
            A("s_mov_b32 exec_lo, 0x00ff00ff\ns_mov_b32 exec_hi, 0x00ff00ff")
            for i in range(16):
                A("s_add_u32 s%d, s%d, %d\nbuffer_store_dwordx4 %s, v%d, %s, s%d offen sc1", sT0, oXPstr, i*4*20480, v(vBUF+4,4), t0, ws, sT0)
        A("s_mov_b64 exec, -1")
        A.label(lab)
        A("s_nop 1")
    sexpr(A, sFCHo, F_CH, (64*128, sB), (128, sME))
    sexpr(A, sFKVo, F_KV, (32*256, sB), (256, sH))
    A("v_mov_b32 v%d, 0\ns_mov_b64 exec, 1\nbuffer_store_dword v%d, v%d, %s, s%d offen sc1\ns_mov_b64 exec, -1", t0, t0, t0, ws, sFCHo)
    A("s_waitcnt vmcnt(0) lgkmcnt(0)")
    A("s_barrier")
    A("s_cmp_lg_u32 s%d, 0\ns_cbranch_scc1 L_ch_rdy", sW)
    A("s_mov_b64 exec, 1\nv_mov_b32 v%d, 1", t1)
    A("buffer_atomic_add v%d, v%d, s[12:15], 0 offen offset:%d", t1, t0, D_READY)
    A("s_mov_b64 exec, -1")
    A.label("L_ch_rdy")

    stamp(1)
    vD = [vAF, vAF+1, vAF+2]
    vTRq = [vAF+3, vAF+4, vAF+5]
    vTRv = vAF+6
    sexpr(A, sT1, 0, (384, sH), (192, sU))
    for i in range(3):
        A("v_add_u32 v%d, %d, v0\nv_mul_u32_u24 v%d, 171, v%d\nv_lshrrev_b32 v%d, 11, v%d", t0, 64*i, t1, t0, t1, t1)
        A("v_mul_u32_u24 v%d, 12, v%d\nv_sub_u32 v%d, v%d, v%d", t2, t1, t2, t0, t2)
        A("v_mul_u32_u24 v%d, 12288, v%d\nv_lshl_add_u32 v%d, v%d, 4, v%d\nv_add_u32 v%d, s%d, v%d", t1, t1, t1, t2, t1, vD[i], sT1, t1)
    A("v_lshrrev_b32 v%d, 1, v%d\nv_and_b32 v%d, 1, v%d\nv_lshlrev_b32 v%d, 2, v%d\nv_lshl_add_u32 v%d, v%d, 4, v%d", t0, vG, t1, vG, t1, t1, t0, t0, t1)
    A("v_lshrrev_b32 v%d, 3, v%d\nv_lshl_add_u32 v%d, v%d, 3, v%d\nv_bfe_u32 v%d, v%d, 2, 1\nv_add_u32 v%d, v%d, v%d\nv_mul_u32_u24 v%d, 192, v%d", t1, vN, t0, t1, t0, t1, vN, t0, t0, t1, t5, t0)
    A("v_and_b32 v%d, 3, v%d", t4, vN)
    A("v_add_u32 v%d, %d, v%d", t5, L_WV, t5)
    A("v_lshl_add_u32 v%d, v%d, 3, v%d", vTRv, t4, t5)
    A("s_lshr_b32 s%d, s%d, 1\ns_mul_i32 s%d, s%d, 24576\ns_and_b32 s%d, s%d, 1\ns_mul_i32 s%d, s%d, 48", sT1, sW, sT1, sT1, sT2, sW, sT2, sT2)
    A("v_add_u32 v%d, s%d, v%d", t5, sT1, t5)
    for t in range(3):
        A("v_lshl_add_u32 v%d, v%d, 2, s%d\nv_add_u32 v%d, %d, v%d", t0, t4, sT2, t0, 16*t, t0)
        A("v_bfe_u32 v%d, v%d, 2, 1\nv_lshrrev_b32 v%d, 5, v%d", t3, t0, t2, t0)
        A("v_cmp_eq_u32 vcc, 2, v%d\nv_mad_u32_u24 v%d, v%d, 3, v%d\nv_mad_u32_u24 v%d, v%d, 3, 2", t2, t1, t2, t3, t3, t3)
        A("v_cndmask_b32 v%d, v%d, v%d, vcc\nv_lshlrev_b32 v%d, 4, v%d", t1, t1, t3, t1, t1)
        A("v_bfe_u32 v%d, v%d, 3, 2\nv_lshl_add_u32 v%d, v%d, 2, v%d", t3, t0, t1, t3, t1)
        A("v_lshl_add_u32 v%d, v%d, 1, v%d", vTRq[t], t1, t5)
    A("s_waitcnt lgkmcnt(0)")
    A("s_cmp_lt_u32 s%d, 2\ns_cselect_b32 s8, s%d, s%d\ns_cselect_b32 s9, s%d, s%d", sW, sPTR+4, sPTR+6, sPTR+5, sPTR+7)
    A("s_mov_b32 s10, %d\ns_mov_b32 s11, 0x20000", 640*6144*2)
    sVS = 92
    A("s_mov_b32 s%d, s%d\ns_mov_b32 s%d, s%d\ns_mov_b32 s%d, %d\ns_mov_b32 s%d, 0x20000", sVS, sPTR+8, sVS+1, sPTR+9, sVS+2, 640*6144*2, sVS+3)
    A("s_and_b32 s%d, s%d, 1", sT2, sW)
    sexpr(A, sGRP, 0, (64*12288, sT2))
    sexpr(A, sM, L_WV, (12288, sW))
    def dma64(srd, goff_s, goff_c, lds_s, lds_c):
        for i in range(12):
            A("s_add_u32 s%d, s%d, %d\ns_add_u32 m0, s%d, %d", sT0, goff_s, goff_c + (i//3)*16*12288, lds_s, lds_c + i*1024)
            A("s_nop 0\nbuffer_load_dwordx4 v%d, %s, s%d offen lds", vD[i % 3], srd, sT0)
    def qk_dma(c): dma64("s[8:11]", sGRP, c*128*12288, sM, (c % 2)*49152)
    svs = "s[%d:%d]" % (sVS, sVS+3)
    sexpr(A, sPW, 0, (64*12288, sW))
    def v_dma(kbase):
        dma64(svs, sPW, kbase*64*12288, sM, kbase*12288)
    qk_dma(0); qk_dma(1)
    A("s_mov_b32 s96, s%d\ns_mov_b32 s97, s%d\ns_mov_b32 s98, %d\ns_mov_b32 s99, 0x20000", sPTR+10, sPTR+11, 640*6144*2)
    A("v_and_b32 v%d, 1, v%d\nv_lshrrev_b32 v%d, 1, v%d\nv_lshlrev_b32 v%d, 2, v%d\nv_lshl_add_u32 v%d, v%d, 4, v%d\nv_mul_u32_u24 v%d, 1280, v%d", t0, vG, t1, vG, t1, t1, t0, t0, t1, t0, t0)
    sexpr(A, sT1, 0, (96*1280, sME), (320, sW))
    A("v_add_u32 v%d, s%d, v%d", t0, sT1, t0)
    A("v_lshl_add_u32 v%d, v%d, 4, v%d", t1, vN, t0)
    A("v_lshl_add_u32 v%d, v%d, 2, v%d\nv_add_u32 v%d, 256, v%d", t2, vN, t0, t2, t2)
    tb = vAF + 8
    areas = [vAF+8, vVX+0, vKX]
    for kap in range(3):
        for q in range(2):
            for r in range(4):
                A("s_mov_b32 s%d, %d", sT0, (32*kap + 8*q + r)*1280)
                A("buffer_load_dwordx4 %s, v%d, s[96:99], s%d offen", v(areas[kap] + 4*(4*q+r), 4), t1, sT0)
                A("buffer_load_dword %s, v%d, s[96:99], s%d offen", wo_reg(12+kap, q*4+r), t2, sT0)
    lab = A.newlabel()
    A("s_cmp_ge_u32 s%d, 2\ns_cbranch_scc1 %s", sW, lab)
    v_dma(8)
    A.label(lab)
    first_extra = True
    for c in range(5):
        A("s_waitcnt vmcnt(%d)\ns_barrier", 60 if c < 2 else 12)
        for kk in range(2):
            for t in range(3):
                for q in range(2):
                    for rp in range(2):
                        A("ds_read_b64_tr_b16 %s, v%d offset:%d", a(80*t + 8*(2*c+kk) + 4*q + 2*rp, 2), vTRq[t], (64*kk + 32*q + 2*rp)*192)
        for t in range(3): A("v_%s_u32 v%d, 49152, v%d", "add" if c % 2 == 0 else "subrev", vTRq[t], vTRq[t])
        A("s_waitcnt lgkmcnt(0)\ns_barrier")
        if c + 2 < 5: qk_dma(c+2)
        elif c == 3: v_dma(4)
        else: v_dma(0)
    A("s_waitcnt vmcnt(0)\ns_barrier")
    for kap in range(3):
        for qr in range(8):
            for be in range(4):
                i = be*3+kap
                if i < 2: A("v_accvgpr_write_b32 %s, v%d", wo_reg(i, qr), areas[kap] + 4*qr + be)
                else: A("v_mov_b32 %s, v%d", wo_reg(i, qr), areas[kap] + 4*qr + be)
    stamp(2); stamp(3)
    A("s_mov_b32 s%d, s%d", sT2, sW)
    A.label("L_wv_loop")
    A("s_mul_i32 s%d, s%d, 12288\nv_add_u32 v%d, s%d, v%d\nv_add_u32 v%d, s%d, v%d\nv_add_u32 v%d, %d, v%d", sT0, sT2, t0, sT0, vTRv, t1, sT0, vL16, t1, L_WV, t1)
    for tau in range(6):
        for q in range(2):
            for rp in range(2):
                A("ds_read_b64_tr_b16 %s, v%d offset:%d", v(vVX + 8*tau + 4*q + 2*rp, 2), t0, (32*q + 2*rp)*192 + 32*tau)
    A("s_waitcnt lgkmcnt(0)")
    for i in range(12):
        A("ds_write_b128 v%d, %s offset:%d", t1, v(vVX+4*i,4), 1024*i)
    A("s_waitcnt lgkmcnt(0)")
    A("s_add_u32 s%d, s%d, 4\ns_cmp_lt_u32 s%d, 10\ns_cbranch_scc1 L_wv_loop", sT2, sT2, sT2)

    stamp(4)
    A("s_mov_b32 s8, s%d\ns_mov_b32 s9, s%d\ns_mov_b32 s10, 10240", sPTR, sPTR+1)
    A("s_lshl_b32 s%d, s%d, 6\nv_add_u32 v%d, s%d, v0", sT0, sW, t0, sT0)
    for i in range(3):
        A("v_add_u32 v%d, %d, v%d", t1, 256*i, t0)
        A("v_mul_u32_u24 v%d, 205, v%d\nv_lshrrev_b32 v%d, 14, v%d", t2, t1, t2, t2)
        A("v_lshlrev_b32 v%d, 4, v%d", t3, t1)
        A("buffer_load_dwordx4 %s, v%d, s[8:11], 0 offen", v(vBUF,4), t3)
        A("v_mul_u32_u24 v%d, %d, v%d\nv_add_u32 v%d, v%d, v%d\nv_add_u32 v%d, %d, v%d", t2, MEM_RS-1280, t2, t4, t3, t2, t4, L_MEM, t4)
        A("v_cmp_gt_u32 vcc, 640, v%d\ns_waitcnt vmcnt(0)\ns_and_b64 exec, exec, vcc", t1)
        A("ds_write_b128 v%d, %s", t4, v(vBUF,4))
        A("s_mov_b64 exec, -1\ns_waitcnt lgkmcnt(0)")

    def kv_dma(part):
        so = sKXO if part == 0 else sVXO
        if part == 0: A("s_mov_b32 m0, s%d\ns_xor_b32 s%d, s%d, %d", sKVB, sKVB, sKVB, 8192)
        else: A("s_mov_b32 m0, s%d\ns_nop 0", sVB)
        A("buffer_load_dwordx4 v%d, %s, s%d offen sc1 lds", vL16, ws, so)
        A("s_mov_b32 exec_hi, 0")
        A("buffer_load_dwordx4 v%d, %s, s%d offen offset:1024 sc1 lds", vL16, ws, so)
        A("s_mov_b32 exec_hi, -1\ns_add_u32 s%d, s%d, 12288", so, so)
    sexpr(A, sKVB, L_KB, (1536, sW))
    sexpr(A, sVB, L_VB, (1536, sW))
    A("s_mov_b32 s%d, 0\ns_mov_b32 s%d, 3", sAVAIL, sNEED)
    A("v_mov_b32 v%d, 0", t0)
    A.label("L_ch_wait")
    A("buffer_load_dword v%d, v%d, s[12:15], 0 offen offset:%d sc1\ns_waitcnt vmcnt(0)", t1, t0, D_READY)
    A("v_cmp_gt_u32 vcc, %d, v%d\ns_cbranch_vccz L_ch_go0\ns_sleep 8\ns_branch %s", opt.get("nready", 256), t1, spin_stub(A, "L_ch_wait"))
    A.label("L_ch_go0")
    def kv_check():
        if not opt.get("noflags"):
            A("v_lshlrev_b32 v%d, 7, v0", t0)
            wait_flags(A, t0, t1, sFKVo, sNEED, 3, cache_sgpr=sAVAIL)
            A("s_add_u32 s%d, s%d, 1\ns_min_u32 s%d, s%d, 64", sNEED, sNEED, sNEED, sNEED)
    kv_check()
    kv_dma(0); kv_dma(1); kv_dma(0)
    A("s_waitcnt vmcnt(0)")
    A.label("L_ch_go")
    stamp(5)
    A("s_mov_b32 s%d, 0\ns_mov_b32 s%d, 0\ns_mov_b32 s%d, 0", sSTEP, sSLOTI, sPAR)
    if timing:
        for i in range(90, 102): A("s_mov_b32 s%d, 0", i)
    A("s_waitcnt lgkmcnt(0)")

    for r in range(20): A("v_mov_b32 v%d, 0", vACC+r)
    vPS = vAF
    vS = vAF + 12
    vP = vAF + 24
    vVm = vAF + 28
    vOA = vAF + 28
    vP0 = vT[4]
    def sc_loads():
        for t in range(3):
            A("buffer_load_dwordx4 %s, v%d, %s, s%d offen offset:%d sc1", v(vPS+4*t,4), pSC, ws, oSCld, 512*t)
    def vread(i):
        kap, tt = i//2, i % 2
        if i == 10: A("v_add_u32 v%d, %d, v%d", vWVrd, 5*12288, vWVrd)
        for q in range(2):
            A("ds_read_b128 %s, v%d offset:%d", v(vBUF+8*(i % NVB)+4*q,4), vWVrd, (kap % 5)*12288 + tt*2048 + q*1024)
        if i == 19: A("v_subrev_u32 v%d, %d, v%d", vWVrd, 5*12288, vWVrd)
    def vproj(poll_at):
        for i in range(3, 6): vread(i)
        for i in range(20):
            A("s_waitcnt lgkmcnt(%d)", min(2*(NVB-1), 2*(19-i)))
            A("v_smfmac_f32_16x16x64_bf16 %s, %s, %s, v%d", v(vACC+12+4*(i % 2),4), v(vAF+4*(i//2),4), v(vBUF+8*(i % NVB),8), vIdxQK)
            if i + NVB < 20: vread(i+NVB)
        A("s_nop 7")
        for tt in range(2):
            A("v_add_f32 v%d, v%d, v%d\nv_add_f32 v%d, v%d, v%d", vACC+12+4*tt, vACC+12+4*tt, vACC+13+4*tt, vACC+14+4*tt, vACC+14+4*tt, vACC+15+4*tt)
            A("v_cvt_pk_bf16_f32 v%d, v%d, v%d\nds_write_b32 v%d, v%d offset:%d", vT[tt], vACC+12+4*tt, vACC+14+4*tt, pVMst, vT[tt], L_VMI+8*tt)
    A.label("L_step")
    A("s_barrier")
    ts(0)
    for kap in range(10):
        A("ds_read_b128 %s, v%d offset:%d", v(vAF+4*kap,4), vAmem, 128*kap)
    lk = A.newlabel(); lk2 = A.newlabel()
    A("s_cmp_eq_u32 s%d, 2\ns_cbranch_scc1 %s", sW, lk)
    def kxr(t):
        for kap in range(2): A("ds_read_b128 %s, v%d offset:%d", v(vKX+4*kap,4), vKVr, 2048*t + 1024*kap)
        for hi in range(2): A("ds_read_b64 %s, v%d offset:%d", v(vKX+8+2*hi,2), vKVr, 4096 + 1024*hi + 8*t)
    kxr(0)
    A("s_branch %s", lk2)
    A.label(lk)
    kxr(1)
    A.label(lk2)
    for kap in range(10):
        A("s_waitcnt lgkmcnt(%d)", 13-kap if kap < 4 else min(15, 19-kap))
        for t in range(3):
            A("v_smfmac_f32_16x16x64_bf16 %s, %s, %s, v%d", v(vACC+4*t,4), v(vAF+4*kap,4), a(80*t+8*kap,8), vIdxQK)
            if kap == 9: vread(t)
            if kap == 3:
                for tv in (2*t, 2*t+1): A("ds_read_b128 %s, v%d offset:%d", v(vVX+4*tv,4), vL16, L_VB+1024*tv)
            if kap == 5 and t == 0: A("v_xor_b32 v%d, 8192, v%d", vKVr, vKVr)
    A("s_mov_b32 s%d, %d", sT0, SLOT)
    A("s_cmp_eq_u32 s%d, %d\ns_cselect_b32 s%d, %d, s%d", sSLOTI, RING-1, sDELTA, (-(RING-1)*SLOT) & 0xffffffff, sT0)
    for t in range(3):
        if t == 2: A("s_nop 0")
        A("v_add_f32 v%d, v%d, v%d\nv_add_f32 v%d, v%d, v%d", vACC+4*t, vACC+4*t, vACC+4*t+1, vACC+4*t+2, vACC+4*t+2, vACC+4*t+3)
        A("v_cvt_pk_bf16_f32 v%d, v%d, v%d", vT[t], vACC+4*t, vACC+4*t+2)
        A("ds_write_b16 v%d, v%d offset:%d\nds_write_b16_d16_hi v%d, v%d offset:%d", vQKw, vT[t], 32*t, vQKw, vT[t], 32*t+QK_RS)
    A("s_waitcnt lgkmcnt(0)\ns_barrier")
    ts(1)
    A("s_cmp_eq_u32 s%d, 3\ns_cbranch_scc1 L_w3", sW)
    for kap in range(3):
        A("ds_read_b128 %s, v%d offset:%d", v(vACC+4*kap,4), vQrd, 64*kap)
    A("s_cmp_lg_u32 s%d, 0\ns_cbranch_scc1 L_sc_x", sW)
    for kap in range(3):
        A("ds_read_b128 %s, v%d offset:%d", v(vKX+4*kap,4), vKrd, 64*kap)
    A.label("L_sc_x")
    A("s_lshl_b32 s%d, s%d, 9\nv_add_u32 v%d, s%d, v%d", sT0, sW, t0, sT0, pSC)
    A("s_waitcnt lgkmcnt(0)")
    A("v_mfma_f32_16x16x32_bf16 %s, %s, %s, 0", v(vSC,4), v(vKX,4), v(vACC,4))
    for kap in (1, 2):
        A("v_mfma_f32_16x16x32_bf16 %s, %s, %s, %s", v(vSC,4), v(vKX+4*kap,4), v(vACC+4*kap,4), v(vSC,4))
    A("s_mov_b64 exec, s[%d:%d]", sEVEN, sEVEN+1)
    A("s_nop 6")
    for r in range(4): A("v_and_or_b32 v%d, v%d, -2, s%d", vSC+r, vSC+r, sPAR)
    A("buffer_store_dwordx4 %s, v%d, %s, s%d offen", v(vSC,4), pSC, ws, oSCst)
    A("ds_write_b128 v%d, %s offset:%d", t0, v(vSC,4), L_SCO)
    A("s_mov_b64 exec, -1")
    A("s_cmp_eq_u32 s%d, 0\ns_cbranch_scc1 L_w0", sW)
    A("s_waitcnt lgkmcnt(0)")
    vproj(0)
    A("s_branch L_b2p")
    A.label("L_w3")
    vproj(0)
    A("s_branch L_b2p")
    A.label("L_w0")
    def km_export():
        A("s_mov_b32 exec_lo, 0x00ff00ff\ns_mov_b32 exec_hi, 0x00ff00ff")
        for kap in range(3):
            A("buffer_store_dwordx4 %s, v%d, %s, s%d offen offset:%d sc1", v(vKX+4*kap,4), pKM, ws, sKMO, 512*kap)
        A("s_mov_b64 exec, -1")
    A("s_cmp_eq_u32 s%d, %d\ns_cbranch_scc1 L_b2p", sSTEP, nsteps-1)
    for h2 in range(2):
        A("v_pk_add_f32 %s, %s, %s op_sel_hi:[1,0]", v(vSC+2*h2,2), v(vSC+2*h2,2), v(vBias,2))
    if opt.get("pa0", 2): A("s_sleep %d", opt.get("pa0", 2))
    A.label("L_pa")
    sc_loads()
    A("s_waitcnt vmcnt(0)")
    tagcheck(A, range(vPS, vPS+12), t0, "L_pa")
    for h2 in range(2):
        A("v_pk_add_f32 %s, %s, %s", v(vPS+2*h2,2), v(vPS+2*h2,2), v(vSC+2*h2,2))
    A("s_mov_b64 exec, s[%d:%d]", sEVEN, sEVEN+1)
    for t in (1, 2, 0): A("ds_write_b128 v%d, %s offset:%d", pSC, v(vPS+4*t,4), L_PSC+512*t)
    A("s_mov_b64 exec, -1")
    A.label("L_b2p")
    A("s_waitcnt lgkmcnt(0)\ns_barrier")
    ts(2)
    for t in (1, 2):
        A("ds_read_b128 %s, v%d offset:%d", v(vS+4*t,4), pSC, L_SCO+512*t)
        A("ds_read_b128 %s, v%d offset:%d", v(vPS+4*t,4), pSC, L_PSC+512*t)
    A("ds_read_b128 %s, v%d offset:%d", v(vS,4), pSC, L_PSC)
    for t in range(3): A("ds_read_b128 %s, v%d offset:%d", v(vVm+4*t,4), vVMIr, 512*t)
    A("s_cmp_eq_u32 s%d, %d\ns_cbranch_scc1 L_ch_done", sSTEP, nsteps-1)
    if not opt.get("nov"): kv_dma(1)
    ts(3)
    for t in (1, 2):
        A("s_waitcnt lgkmcnt(%d)", 6 if t == 1 else 4)
        for h2 in range(2):
            A("v_pk_add_f32 %s, %s, %s", v(vS+4*t+2*h2,2), v(vS+4*t+2*h2,2), v(vPS+4*t+2*h2,2))
    A("v_max3_f32 v%d, v%d, v%d, v%d", t0, vS+4, vS+5, vS+6)
    A("v_max3_f32 v%d, v%d, v%d, v%d", t1, vS+7, vS+8, vS+9)
    A("v_max3_f32 v%d, v%d, v%d, v%d", t0, t0, vS+10, vS+11)
    A("s_waitcnt lgkmcnt(3)")
    A("v_max3_f32 v%d, v%d, v%d, v%d", t1, t1, vS, vS+1)
    A("v_max3_f32 v%d, v%d, v%d, v%d", t0, t0, vS+2, vS+3)
    A("v_max_f32 v%d, v%d, v%d\nv_max_f32 v%d, v%d, v%d", t2, t0, t1, t0, t0, t1)
    A("s_nop 1\nv_permlane32_swap_b32 v%d, v%d", t0, t2)
    A("v_max_f32 v%d, v%d, v%d\nv_max_f32 v%d, v%d, v%d", t1, t0, t2, t0, t0, t2)
    A("s_nop 1\nv_permlane16_swap_b32 v%d, v%d", t0, t1)
    A("v_max_f32 v%d, v%d, v%d\nv_mul_f32 v%d, s%d, v%d", t0, t0, t1, t0, sSCL, t0)
    for r in range(4, 12): A("v_fma_f32 v%d, v%d, s%d, -v%d", vS+r, vS+r, sSCL, t0)
    for r in range(4, 12): A("v_exp_f32 v%d, v%d", vS+r, vS+r)
    for r in range(4): A("v_fma_f32 v%d, v%d, s%d, -v%d", vS+r, vS+r, sSCL, t0)
    for i in range(4): A("v_cvt_pk_bf16_f32 v%d, v%d, v%d", vP+i, vS+4+2*i, vS+5+2*i)
    A("v_exp_f32 v%d, v%d\nv_exp_f32 v%d, v%d", vS, vS, vS+1, vS+1)
    ts(4)
    vO = vBUF
    pk = lambda d, x: "v_pk_add_f32 %s, %s, %s" % (v(d,2), v(d,2), v(x,2))
    side = {0: "v_exp_f32 v%d, v%d\nv_exp_f32 v%d, v%d" % (vS+2, vS+2, vS+3, vS+3),
            1: pk(vS+4, vS+6) + "\n" + pk(vS+8, vS+10) + "\nv_cvt_pk_bf16_f32 v%d, v%d, v%d" % (vP0, vS, vS+1),
            2: "v_cvt_pk_bf16_f32 v%d, v%d, v%d\n" % (vP0+1, vS+2, vS+3) + pk(vS, vS+2) + "\n" + pk(vS+4, vS+8),
            3: pk(vS, vS+4) + "\nv_add_f32 v%d, v%d, v%d\nv_add_f32 v%d, v%d, v%d\ns_nop 0" % (t0, vS, vS+1, t1, vS, vS+1),
            4: "v_permlane32_swap_b32 v%d, v%d\nv_add_f32 v%d, v%d, v%d\nv_add_f32 v%d, v%d, v%d\ns_nop 0" % (t0, t1, t2, t0, t1, t0, t0, t1),
            5: "v_permlane16_swap_b32 v%d, v%d\nv_add_f32 v%d, v%d, v%d\nv_rcp_f32 v%d, v%d\ns_waitcnt lgkmcnt(0)" % (t0, t2, t0, t0, t2, vS, t0)}
    for t in range(6):
        A("v_mfma_f32_16x16x32_bf16 %s, %s, %s, 0", v(vO+4*t,4), v(vVX+4*t,4), v(vP,4))
        A(side[t])
    def exports():
        A("v_and_b32 v%d, 7, v0\nv_lshrrev_b32 v%d, 4, v0\nv_mul_u32_u24 v%d, %d, v%d\nv_lshl_add_u32 v%d, v%d, 4, v%d", t0, t1, t2, QK_RS, t0, t2, t1, t2)
        for kap in range(3): A("ds_read_b128 %s, v%d offset:%d", v(vKX+4*kap,4), t2, L_K+64*kap)
        for p in range(3): A("ds_read_b128 %s, v%d offset:%d", v(vVX+4*p,4), vVMIr, 512*p)
        A("v_lshlrev_b32 v%d, 4, v%d\nv_lshl_add_u32 v%d, v%d, 7, v%d", t0, t0, t0, t1, t0)
        A("s_mov_b32 exec_lo, 0x00ff00ff\ns_mov_b32 exec_hi, 0x00ff00ff\ns_waitcnt lgkmcnt(3)")
        for kap in range(3):
            A("buffer_store_dwordx4 %s, v%d, %s, s%d offen offset:%d sc1", v(vKX+4*kap,4), t0, ws, sKMO, 512*kap)
        A("s_mov_b32 exec_lo, -1\ns_mov_b32 exec_hi, 0\ns_waitcnt lgkmcnt(0)")
        for p in range(3):
            A("buffer_store_dwordx4 %s, v%d, %s, s%d offen offset:%d sc1", v(vVX+4*p,4), vL16, ws, sVMO, 512*p)
        A("v_mov_b32 v%d, 0\nv_mov_b32 v%d, s%d\ns_mov_b64 exec, 1\nbuffer_store_dword v%d, v%d, %s, s%d offen sc1\ns_mov_b64 exec, -1", t2, t3, sSTEP, t3, t2, ws, sFCHo)
        A("s_add_u32 s%d, s%d, %d\ns_add_u32 s%d, s%d, %d", sKMO, sKMO, 3072, sVMO, sVMO, 3072)
    def ocvt(t):
        for h2 in range(2):
            A("v_pk_mul_f32 %s, %s, %s op_sel_hi:[1,0]", v(vO+4*t+2*h2,2), v(vO+4*t+2*h2,2), v(vS,2))
            A("v_cvt_pk_bf16_f32 v%d, v%d, v%d", vOA+2*t+h2, vO+4*t+2*h2, vO+4*t+2*h2+1)
    for t in range(6):
        A("v_mfma_f32_16x16x16_bf16 %s, %s, %s, %s", v(vO+4*t,4), v(vVm+2*t,2), v(vP0,2), v(vO+4*t,4))
        for r in range(4*t, min(4*t+4, 20)): A("v_mov_b32 v%d, 0", vACC+r)
    ocvt(0); ocvt(1); ocvt(2)
    ts(5)
    for kap in range(3):
        for be in range(5):
            A("v_smfmac_f32_16x16x64_bf16 %s, %s, %s, v%d", v(vACC+4*be,4), v(vOA+4*kap,4), wo_oct(be*3+kap), vIdxWo)
            if kap == 0 and be < 3: ocvt(3+be)
            if kap == 1 and be == 0: adv(oSCst, oSCld)
    A("s_nop 3")
    for be in range(5):
        for h2 in range(2):
            dst = vBUF + 4*h2 + be if be < 4 else vBUF + 8 + h2
            A("v_cvt_pk_bf16_f32 v%d, v%d, v%d", dst, vACC+4*be+2*h2, vACC+4*be+2*h2+1)
        if be == 3:
            for r in (0, 2, 4, 6): A("v_and_or_b32 v%d, v%d, -2, s%d", vBUF+r, vBUF+r, sPAR)
            A("buffer_store_dwordx4 %s, v%d, %s, s%d offen", v(vBUF,4), pA, ws, oPBst)
            A("buffer_store_dwordx4 %s, v%d, %s, s%d offen offset:256", v(vBUF+4,4), pA, ws, oPBst)
    A("v_and_or_b32 v%d, v%d, -2, s%d", vBUF+8, vBUF+8, sPAR)
    A("buffer_store_dwordx2 %s, v%d, %s, s%d offen", v(vBUF+8,2), pL8, ws, oPBst2)
    ts(6)
    if timing: ts(7)
    A("s_cmp_ge_u32 s%d, 80\ns_cbranch_scc1 L_nored", sRW)
    sets = [vVX, vAF]
    def pb_loads(k):
        for i in range(4):
            A("buffer_load_dwordx4 %s, v%d, %s, s%d offen sc1", v(sets[k]+4*i,4), pPB, ws, oPB0+i)
    if opt.get("pb0", 7): A("s_sleep %d", opt.get("pb0", 7))
    pb_loads(0)
    A("s_sleep %d", opt.get("pb1", 2))
    for k in range(2):
        A.label("L_pb%d" % k)
        pb_loads(1-k)
        A("s_waitcnt vmcnt(4)")
        A("v_mfma_f32_16x16x32_bf16 %s, %s, %s, 0", v(vKX,4), v(vSEL,4), v(sets[k],4))
        for i in (1, 2, 3):
            A("v_mfma_f32_16x16x32_bf16 %s, %s, %s, %s", v(vKX,4), v(vSEL,4), v(sets[k]+4*i,4), v(vKX,4))
        tagcheck(A, range(sets[k], sets[k]+16, 2), t1, "L_pb%d" % (1-k))
        if k == 0: A("s_branch L_pbok")
    A.label("L_pbok")
    for r in range(4): A("v_add_f32_dpp v%d, v%d, v%d row_ror:8 row_mask:0xf bank_mask:0xf", vKX+4+r, vKX+r, vKX+r)
    A("s_mov_b64 exec, 0x00ff00ff")
    A("v_cvt_pk_bf16_f32 v%d, v%d, v%d\nv_cvt_pk_bf16_f32 v%d, v%d, v%d", vKX+8, vKX+4, vKX+5, vKX+9, vKX+6, vKX+7)
    A("v_and_or_b32 v%d, v%d, -2, s%d", vKX+8, vKX+8, sPAR)
    if opt.get("swap"): A("buffer_store_dwordx2 %s, v%d, %s, s%d offen", v(vKX+8,2), pXP, ws, oXPst)
    A("buffer_store_dwordx2 %s, v%d, %s, s%d offen sc1", v(vKX+8,2), pXP, ws, oXPstr)
    if not opt.get("swap"): A("buffer_store_dwordx2 %s, v%d, %s, s%d offen", v(vKX+8,2), pXP, ws, oXPst)
    A("s_mov_b64 exec, -1")
    ts(7)
    if opt.get("pc0", 10): A("s_sleep %d", opt.get("pc0", 10))
    A("s_branch L_pc0")
    A.label("L_nored")
    lab = A.newlabel()
    A("s_cmp_lg_u32 s%d, 3\ns_cbranch_scc1 %s", sW, lab)
    if opt.get("expd", 22): A("s_sleep %d", opt.get("expd", 22))
    if not opt.get("noexp"): exports()
    kv_check()
    if opt.get("expd", 22): A("s_branch L_pc0")
    A.label(lab)
    A("s_sleep %d", opt.get("pcn", 26))
    A.label("L_pc0")
    adv(oPBst, oPBst2, oPB0, oPB1, oPB2, oPB3, oXPst)
    advr(oXPstr)
    for r in range(20): A("v_mov_b32 v%d, 0", vACC+r)
    ts(8)
    vL, vR, vU = vBUF, vBUF+12, vAF
    def xp_loads(base, o0, oB):
        for rho in range(2):
            A("buffer_load_dwordx4 %s, v%d, %s, s%d offen offset:%d sc1", v(base+4*rho,4), pA, ws, o0, 256*rho)
        A("buffer_load_dwordx2 %s, v%d, %s, s%d offen sc1", v(base+8,2), pB, ws, oB)
    if not opt.get("seq", 1):
        xp_loads(vL, oXPl0, oXPlB)
        if opt.get("pc1", 0): A("s_sleep %d", opt.get("pc1", 0))
        xp_loads(vR, oXPr0, oXPrB)
        A("s_waitcnt vmcnt(3)\ns_branch L_pc1")
    A.label("L_pc")
    xp_loads(vL, oXPl0, oXPlB)
    A("s_waitcnt vmcnt(0)")
    A.label("L_pc1")
    tagcheck(A, range(vL, vL+10, 2), t1, "L_pc")
    ts(9)
    if opt.get("seq", 1): xp_loads(vR, oXPr0, oXPrB)
    for i in range(10):
        A("v_lshlrev_b32 v%d, 16, v%d\nv_and_b32 v%d, 0xffff0000, v%d", vU+2*i, vL+i, vU+2*i+1, vL+i)
    adv(oXPl0, oXPlB)
    A("s_add_u32 s%d, s%d, 1\ns_add_u32 s%d, s%d, 1\ns_cmp_eq_u32 s%d, %d\ns_cselect_b32 s%d, 0, s%d", sSTEP, sSTEP, sSLOTI, sSLOTI, sSLOTI, RING, sSLOTI, sSLOTI)
    A("s_branch L_pr1")
    A.label("L_pr")
    xp_loads(vR, oXPr0, oXPrB)
    A.label("L_pr1")
    A("s_waitcnt vmcnt(0)")
    tagcheck(A, range(vR, vR+10, 2), t1, "L_pr")
    ts(10)
    for i in range(10):
        A("v_dot2_f32_bf16 v%d, v%d, s%d, v%d\nv_dot2_f32_bf16 v%d, v%d, s%d, v%d", vU+2*i, vR+i, sONEL, vU+2*i, vU+2*i+1, vR+i, sONEH, vU+2*i+1)
    for i in range(10):
        A("v_cvt_pk_bf16_f32 v%d, v%d, v%d", vL+i, vU+2*i, vU+2*i+1)
        if i == 3: A("ds_write_b128 v%d, %s", vMEMw, v(vL,4))
        if i == 7: A("ds_write_b128 v%d, %s offset:%d", vMEMw, v(vL+4,4), MEM_RS)
    A("ds_write_b32 v%d, v%d\nds_write_b32 v%d, v%d offset:%d", vMEMw4, vL+8, vMEMw4, vL+9, MEM_RS)
    if not opt.get("nok"): kv_dma(0)
    advr(oXPr0, oXPrB)
    A("s_xor_b32 s%d, s%d, 1", sPAR, sPAR)
    if timing and not opt.get("os"):
        ts(11); ts(12)
        A("s_waitcnt lgkmcnt(0)")
        if opt.get("rt"):
            lab = A.newlabel()
            A("s_cmp_lg_u32 s%d, 41\ns_cbranch_scc1 %s", sSTEP, lab)
            for i in range(12): A("s_mov_b32 s%d, s%d", 90+i, sTS+2*i)
            A.label(lab)
        else:
          for i in range(12):
            A("s_sub_u32 s%d, s%d, s%d\ns_add_u32 s%d, s%d, s%d", sT0, sTS+2*(i+1), sTS+2*i, 90+i, 90+i, sT0)
    A("s_waitcnt lgkmcnt(0)")
    A("s_branch L_step")
    A.label("L_ch_done")
    A("s_waitcnt lgkmcnt(0)")
    lab = A.newlabel()
    A("s_cmp_lg_u32 s%d, 3\ns_cbranch_scc1 %s", sW, lab)
    exports()
    A.label(lab)
    if timing: A("s_mov_b32 s%d, s98\ns_mov_b32 s%d, s99\ns_mov_b32 s%d, s96\ns_mov_b32 s%d, s97", 64, 65, 66, 67)
    stamp(6)
    if timing: A("s_mov_b32 s98, s64\ns_mov_b32 s99, s65\ns_mov_b32 s96, s66\ns_mov_b32 s97, s67")
    if timing:
        sexpr(A, sT1, DBG_OFF, (256, 2), (64, sW))
        A("s_mov_b64 exec, 1\nv_mov_b32 v2, 0")
        for i in range(12):
            A("v_mov_b32 v1, s%d\nbuffer_store_dword v1, v2, %s, s%d offen offset:%d\ns_nop 1", 90+i, ws, sT1, 4*i)
        A("v_mov_b32 v1, s%d\nbuffer_store_dword v1, v2, %s, s%d offen offset:56\ns_nop 1", sME, ws, sT1)
        A("v_mov_b32 v1, s%d\nbuffer_store_dword v1, v2, %s, s%d offen offset:52\ns_nop 1", sB, ws, sT1)
        A("v_mov_b32 v1, 1\nbuffer_store_dword v1, v2, %s, s%d offen offset:60", ws, sT1)
        A("s_mov_b64 exec, -1")
    A("s_waitcnt vmcnt(0) lgkmcnt(0)\ns_barrier")
    lab = A.newlabel()
    A("s_cmp_lg_u32 s%d, 3\ns_cbranch_scc1 %s", sW, lab)
    A("v_mov_b32 v%d, 0\nv_mov_b32 v%d, 64\ns_mov_b64 exec, 1\nbuffer_store_dword v%d, v%d, %s, s%d offen sc1\ns_mov_b64 exec, -1", t0, t1, t1, t0, ws, sFCHo)
    A.label(lab)

def gen_chain_only(timing=True, opt={}):
    A = Asm()
    K = "chain_kernel"
    emit_common_prologue(A)
    A("s_cmp_ge_u32 s%d, 4\ns_cbranch_scc1 L_end", sT3)
    A("s_cmp_ge_u32 s%d, 32\ns_cbranch_scc1 L_end", sJ)
    A("s_lshr_b32 s%d, s%d, 1\ns_and_b32 s%d, s%d, 1", sB, sT3, sX, sT3)
    emit_chain(A, timing=timing, opt=opt)
    A.label("L_end")
    A("s_endpgm")
    emit_stubs(A, "L_abort")
    A.label("L_abort")
    emit_abort(A)
    return build_file([(K, 256, 256, 163840)], [(K, A, 512, 102, 256)])

if __name__ == "__main__":
    base = dict(nready=128, noflags=1)
    open("chain_t.s", "w").write(gen_chain_only(True, base))
    open("chain_r.s", "w").write(gen_chain_only(True, dict(base, rt=1)))
    import sys
    for i, arg in enumerate(sys.argv[1:]):
        open("chain_v%d.s" % i, "w").write(gen_chain_only(True, dict(base, **eval("dict(%s)" % arg))))
```

```python
NSEG = 64
HS = 64*12288 + 4352
HM = 64*3072 + 1280
KX_OFF = 0
VX_OFF = KX_OFF + 64*HS
OX_OFF = VX_OFF + 64*HS
KM_OFF = OX_OFF + 2*64*32*12288
VM_OFF = KM_OFF + 64*HM
RING_OFF = VM_OFF + 64*HM
REC = 2048
R_SC = 0
R_PB = 64*REC
R_XPL = R_PB + 64*10240
R_XPR = R_XPL + 2*10240
SLOT = R_XPR + 2*10240
RING = 3
FLAG_OFF = RING_OFF + 2*RING*SLOT
F_KV = FLAG_OFF
F_CH = F_KV + 128*128
XR_OFF = F_CH + 128*128
F_END = XR_OFF + 2*64*20480
WOF_OFF = 184*1024*1024
PART_OFF = 208*1024*1024
SCRATCH_OFF = 180*1024*1024
DBG_OFF = 202*1024*1024
L_MEM = 0
MEM_RS = 1344
L_SCO = L_MEM
L_PSC = L_MEM + 2048
L_VMI = 38976
L_Q = L_MEM + 8*MEM_RS
QK_RS = 224
L_K = L_Q + 8*QK_RS
L_KVB = L_K + 8*QK_RS
L_KB = 16384
L_VB = 32768
L_BCAST = 38912
L_WV = 40960

assert F_END < SCRATCH_OFF and SCRATCH_OFF + 256*16384 <= WOF_OFF and WOF_OFF + 2*192*40960 < DBG_OFF
D_TICKET = 0
D_CHRDY = 32
D_READY = 40
D_QUEUE = 44
D_Q8 = 224
D_WOF = 48
D_FO = 64
D_SK = 192
import os
SPLIT = eval(os.environ.get('SPLIT', '[1]*8 + [4]*5 + [8]*3'))
FIRST_SPLIT = 8
QA_U = int(os.environ.get('QA_U', 6))
```

```python
import sys
from asmlib import *
from layout import *
import chain, bulk
from chain import sexpr, sW, sB, sX, sJ, sH, sT0, sT1, sT2, sT3, WS

def gen(opt={}, listform=False, prof=False):
    A = Asm(); K = KNAME + "_kernel"
    chain.emit_common_prologue(A)
    def stamp(i):
        if not prof: return
        A("s_memrealtime s[96:97]\ns_waitcnt lgkmcnt(0)\ns_mov_b64 exec, 1\nv_mov_b32 v1, s96\nv_mov_b32 v2, 0")
        sexpr(A, 98, DBG_OFF+131072, (256, 2), (64, sW), tmp=99)
        A("buffer_store_dword v1, v2, %s, s98 offen offset:%d\ns_mov_b64 exec, -1\ns_nop 1", WS, 4*i)
    A("s_mov_b32 s%d, s%d\ns_mov_b32 s%d, s%d", bulk.sXCD, sT3, bulk.sJJ, sJ)
    stamp(0)
    A("s_cmp_ge_u32 s%d, 32\ns_cbranch_scc1 L_end", sJ)
    A("s_cmp_ge_u32 s%d, 4\ns_cbranch_scc1 L_bulk", sT3)
    A("s_lshr_b32 s%d, s%d, 1\ns_and_b32 s%d, s%d, 1", sB, sT3, sX, sT3)
    chain.emit_chain(A, timing=False, opt=opt)
    stamp(1)
    A("s_mov_b32 s%d, 0\ns_branch L_op", bulk.sIT)
    A.label("L_bulk")
    A("s_bfe_u32 s%d, s%d, 0x10001\ns_and_b32 s%d, s%d, 1\ns_lshr_b32 s%d, s%d, 1", sB, sT3, sT1, sT3, sT2, sJ)
    sexpr(A, sH, 0, (16, sT1), (1, sT2))
    A("s_and_b32 s%d, s%d, 1", bulk.sMAT, sJ)
    sexpr(A, sT1, F_KV, (32*256, sB), (256, sH), (128, bulk.sMAT))
    lab = A.newlabel()
    A("s_cmp_lg_u32 s%d, 0\ns_cbranch_scc1 %s", sW, lab)
    A("v_mov_b32 v1, 0\nv_mov_b32 v2, 1\ns_mov_b64 exec, 1\nbuffer_store_dword v1, v1, %s, s%d offen sc1\ns_waitcnt vmcnt(0)", WS, sT1)
    A("buffer_atomic_add v2, v1, s[12:15], 0 offen offset:%d\ns_mov_b64 exec, -1", D_READY)
    A.label(lab)
    bulk.emit_kv(A)
    stamp(2)
    A("s_cmp_eq_u32 s%d, 0\ns_cbranch_scc1 L_qa", bulk.sMAT)
    bulk.emit_wof(A)
    stamp(4)
    A.label("L_qa")
    A("v_mov_b32 v1, 0")
    bulk.dbg_wait(A, None, D_READY, 256, 1, 2)
    bulk.emit_qa(A)
    stamp(3)
    A("s_mov_b32 s%d, s%d", bulk.sIT, bulk.sMAT)
    A.label("L_op")
    bulk.emit_op(A, prof)
    stamp(5)
    A.label("L_end")
    A("s_endpgm")
    chain.emit_stubs(A, "L_abort")
    A.label("L_abort")
    chain.emit_abort(A)
    txt = build_file([(K, 256, 256, 163840)], [(K, A, 512, 102, 256)])
    if not listform: txt = txt.replace("; @launch kernel=%s grid" % K, "; @launch grid")
    return txt

if __name__ == "__main__":
    open("cdna_kernels/%s.s" % KNAME, "w").write(gen())
    open("gen/%s" % (sys.argv[1] if len(sys.argv) > 1 else "all_l.s"), "w").write(gen(listform=True, prof=True))
```

```python
from asmlib import *
from layout import *
from chain import wait_flags, sexpr, spin_stub, sW, sB, sH, sT0, sT1, sT2, sT3, WS, VAlloc, f32bits, sSPIN
import math

sMAT = 18
sXO = 34
sXB = 35
sSEG = 36
sST0, sST1 = 37, 38
sFLG = 39
sG0, sL0, sG1 = 40, 41, 42
sKA = 88
X_BUF = 40960
L_X = 0
L_QI = 5*20480

def load_w(A, ptr_off, tag):
    vD = [1, 2, 3]; vTR = 4; t0, t1, t2, vN, vG = 5, 6, 7, 8, 9
    A("s_mul_i32 s%d, s%d, 56\ns_add_u32 s%d, s0, s%d\ns_addc_u32 s%d, s1, 0", sT0, sB, sKA, sT0, sKA+1)
    ptr_off(A)
    A("s_mov_b32 s10, %d\ns_mov_b32 s11, 0x20000", 640*6144*2)
    A("v_and_b32 v%d, 15, v0\nv_lshrrev_b32 v%d, 4, v0", vN, vG)
    sexpr(A, sT1, 0, (384, sH), (32*12288, sW))
    for i in range(3):
        A("v_add_u32 v%d, %d, v0\nv_mul_u32_u24 v%d, 171, v%d\nv_lshrrev_b32 v%d, 12, v%d", t0, 64*i, t1, t0, t1, t1)
        A("v_mul_u32_u24 v%d, 24, v%d\nv_sub_u32 v%d, v%d, v%d", t2, t1, t2, t0, t2)
        A("v_mul_u32_u24 v%d, 12288, v%d\nv_lshl_add_u32 v%d, v%d, 4, v%d\nv_add_u32 v%d, s%d, v%d", t1, t1, t1, t2, t1, vD[i], sT1, t1)
    A("v_lshrrev_b32 v%d, 2, v%d\nv_lshl_add_u32 v%d, v%d, 3, v%d\nv_mul_u32_u24 v%d, 384, v%d", t0, vN, t0, vG, t0, t0, t0)
    A("v_and_b32 v%d, 3, v%d\nv_lshl_add_u32 v%d, v%d, 3, v%d\ns_mul_i32 s%d, s%d, 96\nv_add_u32 v%d, s%d, v%d", t1, vN, t0, t1, t0, sT1, sW, vTR, sT1, t0)
    sexpr(A, sL0, 0, (12288, sW))
    A("s_waitcnt lgkmcnt(0)")
    def dma(c):
        for i in range(12):
            A("s_mov_b32 s%d, %d\ns_add_u32 m0, s%d, %d", sT0, (c*128 + (i//3)*8)*12288, sL0, (c % 2)*49152 + i*1024)
            A("s_nop 0\nbuffer_load_dwordx4 v%d, s[8:11], s%d offen lds", vD[i % 3], sT0)
    A("s_barrier")
    dma(0); dma(1)
    for c in range(5):
        A("s_waitcnt vmcnt(%d)\ns_barrier", 12 if c < 4 else 0)
        for kk in range(4):
            for t in range(3):
                for hf in range(2):
                    A("ds_read_b64_tr_b16 %s, v%d offset:%d", a(80*t + 4*(4*c+kk) + 2*hf, 2), vTR, (32*kk + 4*hf)*384 + 32*t)
        A("v_%s_u32 v%d, 49152, v%d", "add" if c % 2 == 0 else "subrev", vTR, vTR)
        A("s_waitcnt lgkmcnt(0)\ns_barrier")
        if c + 2 < 5: dma(c+2)

OPT = {"il": 1}
class VM:
    def __init__(self, A): self.A = A; self.ops = []; self.waits = []
    def op(self, tag, n=1): self.ops += [tag]*n
    def wait(self, needs):
        self.A("s_waitcnt vmcnt(@@)")
        self.waits.append((len(self.A.lines)-1, len(self.ops), needs))
    def resolve(self):
        n = len(self.ops)
        for line, p, needs in self.waits:
            best = 63
            for tag, back in needs:
                idx = [i for i, t in enumerate(self.ops) if t == tag and (back > 0 or i < p)]
                q = max(idx)
                best = min(best, p - q - 1 + back*n)
            assert best >= 0
            self.A.lines[line] = self.A.lines[line].replace("@@", str(best))

HB = 20480
class Proj:
    def __init__(self, A, vXD, vXr, vXo, vXF, vACC, vTmp, NR=6):
        self.A, self.vXD, self.vXr, self.vXF, self.vACC, self.vTmp = A, vXD, vXr, vXF, vACC, vTmp; self.NR = NR; self.vXo = vXo
    def setup(self, x0=None):
        A = self.A
        A("s_load_dwordx2 s[8:9], s[%d:%d], 0", sKA, sKA+1)
        A("s_mov_b32 s10, %d", 2048*1280)
        A("v_lshrrev_b32 v5, 3, v0\nv_xor_b32 v6, v5, v0\nv_and_b32 v6, 7, v6\nv_mul_u32_u24 v5, 1280, v5\nv_lshl_add_u32 v5, v6, 4, v5")
        sexpr(A, sT1, 0, (8*1280, sW))
        A("v_add_u32 v%d, s%d, v5", self.vXD, sT1)
        sexpr(A, sL0, L_X, (5120, sW))
        r = self.vXr
        A("v_lshrrev_b32 v5, 4, v0\nv_xor_b32 v5, v5, v0\nv_and_b32 v5, 7, v5\nv_and_b32 v6, 7, v0\nv_lshlrev_b32 v6, 7, v6\nv_lshl_add_u32 v5, v5, 4, v6")
        A("v_bfe_u32 v6, v0, 3, 1\nv_mul_u32_u24 v6, 5120, v6\nv_add_u32 v%d, v5, v6\nv_add_u32 v%d, %d, v%d", r, r+1, HB, r)
        A("v_xor_b32 v%d, 64, v%d\nv_xor_b32 v%d, 64, v%d", self.vXo, r, self.vXo+1, r+1)
        A("s_mov_b32 s%d, %s\ns_mov_b32 s%d, s%d", sXO, "0" if x0 is None else "s%d" % x0, sXB, sL0)
        A("s_waitcnt lgkmcnt(0)")
        for j in range(self.NR-2):
            for f in self.dma_fillers(j % 2): A(f)
        A("s_waitcnt vmcnt(0)\ns_barrier")
        self.rd(0, 0); self.rd(0, 1)
    def dma_fillers(self, kh):
        out = []
        for i in range(5):
            t = "s_add_u32 m0, s%d, %d\ns_nop 0\nbuffer_load_dwordx4 v%d, s[8:11], s%d offen offset:%d lds" % (sXB, i*1024 - i*128, self.vXD, sXO, i*128)
            if i == 4:
                t += "\ns_add_u32 s%d, s%d, %d\ns_add_u32 s%d, s%d, %d" % (sXO, sXO, 640 if kh == 0 else 32*1280 - 640, sXB, sXB, HB)
                t += "\ns_add_u32 s%d, s%d, %d\ns_cmp_ge_u32 s%d, s%d\ns_cselect_b32 s%d, s%d, s%d" % (sT0, sL0, self.NR*HB, sXB, sT0, sXB, sL0, sXB)
            out.append(t)
        return out
    def rd(self, kh, k, only=None):
        for tt in range(2):
            if only is not None and tt != only: continue
            self.A("ds_read_b128 %s, v%d offset:%d", v(self.vXF + 8*((10*kh+k) % 4) + 4*tt, 4), (self.vXr if k % 2 == 0 else self.vXo) + kh, tt*10240 + (k//2)*1024)
    def half(self, kh, w_is_a, fill, vm, xtag, needs, gap=None):
        A = self.A
        dm = self.dma_fillers((kh + self.NR) % 2)
        if gap is not None: dm[4] += "\ns_add_u32 s%d, s%d, s%d" % (sXO, sXO, gap)
        for k in range(10):
            if k == 8:
                vm.wait(needs)
                A("s_barrier")
                r, t = self.vXr + kh, self.vTmp
                A("v_add_u32 v%d, %d, v%d\nv_cmp_le_u32 vcc, %d, v%d\nv_subrev_u32 v%d, %d, v%d\nv_cndmask_b32 v%d, v%d, v%d, vcc", r, 2*HB, r, self.NR*HB, r, t, self.NR*HB, r, r, r, t)
                A("v_xor_b32 v%d, 64, v%d", self.vXo + kh, r)
            nk = (kh, k+2) if k < 8 else (1-kh, k-8)
            if not OPT.get("il"): self.rd(*nk)
            A("s_waitcnt lgkmcnt(%d)", 4 if not OPT.get("il") else 2)
            kk = 10*kh + k
            for t in range(3):
                for tt in range(2):
                    acc = v(self.vACC + 8*t + 4*tt, 4); w = a(80*t + 4*kk, 4); x = v(self.vXF + 8*(kk % 4) + 4*tt, 4)
                    A("v_mfma_f32_16x16x32_bf16 %s, %s, %s, %s", acc, w if w_is_a else x, x if w_is_a else w, "0" if kk == 0 else acc)
                    if OPT.get("il") and tt == 0 and t < 2: self.rd(*nk, only=t)
                    if t == 2 and tt == 0 and k < 5:
                        A(dm[k]); vm.op(xtag)
            if k in fill:
                A(fill[k][0])
                for tag, n in fill[k][1]: vm.op(tag, n)

def emit_kv(A):
    ws = WS
    def ptr(A):
        A("s_lshl_b32 s%d, s%d, 3\ns_add_u32 s%d, s%d, s%d\ns_addc_u32 s%d, s%d, 0", sT0, sMAT, 90, sKA, sT0, 91, sKA+1)
        A("s_load_dwordx2 s[8:9], s[90:91], 24")
    load_w(A, ptr, "kv")
    vXD, vXr, vL16, vZ, vF, vTmp = 1, 2, 4, 10, 11, 12
    vXF, vACC, vO = 16, 48, 72
    P = Proj(A, vXD, vXr, 14, vXF, vACC, vTmp)
    A("v_lshlrev_b32 v%d, 4, v0\nv_mov_b32 v%d, 0\ns_mov_b32 s%d, 0", vL16, vZ, sSEG)
    sexpr(A, sT2, 0, (32, sB), (1, sH))
    sexpr(A, sFLG, F_KV, (256, sT2), (128, sMAT))
    A("s_lshr_b32 s%d, s%d, 1\ns_and_b32 s%d, s%d, 1", sT1, sW, sT3, sW)
    sexpr(A, sST0, KX_OFF-12288, (HS, sT2), (6144, sT1), (1024, sT3))
    sexpr(A, sST1, KX_OFF+4096-12288, (HS, sT2), (6144, sT1), (1024, sT3))
    A("s_cmp_eq_u32 s%d, 0\ns_cbranch_scc1 L_kv_st", sMAT)
    sexpr(A, sST0, VX_OFF-12288, (HS, sT2), (3072, sW))
    A.label("L_kv_st")
    A("s_mov_b32 s%d, s%d\ns_mov_b32 s%d, s%d", sG0, sST0, sG1, sST1)
    sexpr(A, sST0, SCRATCH_OFF, (16384, 2))
    A("s_mov_b32 s%d, s%d", sST1, sST0)
    P.setup()
    A("s_cmp_eq_u32 s%d, 1\ns_cbranch_scc1 L_kv1_loop", sMAT)
    for mat in range(2):
        L = "L_kv%d" % mat
        NST = 3
        def stores():
            if mat == 0:
                o = ["buffer_store_dwordx4 %s, v%d, %s, s%d offen offset:%d sc1" % (v(vO+4*i, 4), vL16, ws, sST0 if i < 2 else sST1, 2048 if i == 1 else 0) for i in range(3)]
                return [o[0] + "\n" + o[1], o[2]]
            o = ["buffer_store_dwordx4 %s, v%d, %s, s%d offen offset:%d sc1" % (v(vO+4*t, 4), vL16, ws, sST0, 1024*t) for t in range(3)]
            return [o[0] + "\n" + o[1], o[2]]
        A.label(L+"_loop")
        st = stores()
        l3 = A.newlabel()
        vm = VM(A)
        P.half(0, mat == 0, {5: (st[0], [("S", 2)]), 6: (st[1], [("S", NST-2)])}, vm, "X0", [("X1", 2)])
        flag = ("s_cmp_lg_u32 s%d, 0\ns_cbranch_scc1 %s\ns_cmp_lt_u32 s%d, 2\ns_cbranch_scc1 %s\n" % (sW, l3, sSEG, l3) +
                "s_sub_u32 s%d, s%d, 1\nv_mov_b32 v%d, s%d\ns_mov_b64 exec, 1\n" % (sT0, sSEG, vF, sT0) +
                "buffer_store_dword v%d, v%d, %s, s%d offen sc1\ns_mov_b64 exec, -1\n%s:" % (vF, vZ, ws, sFLG, l3))
        P.half(1, mat == 0, {8: (flag, [])}, vm, "X1", [("X0", 1), ("S", 1)])
        vm.resolve()
        A("s_cmp_eq_u32 s%d, 0\ns_cselect_b32 s%d, s%d, s%d\ns_cselect_b32 s%d, s%d, s%d", sSEG, sST0, sG0, sST0, sST1, sG1, sST1)
        A("s_add_u32 s%d, s%d, 12288\ns_add_u32 s%d, s%d, 12288\ns_add_u32 s%d, s%d, 1", sST0, sST0, sST1, sST1, sSEG, sSEG)
        A("s_nop 1")
        if mat == 0:
            for t in range(3):
                for tt in range(2):
                    for h2 in range(2):
                        A("v_cvt_pk_bf16_f32 v%d, v%d, v%d", vO + (4*tt + 2*t if t < 2 else 8 + 2*tt) + h2, vACC + 8*t + 4*tt + 2*h2, vACC + 8*t + 4*tt + 2*h2 + 1)
        else:
            for t in range(3):
                for i in range(4):
                    A("v_cvt_pk_bf16_f32 v%d, v%d, v%d", vO + 4*t + i, vACC + 8*t + 2*i, vACC + 8*t + 2*i + 1)
        A("s_cmp_lt_u32 s%d, 64\ns_cbranch_scc1 %s_loop", sSEG, L)
        for x in stores(): A(x)
        if mat == 0: A("s_branch L_kv_fin")
    A.label("L_kv_fin")
    A("s_waitcnt vmcnt(0) lgkmcnt(0)\ns_barrier")
    lab = A.newlabel()
    A("s_cmp_lg_u32 s%d, 0\ns_cbranch_scc1 %s", sW, lab)
    A("v_mov_b32 v%d, 64\ns_mov_b64 exec, 1", vF)
    A("buffer_store_dword v%d, v%d, %s, s%d offen sc1\ns_mov_b64 exec, -1", vF, vZ, ws, sFLG)
    A.label(lab)


sUN = 36
sKXa, sKMa, sOXa = 37, 38, 39
sAV = 43
sSC2 = 44
sFCH = 45
sKXb, sKXc, sVXa, sVXb, sVXc, sVMa = 46, 47, 48, 49, 50, 51
sGAP, sSTR, sPREV = 56, 57, 58

def merge(A, M, Vv):
    n = len(M); done = 0
    for i, m in enumerate(M):
        A(m)
        upto = (len(Vv)*(i+1))//n
        for x in Vv[done:upto]:
            if callable(x): x()
            else: A(x)
        done = upto

def softmax_stream(vS, nv, vP, vP0, bias, t0, t1, t2, sSC):
    o = ["s_nop 7"]
    o += bias
    r = list(range(vS, vS+nv))
    o.append("v_max3_f32 v%d, v%d, v%d, v%d" % (t0, r[0], r[1], r[2]))
    o.append("v_max3_f32 v%d, v%d, v%d, v%d" % (t1, r[3], r[4], r[5]))
    o.append("v_max3_f32 v%d, v%d, v%d, v%d" % (t0, t0, r[6], r[7]))
    if nv == 12:
        o.append("v_max3_f32 v%d, v%d, v%d, v%d" % (t1, t1, r[8], r[9]))
        o.append("v_max3_f32 v%d, v%d, v%d, v%d" % (t0, t0, r[10], r[11]))
    o += ["v_max_f32 v%d, v%d, v%d" % (t2, t0, t1), "v_max_f32 v%d, v%d, v%d" % (t0, t0, t1), "s_nop 1", "v_permlane32_swap_b32 v%d, v%d" % (t0, t2)]
    o += ["v_max_f32 v%d, v%d, v%d" % (t1, t0, t2), "v_max_f32 v%d, v%d, v%d" % (t0, t0, t2), "s_nop 1", "v_permlane16_swap_b32 v%d, v%d" % (t0, t1)]
    o += ["v_max_f32 v%d, v%d, v%d" % (t0, t0, t1), "v_mul_f32 v%d, s%d, v%d" % (t0, sSC, t0)]
    o += ["v_fma_f32 v%d, v%d, s%d, -v%d" % (x, x, sSC, t0) for x in r]
    o += ["v_exp_f32 v%d, v%d" % (x, x) for x in r]
    o += ["v_cvt_pk_bf16_f32 v%d, v%d, v%d" % (vP0+i, vS+2*i, vS+2*i+1) for i in range(2)]
    o += ["v_cvt_pk_bf16_f32 v%d, v%d, v%d" % (vP+i, vS+4+2*i, vS+5+2*i) for i in range((nv-4)//2)]
    if nv == 8: o += ["v_mov_b32 v%d, 0" % (vP+2), "v_mov_b32 v%d, 0" % (vP+3)]
    pk = lambda d, x: "v_pk_add_f32 %s, %s, %s" % (v(d,2), v(d,2), v(x,2))
    o += [pk(vS, vS+2), pk(vS+4, vS+6)]
    if nv == 12: o += [pk(vS+8, vS+10), pk(vS, vS+8)]
    o += [pk(vS, vS+4), "v_add_f32 v%d, v%d, v%d" % (t0, vS, vS+1), "v_add_f32 v%d, v%d, v%d" % (t1, vS, vS+1), "s_nop 1",
          "v_permlane32_swap_b32 v%d, v%d" % (t0, t1), "v_add_f32 v%d, v%d, v%d" % (t2, t0, t1), "v_add_f32 v%d, v%d, v%d" % (t0, t0, t1), "s_nop 1",
          "v_permlane16_swap_b32 v%d, v%d" % (t0, t2), "v_add_f32 v%d, v%d, v%d" % (t0, t0, t2), "v_rcp_f32 v%d, v%d" % (vS, t0), "s_nop 1"]
    return o

def emit_qa(A, nunits=16, timing=False):
    ws = WS
    load_w(A, lambda A: A("s_load_dwordx2 s[8:9], s[%d:%d], 16", sKA, sKA+1), "qa")
    vXD, vXr, vL16, vZ, vTmp = 1, 2, 4, 10, 12
    pKM, pVM, vQw, vQw2, vQr, vFL = 5, 6, 7, 8, 9, 11
    t0, t1, t2 = 13, 14, 15
    vXF, vACC, vK, vV, vVm = 16, 48, 72, 144, 192
    vB0, vDG, vS0, vS1, vPa, vPb, vP0a, vP0b = 216, 220, 224, 232, 244, 248, 252, 254
    vN, vG = vS0, vS0+1
    P = Proj(A, vXD, vXr, 218, vXF, vACC, vTmp, NR=5)
    A("s_mul_i32 s%d, s%d, %d", sGAP, sMAT, 128*1280)
    P.setup(sGAP)
    A("v_lshlrev_b32 v%d, 4, v0\nv_mov_b32 v%d, 0\ns_mov_b32 s%d, s%d\ns_mov_b32 s%d, 0\ns_mov_b32 s%d, -1", vL16, vZ, sUN, sMAT, sAV, sPREV)
    A("v_and_b32 v%d, 15, v0\nv_lshrrev_b32 v%d, 4, v0\nv_lshlrev_b32 v%d, 7, v0", vN, vG, vFL)
    A("v_and_b32 v%d, 7, v%d\nv_lshlrev_b32 v%d, 4, v%d\nv_lshl_add_u32 v%d, v%d, 7, v%d", t0, vN, t0, t0, pKM, vG, t0)
    A("v_and_b32 v%d, 31, v0\nv_lshlrev_b32 v%d, 4, v%d", t0, pVM, t0)
    A("s_lshr_b32 s%d, s%d, 1\ns_and_b32 s%d, s%d, 1", sT1, sW, sT3, sW)
    sexpr(A, sT2, L_QI, (3072, sT1), (1024, sT3)); A("v_add_u32 v%d, s%d, v%d", vQw, sT2, vL16)
    sexpr(A, sT2, L_QI+2048, (3072, sT1), (8, sT3)); A("v_add_u32 v%d, s%d, v%d", vQw2, sT2, vL16)
    sexpr(A, sT2, L_QI, (12288, sW)); A("v_add_u32 v%d, s%d, v%d", vQr, sT2, vL16)
    A("v_mov_b32 v%d, 0xf149f2ca\nv_cmp_lt_u32 vcc, 1, v%d\ns_nop 1\nv_cndmask_b32 v%d, 0, v%d, vcc", t1, vG, vB0, t1)
    for r in range(4):
        A("v_lshl_add_u32 v%d, v%d, 2, %d\nv_cmp_gt_u32 vcc, v%d, v%d\ns_nop 1\nv_cndmask_b32 v%d, 0, v%d, vcc", t0, vG, r, t0, vN, vDG+r, t1)
    A("s_mov_b32 s%d, 0x%08x", sSC2, f32bits((192 ** -0.5) * math.log2(math.e)))
    sexpr(A, sT2, 0, (32, sB), (1, sH))
    sexpr(A, sKXa, KX_OFF, (HS, sT2), (12288, sW), (4*12288, sMAT))
    sexpr(A, sKMa, KM_OFF, (HM, sT2), (3072, sW), (4*3072, sMAT))
    sexpr(A, sOXa, OX_OFF, (128*32*6144, sB), (2*32*6144, sW), (6144, sH), (8*32*6144, sMAT))
    sexpr(A, sFCH, F_CH, (256, sT2))
    sexpr(A, sT1, F_KV, (256, sT2)); A("s_mov_b32 s%d, 64", sT2)
    wait_flags(A, vFL, t0, sT1, sT2, 3)
    def ts(i):
        if timing: A("s_memtime s[%d:%d]", 60+2*i, 61+2*i)
    if timing:
        for i in range(88, 102): A("s_mov_b32 s%d, 0", i)
    A.label("L_qa_loop")
    ts(0)
    A("s_cmp_lt_u32 s%d, %d\ns_cselect_b32 s%d, 2, 1\ns_cselect_b32 s%d, %d, 0", sUN, QA_U, sSTR, sGAP, 128*1280)
    vm = VM(A)
    def ld4(dst, voff, so, off): return "buffer_load_dwordx4 %s, v%d, %s, s%d offen offset:%d sc1" % (v(dst, 4), voff, ws, so, off)
    A("s_add_u32 s%d, s%d, 4096\ns_add_u32 s%d, s%d, 6144", sKXb, sKXa, sKXc, sKXa)
    A("s_add_u32 s%d, s%d, %d\ns_add_u32 s%d, s%d, 4096\ns_add_u32 s%d, s%d, 8192", sVXa, sKXa, VX_OFF-KX_OFF, sVXb, sVXa, sVXc, sVXa)
    A("s_add_u32 s%d, s%d, %d\ns_add_u32 s%d, s%d, 10240", sVMa, sKMa, VM_OFF-KM_OFF, sG0, sKXa)
    kx = []
    for u in range(2):
        for t in range(2):
            for kap in range(2): kx.append(ld4(vK + 24*(1+t) + 4*(3*u+kap), vL16, sKXa if u == 0 else sKXc, 2048*t + 1024*kap))
            kx.append(ld4(vK + 24*(1+t) + 4*(3*u+2), vL16, sKXb if u == 0 else sG0, 1024*t))
    vx = [ld4(vV + 4*tau, vL16, (sVXa, sVXb, sVXc)[tau//4], 1024*(tau % 4)) for tau in range(12)]
    mm = [ld4(vK + 4*k6, pKM, sKMa, 512*k6) for k6 in range(6)] + [ld4(vVm + 4*p, pVM, sVMa, 512*p) for p in range(6)]
    def spread(lst, ks, tag):
        out = {}
        n = (len(lst) + len(ks) - 1)//len(ks)
        for i, k in enumerate(ks):
            part = lst[i*n:(i+1)*n]
            if part: out[k] = ("\n".join(part), [(tag, len(part))])
        return out
    l3 = A.newlabel()
    oflag = ("s_cmp_lg_u32 s%d, 0\ns_cbranch_scc1 %s\ns_cmp_eq_u32 s%d, -1\ns_cbranch_scc1 %s\n" % (sW, l3, sPREV, l3) +
             "s_lshl_b32 s%d, s%d, 4\ns_add_u32 s%d, s%d, s%d\ns_lshl_b32 s%d, s%d, 7\ns_add_u32 s%d, s%d, %d\n" % (sT1, sB, sT0, sPREV, sT1, sT0, sT0, sT0, sT0, FO_OFF) +
             "v_mov_b32 v%d, 1\ns_mov_b64 exec, 1\nbuffer_atomic_add v%d, v%d, %s, s%d offen\ns_mov_b64 exec, -1\n%s:" % (t0, t0, vZ, ws, sT0, l3))
    def qcvt():
        A("s_nop 1")
        for t in range(3):
            for tt in range(2):
                for h2 in range(2):
                    A("v_cvt_pk_bf16_f32 v%d, v%d, v%d", vS0 + (4*tt + 2*t if t < 2 else 8 + 2*tt) + h2, vACC + 8*t + 4*tt + 2*h2, vACC + 8*t + 4*tt + 2*h2 + 1)
    def qwr(sg, tt):
        return "ds_write_b128 v%d, %s offset:%d\nds_write_b64 v%d, %s offset:%d" % (vQw, v(vS0+4*tt, 4), (2*sg+tt)*6144, vQw2, v(vS0+8+2*tt, 2), (2*sg+tt)*6144)
    lds = [(x, "K") for x in kx + vx]
    fills = {hj: {} for hj in range(8)}
    slots = [(hj, k) for hj in range(1, 6) for k in range(5, 10)]
    for (x, tag), (hj, k) in zip(lds, slots): fills[hj][k] = (x, [(tag, 1)])
    mslots = [(hj, k) for hj in (6, 7) for k in range(4, 10)]
    for x, (hj, k) in zip(mm, mslots):
        lb = A.newlabel()
        fills[hj][k] = ("s_cmp_lt_u32 s%d, s%d\ns_cbranch_scc1 %s\n%s\n%s:" % (sAV, sG1, lb, x, lb), [])
    fills[1][8] = (fills[1][8][0] + "\n" + oflag, fills[1][8][1])
    for hj in (2, 4, 6):
        for tt in range(2): fills[hj][tt] = (qwr(hj//2 - 1, tt), [])
    for hj in range(8):
        if hj == 6:
            A("s_lshl_b32 s%d, s%d, 2\ns_add_u32 s%d, s%d, s%d\ns_add_u32 s%d, s%d, 1", sG1, sUN, sG1, sG1, sW, sG1, sG1)
            wait_flags(A, vFL, t0, sFCH, sG1, 3, cache_sgpr=sAV, once=True)
        src = hj + 1 - 3
        needs = [("X%d" % (src % 8), 1 if src < 0 else 0)]
        if hj == 1: needs.append(("O", 1))
        P.half(hj % 2, True, fills[hj], vm, "X%d" % hj, needs, gap=sGAP if hj == 4 else None)
        if hj % 2 == 1: qcvt()
        ts(hj+1)
    for tt in range(2): A(qwr(3, tt))
    lb = A.newlabel()
    A("s_cmp_ge_u32 s%d, s%d\ns_cbranch_scc1 %s", sAV, sG1, lb)
    wait_flags(A, vFL, t0, sFCH, sG1, 3, cache_sgpr=sAV)
    for x in mm: A(x)
    A.label(lb)
    A("s_waitcnt lgkmcnt(0)\ns_barrier")
    vQ = vACC
    def qrd(qh):
        for k6 in range(6): A("ds_read_b128 %s, v%d offset:%d", v(vQ+4*k6, 4), vQr, 6144*qh + 1024*k6)
    qrd(0)
    A("s_waitcnt vmcnt(0)")
    ts(9)
    for u in range(2):
        for i in range(2): A("v_swap_b32 v%d, v%d", vK + 24 + 4*(3*u+2) + 2 + i, vK + 48 + 4*(3*u+2) + i)
    mf = "v_mfma_f32_16x16x32_bf16 %s, %s, %s, %s"
    for k6 in range(6):
        A("s_waitcnt lgkmcnt(%d)", 5-k6)
        for tl in range(2):
            A(mf, v(vS0+4*tl, 4), v(vK+24*tl+4*k6, 4), v(vQ+4*k6, 4), "0" if k6 == 0 else v(vS0+4*tl, 4))
    qrd(1)
    b0 = lambda S: ["v_pk_add_f32 %s, %s, %s op_sel_hi:[1,0]" % (v(S+2*h2,2), v(S+2*h2,2), v(vB0,2)) for h2 in range(2)]
    dg = lambda S: ["v_pk_add_f32 %s, %s, %s" % (v(S+2*h2,2), v(S+2*h2,2), v(vDG+2*h2,2)) for h2 in range(2)]
    M = []
    for k6 in range(6):
        for tl in range(3):
            M.append(("s_waitcnt lgkmcnt(%d)\n" % (5-k6) if tl == 0 else "") + mf % (v(vS1+4*tl, 4), v(vK+24*tl+4*k6, 4), v(vQ+4*k6, 4), "0" if k6 == 0 else v(vS1+4*tl, 4)))
    for x in softmax_stream(vS0, 8, vPa, vP0a, b0(vS0)+dg(vS0+4), t0, t1, t2, sSC2)[:8]: A(x)
    merge(A, M, softmax_stream(vS0, 8, vPa, vP0a, b0(vS0)+dg(vS0+4), t0, t1, t2, sSC2)[8:])
    oreg = [[vK + 4*t for t in range(12)], [vK + 48 + 4*t for t in range(6)] + [vACC + 4*t for t in range(6)]]
    def pv(qh, vP, vP0):
        o = []
        for t in range(12):
            o.append(mf % (v(oreg[qh][t],4), v(vV+4*t,4), v(vP,4), "0"))
        for t in range(12):
            o.append("v_mfma_f32_16x16x16_bf16 %s, %s, %s, %s" % (v(oreg[qh][t],4), v(vVm+2*t,2), v(vP0,2), v(oreg[qh][t],4)))
        return o
    def ofin(qh, vS):
        o = ["s_nop 7"]
        for kap in range(6):
            a0, a1 = oreg[qh][2*kap], oreg[qh][2*kap+1]
            for i, src in enumerate((a0, a0+2, a1, a1+2)):
                o.append("v_pk_mul_f32 %s, %s, %s op_sel_hi:[1,0]" % (v(src,2), v(src,2), v(vS,2)))
                o.append("v_cvt_pk_bf16_f32 v%d, v%d, v%d" % (a0+i, src, src+1))
            def st(kap=kap, a0=a0):
                A("buffer_store_dwordx4 %s, v%d, %s, s%d offen offset:%d sc1", v(a0,4), vL16, ws, (sOXa if kap < 4 else sT1) if qh == 0 else (sG0 if kap < 4 else sG1), 1024*(kap % 4))
                vm.op("O")
            o.append(st)
        return o
    A("s_add_u32 s%d, s%d, 4096\ns_add_u32 s%d, s%d, %d\ns_add_u32 s%d, s%d, %d", sT1, sOXa, sG0, sOXa, 32*6144, sG1, sOXa, 32*6144+4096)
    merge(A, pv(0, vPa, vP0a), softmax_stream(vS1, 12, vPb, vP0b, b0(vS1)+dg(vS1+8), t0, t1, t2, sSC2))
    ts(10)
    merge(A, pv(1, vPb, vP0b), ofin(0, vS0))
    ts(11)
    for x in ofin(1, vS1):
        if callable(x): x()
        else: A(x)
    vm.resolve()
    if timing:
        ts(12)
        A("s_waitcnt lgkmcnt(0)")
        for i in range(12): A("s_sub_u32 s%d, s%d, s%d\ns_add_u32 s%d, s%d, s%d", sT0, 62+2*i, 60+2*i, 88+i, 88+i, sT0)
    for r_, c_ in ((sKXa, 4*12288), (sKMa, 4*3072), (sOXa, 8*32*6144)):
        A("s_mul_i32 s%d, s%d, %d\ns_add_u32 s%d, s%d, s%d", sT0, sSTR, c_, r_, r_, sT0)
    A("s_mov_b32 s%d, s%d\ns_add_u32 s%d, s%d, s%d", sPREV, sUN, sUN, sUN, sSTR)
    A("s_cmp_eq_u32 s%d, 0\ns_cselect_b32 s%d, %d, %d", sMAT, sT0, nunits, QA_U)
    A("s_cmp_lt_u32 s%d, s%d\ns_cbranch_scc1 L_qa_loop", sUN, sT0)
    A("s_waitcnt vmcnt(0) lgkmcnt(0)\ns_barrier")
    A(oflag.replace(l3, l3+"b"))
    if timing:
        sexpr(A, sT1, DBG_OFF, (256, 2), (64, sW))
        A("s_mov_b64 exec, 1")
        for i in range(12):
            A("v_mov_b32 v1, s%d\nbuffer_store_dword v1, v%d, %s, s%d offen offset:%d\ns_nop 1", 88+i, vZ, ws, sT1, 4*i)
        A("v_mov_b32 v1, 1\nbuffer_store_dword v1, v%d, %s, s%d offen offset:60\ns_mov_b64 exec, -1", vZ, ws, sT1)


def dbg_wait(A, byte_off_sgpr, const_off, need, vz, vt, srd="s[12:15]", sleep=8):
    l0 = A.newlabel(); l1 = A.newlabel()
    A("s_cmp_lg_u32 s%d, 0\ns_cbranch_scc1 %s", sW, l1)
    A.label(l0)
    A("buffer_load_dword v%d, v%d, %s, %s offen offset:%d sc1\ns_waitcnt vmcnt(0)", vt, vz, srd, "s%d" % byte_off_sgpr if byte_off_sgpr is not None else "0", const_off)
    A("v_cmp_gt_u32 vcc, %s, v%d\ns_cbranch_vccz %s\ns_sleep %d\ns_branch %s", str(need), vt, l1, sleep, spin_stub(A, l0))
    A.label(l1)
    A("s_barrier")

def emit_wof(A):
    ws = WS
    vD, vTR, vL16, vZ, t0, t1 = 1, 2, 3, 4, 5, 6
    vF = 16
    A("s_load_dwordx2 s[8:9], s[%d:%d], 40", sKA, sKA+1)
    A("s_mov_b32 s10, %d\ns_mov_b32 s11, 0x20000", 6144*1280)
    A("v_lshlrev_b32 v%d, 4, v0\nv_mov_b32 v%d, 0", vL16, vZ)
    A("v_lshrrev_b32 v%d, 2, v0\nv_mul_u32_u24 v%d, 1280, v%d\nv_and_b32 v%d, 3, v0\nv_lshl_add_u32 v%d, v%d, 3, v%d", t0, t0, t0, t1, t0, t1, t0)
    A("s_mul_i32 s%d, s%d, 320\nv_add_u32 v%d, s%d, v%d", sT0, sW, vTR, sT0, t0)
    sexpr(A, sG0, 0, (192*1280, sH), (10240, sW))
    sexpr(A, sL0, 0, (10240, sW))
    sexpr(A, sST0, WOF_OFF, (192*40960, sB), (6*40960, sH), (10240, sW))
    A("s_waitcnt vmcnt(0) lgkmcnt(0)\ns_barrier")
    def dma(k):
        for i in range(10):
            if i % 4 == 0: A("s_add_u32 m0, s%d, %d\ns_add_u32 s%d, s%d, %d", sL0, (k % 3)*40960 + i*1024, sT0, sG0, k*40960 + i*1024)
            A("buffer_load_dwordx4 v%d, s[8:11], s%d offen offset:%d lds", vL16, sT0, (i % 4)*1024)
    dma(0); dma(1)
    for k in range(6):
        A("s_waitcnt vmcnt(%d)\ns_barrier", (10 if k < 5 else 0) + (10 if k > 0 else 0))
        if k + 2 < 6: dma(k+2)
        for ct in range(10):
            for hf in range(2):
                A("ds_read_b64_tr_b16 %s, v%d offset:%d", v(vF + 4*ct + 2*hf, 2), vTR, 16*1280*hf + 32*ct)
        A("v_add_u32 v%d, %d, v%d", vTR, (40960 if k % 3 != 2 else -81920) & 0xffffffff, vTR)
        for ct in range(10):
            if ct % 4 == 0: A("s_add_u32 s%d, s%d, %d", sT0, sST0, k*40960 + ct*1024)
            A("s_waitcnt lgkmcnt(%d)\nbuffer_store_dwordx4 %s, v%d, %s, s%d offen offset:%d sc1", min(15, 18-2*ct), v(vF+4*ct, 4), vL16, ws, sT0, (ct % 4)*1024)
        A("s_nop 1")
    A("s_waitcnt vmcnt(0)\ns_barrier")
    lab = A.newlabel()
    A("s_cmp_lg_u32 s%d, 0\ns_cbranch_scc1 %s", sW, lab)
    A("v_mov_b32 v%d, 1\ns_mov_b64 exec, 1\nbuffer_atomic_add v%d, v%d, s[12:15], 0 offen offset:%d\ns_mov_b64 exec, -1", t0, t0, vZ, D_WOF)
    A.label(lab)

sBLK, sCB, sKS, sSP, sNB, sNB0 = 20, 21, 22, 23, 24, 25
sAO, sAB, sBO0, sBO1, sIT = 34, 35, 36, 37, 38
sXCD, sJJ = 100, 101
sTILE, sPO = 47, 46
def emit_op(A, prof=False):
    ws = WS
    NRA = 6
    vL16, vZ, vAr, vAn, pOUT, t0, t1, t2 = 1, 2, 3, 4, 5, 6, 7, 8
    vE, vAF, vBF = 8, 16, 96
    A("v_lshlrev_b32 v%d, 4, v0\nv_mov_b32 v%d, 0", vL16, vZ)
    A("s_load_dwordx2 s[8:9], s[0:1], 112\ns_mov_b32 s10, %d\ns_mov_b32 s11, 0x20000", 2048*2560)
    A("v_and_b32 v%d, 15, v0\nv_mul_u32_u24 v%d, 2560, v%d\nv_bfe_u32 v%d, v0, 4, 1\nv_lshl_add_u32 v%d, v%d, 5, v%d\nv_lshrrev_b32 v%d, 5, v0\nv_lshl_add_u32 v%d, v%d, 4, v%d", t0, t0, t0, t1, t0, t1, t0, t1, pOUT, t1, t0)
    if prof: A("s_mov_b32 s95, 0")
    dbg_wait(A, None, D_WOF, 64, vZ, t0)
    A("s_lshr_b32 s%d, s%d, 1\ns_and_b32 s%d, s%d, 1", sT1, sW, sT2, sW)
    sexpr(A, sG0, WOF_OFF, (40960, sT1), (5120, sT2))
    sexpr(A, sL0, 0, (5120, sW))
    A("s_cmp_eq_u32 s%d, 0\ns_cbranch_scc1 L_op_next", sIT)
    A("s_bfe_u32 s%d, s%d, 0x10001\ns_and_b32 s%d, s%d, 1\ns_lshr_b32 s%d, s%d, 3\ns_lshl_b32 s%d, s%d, 1\ns_bfe_u32 s%d, s%d, 0x20001", sB, sXCD, sKS, sXCD, sT2, sJJ, sBLK, sT2, sCB, sJJ)
    sexpr(A, sTILE, 0, (16, sB), (4, sT2), (1, sCB))
    sexpr(A, sPO, PART_OFF, (2*163840, sTILE))
    A("s_mov_b32 s%d, 2\ns_mov_b32 s%d, 12\ns_branch L_op4_go", sSP, sNB)
    A.label("L_op_next")
    A("s_waitcnt vmcnt(0) lgkmcnt(0)\ns_barrier")
    if prof:
        A("s_memrealtime s[96:97]\ns_waitcnt lgkmcnt(0)\ns_mov_b64 exec, 1\nv_mov_b32 v%d, s96\ns_min_u32 s95, s95, 9", t0)
        sexpr(A, 98, DBG_OFF+131072+24, (256, 2), (64, sW), (4, 95), tmp=99)
        A("buffer_store_dword v%d, v%d, %s, s98 offen\ns_mov_b64 exec, -1\ns_add_u32 s95, s95, 1", t0, vZ, ws)
    def bcast_atomic(val_text, soff, off, dst, srd="s[12:15]"):
        lab = A.newlabel()
        A("s_cmp_lg_u32 s%d, 0\ns_cbranch_scc1 %s", sW, lab)
        A("v_mov_b32 v%d, %s\ns_mov_b64 exec, 1\nbuffer_atomic_add v%d, v%d, %s, s%d offen offset:%d sc0\nv_mov_b32 v%d, %d\ns_waitcnt vmcnt(0)\nds_write_b32 v%d, v%d\ns_waitcnt lgkmcnt(0)\ns_mov_b64 exec, -1", t0, val_text, t0, vZ, srd, soff, off, t1, NRA*HB, t1, t0)
        A.label(lab)
        A("s_barrier\nv_mov_b32 v%d, %d\nds_read_b32 v%d, v%d\ns_waitcnt lgkmcnt(0)\nv_readfirstlane_b32 s%d, v%d\ns_nop 3", t1, NRA*HB, t0, t1, dst, t0)
    A("s_and_b32 s%d, s%d, 3\ns_lshl_b32 s%d, s%d, 2", sKS, sXCD, sT0, sXCD)
    bcast_atomic("1", sT0, D_Q8, sIT)
    A("s_cmp_lt_u32 s%d, 4\ns_cselect_b32 s%d, %d, 0\ns_add_u32 s%d, s%d, s%d", sXCD, sT0, NR2, sIT, sIT, sT0)
    A("s_cmp_ge_u32 s%d, %d\ns_cbranch_scc1 L_op_done", sIT, NR2 + 8*(8 - NR2//4))
    A("s_cmp_ge_u32 s%d, %d\ns_cbranch_scc1 L_op_fin", sIT, NR2)
    A("s_and_b32 s%d, s%d, 3\ns_bfe_u32 s%d, s%d, 0x10002\ns_lshr_b32 s%d, s%d, 3", sCB, sIT, sB, sIT, sT2, sIT)
    sexpr(A, sBLK, 8, (2, sT2))
    sexpr(A, sTILE, 32, (1, sIT))
    sexpr(A, sPO, PART_OFF + 64*163840, (4*163840, sIT))
    A("s_mov_b32 s%d, 4\ns_mov_b32 s%d, 6\ns_branch L_op4_go", sSP, sNB)
    A.label("L_op_fin")
    A("s_sub_u32 s%d, s%d, %d\ns_lshr_b32 s%d, s%d, 3\ns_add_u32 s%d, s%d, %d\ns_bfe_u32 s%d, s%d, 0x10002\ns_and_b32 s%d, s%d, 3\ns_mov_b32 s%d, s%d", sT2, sIT, NR2, sBLK, sT2, sBLK, sBLK, 8 + NR2//4, sB, sT2, sCB, sT2, sKS, sXCD)
    sexpr(A, sTILE, 32 + NR2, (1, sT2))
    sexpr(A, sPO, PART_OFF + (64 + 4*NR2)*163840, (8*81920, sT2))
    A("s_mov_b32 s%d, 8\ns_mov_b32 s%d, 3\ns_branch L_op2_go", sSP, sNB)
    def adma():
        o = []
        for i in range(5):
            t = ""
            if i == 0: t = "s_mov_b32 m0, s%d\ns_nop 0\n" % sAB
            if i == 4: t = "s_add_u32 m0, s%d, 4096\ns_add_u32 s%d, s%d, 4096\n" % (sAB, sT0, sAO)
            t += "buffer_load_dwordx4 v%d, %s, s%d offen offset:%d sc1 lds" % (vL16, ws, sAO if i < 4 else sT0, 1024*(i % 4))
            if i == 4:
                t += "\ns_add_u32 s%d, s%d, %d\ns_add_u32 s%d, s%d, %d" % (sAO, sAO, 81920, sAB, sAB, HB)
                t += "\ns_add_u32 s%d, s%d, %d\ns_cmp_ge_u32 s%d, s%d\ns_cselect_b32 s%d, s%d, s%d" % (sT0, sL0, NRA*HB, sAB, sT0, sAB, sL0, sAB)
                t += "\ns_cmp_ge_u32 s%d, s%d\ns_cselect_b32 s%d, 0x7f000000, s%d" % (sAO, sAE, sAO, sAO)
            o.append(t)
        return o
    sBO = [42, 43, 44, 45]
    sAE, sBE, sROT = 48, 49, 50
    for MT in (4, 2):
        L = "L_op%d" % MT
        NQ = 10*MT
        PW = NQ*1024
        A.label(L+"_go")
        A("s_mul_i32 s%d, s%d, s%d\ns_lshl_b32 s%d, s%d, 3", sT2, sKS, sNB, sT2, sT2)
        sexpr(A, sAO, 0, (1, sG0), (192*40960, sB), (40960, sT2), (10240, sCB))
        sexpr(A, sBO[0], OX_OFF, (128*196608, sB), (8*196608, sBLK), (MT*196608, sW), (1024, sT2))
        if MT == 2: A("s_add_u32 s%d, s%d, %d", sBO[1], sBO[0], 196608)
        else:
            A("s_cmp_eq_u32 s%d, 2\ns_cselect_b32 s%d, 1, 0\ns_lshl_b32 s%d, s%d, s%d\ns_mov_b32 s%d, s%d", sSP, sT0, sROT, sKS, sT0, sT1, sBO[0])
            for t in range(4):
                A("s_add_u32 s%d, s%d, %d\ns_and_b32 s%d, s%d, 3\ns_mul_i32 s%d, s%d, 196608\ns_add_u32 s%d, s%d, s%d", sT0, sROT, t, sT0, sT0, sT0, sT0, sBO[t], sT1, sT0)
        A("s_mov_b32 s%d, s%d", sAB, sL0)
        sexpr(A, sAE, 0, (8*40960, sNB), (1, sAO))
        sexpr(A, sBE, 0, (8*1024, sNB), (1, sBO[0]))
        def bld(slot):
            o = []
            for tt in range(MT):
                for ks in range(2):
                    o.append("buffer_load_dwordx4 %s, v%d, %s, s%d offen offset:%d sc1" % (v(vBF + 8*MT*slot + 4*MT*ks + 4*tt, 4), vL16, ws, sBO[tt], 1024*ks))
                o[-1] += "\ns_add_u32 s%d, s%d, 2048" % (sBO[tt], sBO[tt])
            o[-1] += "\ns_cmp_ge_u32 s%d, s%d\n" % (sBO[0], sBE) + "\n".join("s_cselect_b32 s%d, 0x7f000000, s%d" % (sBO[tt], sBO[tt]) for tt in range(MT))
            return o
        for st in range(NRA-2):
            for x in adma(): A(x)
        sexpr(A, sT1, FO_OFF, (16*128, sB), (128, sBLK))
        dbg_wait(A, sT1, 0, 32, vZ, t0, ws)
        if MT == 4: dbg_wait(A, sT1, 128, 32, vZ, t0, ws)
        for st in range(3):
            for x in bld(st): A(x)
        for r in range(4*NQ): A("v_accvgpr_write_b32 a%d, 0", r)
        A("v_mov_b32 v%d, v%d\nv_add_u32 v%d, %d, v%d", vAr, vL16, vAn, HB, vL16)
        A("s_waitcnt vmcnt(0)\ns_barrier")
        def ard(ks, ct, reg): A("ds_read_b128 %s, v%d offset:%d", v(vAF + 40*ks + 4*ct, 4), reg, 10240*ks + 1024*ct)
        for ct in range(10): ard(0, ct, vAr)
        A.label(L+"_loop")
        vm = VM(A)
        for st in range(4):
            dm = adma(); bl = bld((st+3) % 4)
            fill = [(x, "A%d" % st) for x in dm] + [(x, "B%d" % st) for x in bl]
            pos = {(i*20)//len(fill): f for i, f in enumerate(fill)}
            for ks in range(2):
                if ks == 1:
                    vm.wait([("A%d" % ((st+1) % 4), 1 if st < 3 else 0)])
                    A("s_barrier")
                else:
                    vm.wait([("B%d" % ((st+1) % 4), 1 if st < 3 else 0)])
                for ct in range(10):
                    A("s_waitcnt lgkmcnt(9)")
                    for tt in range(MT):
                        acc = a(4*(MT*ct+tt), 4)
                        A("v_mfma_f32_16x16x32_bf16 %s, %s, %s, %s", acc, v(vAF + 40*ks + 4*ct, 4), v(vBF + 8*MT*st + 4*MT*ks + 4*tt, 4), acc)
                        if tt == 0: ard(1-ks, ct, vAr if ks == 0 else vAn)
                        if tt == 1 and 10*ks+ct in pos:
                            A(pos[10*ks+ct][0]); vm.op(pos[10*ks+ct][1])
            A("v_mov_b32 v%d, v%d\nv_add_u32 v%d, %d, v%d\nv_cmp_le_u32 vcc, %d, v%d\nv_subrev_u32 v%d, %d, v%d\nv_cndmask_b32 v%d, v%d, v%d, vcc", vAr, vAn, vAn, HB, vAn, NRA*HB, vAn, t0, NRA*HB, vAn, vAn, vAn, t0)
        vm.resolve()
        A("s_sub_u32 s%d, s%d, 1\ns_cmp_lg_u32 s%d, 0\ns_cbranch_scc1 %s_loop", sNB, sNB, sNB, L)
        A("s_nop 7")
        if MT == 2:
            sexpr(A, sT1, 0, (1, sPO), (4*PW, sKS), (PW, sW))
            for i in range(NQ):
                if i % 4 == 0: A("s_add_u32 s%d, s%d, %d", sT0, sT1, 1024*i)
                A("buffer_store_dwordx4 %s, v%d, %s, s%d offen offset:%d sc1", a(4*i, 4), vL16, ws, sT0, 1024*(i % 4))
        else:
            sexpr(A, sT1, 0, (1, sPO), (4*PW, sKS), (PW, sW))
            for t in (3, 2, 1):
                if t == 1: A("s_cmp_eq_u32 s%d, 2\ns_cbranch_scc1 L_op4_pub", sSP)
                A("s_add_u32 s%d, s%d, %d\ns_and_b32 s%d, s%d, 3\ns_mul_i32 s%d, s%d, 10240\ns_add_u32 s%d, s%d, s%d", sT2, sROT, t, sT2, sT2, sT2, sT2, sT2, sT2, sT1)
                for ct in range(10):
                    if ct % 4 == 0: A("s_add_u32 s%d, s%d, %d", sT0, sT2, 1024*ct)
                    A("buffer_store_dwordx4 %s, v%d, %s, s%d offen offset:%d sc1", a(4*(4*ct+t), 4), vL16, ws, sT0, 1024*(ct % 4))
            A.label("L_op4_pub")
        A("s_waitcnt vmcnt(0)\ns_barrier")
        sexpr(A, sT2, SK_OFF, (128, sTILE))
        lab = A.newlabel()
        A("s_cmp_lg_u32 s%d, 0\ns_cbranch_scc1 %s", sW, lab)
        A("v_mov_b32 v%d, 1\ns_mov_b64 exec, 1\nbuffer_atomic_add v%d, v%d, %s, s%d offen\ns_mov_b64 exec, -1", t0, t0, vZ, ws, sT2)
        A.label(lab)
        if MT == 4:
            for t in range(2):
                for ct in range(10):
                    for r in range(4): A("v_accvgpr_read_b32 v%d, a%d", vBF + 40*t + 4*ct + r, 4*(4*ct+t) + r)
            dbg_wait(A, sT2, 0, "s%d" % sSP, vZ, t0, ws, sleep=4)
            vR = vBF + 80
            dst = [vAF, vAF+40, vR]
            def rnd(r, slice_add, slot):
                A("s_add_u32 s%d, s%d, %d\ns_sub_u32 s%d, s%d, 1\ns_and_b32 s%d, s%d, s%d", sT1, sKS, slice_add, sT0, sSP, sT1, sT1, sT0)
                A("s_add_u32 s%d, s%d, %d\ns_and_b32 s%d, s%d, 3", sT2, sROT, slot, sT2, sT2)
                sexpr(A, sT1, 0, (4*PW, sT1), (1, sPO), (PW, sW), (10240, sT2))
                for ct in range(10):
                    if ct % 4 == 0: A("s_add_u32 s%d, s%d, %d", sT0, sT1, 1024*ct)
                    A("buffer_load_dwordx4 %s, v%d, %s, s%d offen offset:%d sc1", v(dst[r]+4*ct, 4), vL16, ws, sT0, 1024*(ct % 4))
            def add(r, slot, left):
                for ct in range(10):
                    A("s_waitcnt vmcnt(%d)", left + 9 - ct)
                    for h2 in range(2): A("v_pk_add_f32 %s, %s, %s", v(vBF+40*slot+4*ct+2*h2, 2), v(vBF+40*slot+4*ct+2*h2, 2), v(dst[r]+4*ct+2*h2, 2))
            def out(slot):
                A("s_add_u32 s%d, s%d, %d\ns_and_b32 s%d, s%d, 3", sT2, sROT, slot, sT2, sT2)
                sexpr(A, sT1, 0, (128*2560, sBLK), (64*2560, sW), (16*2560, sT2), (1280, sB), (320, sCB))
                for cp in range(5):
                    e = vE + 4*(cp % 2)
                    x0 = vBF + 40*slot + 8*cp; x1 = x0 + 4
                    A("v_cvt_pk_bf16_f32 v%d, v%d, v%d\nv_cvt_pk_bf16_f32 v%d, v%d, v%d", e, x0, x0+1, e+1, x0+2, x0+3)
                    A("v_cvt_pk_bf16_f32 v%d, v%d, v%d\nv_cvt_pk_bf16_f32 v%d, v%d, v%d", e+2, x1, x1+1, e+3, x1+2, x1+3)
                    A("s_nop 1\nv_permlane16_swap_b32 v%d, v%d\nv_permlane16_swap_b32 v%d, v%d", e, e+2, e+1, e+3)
                    A("buffer_store_dwordx4 %s, v%d, s[8:11], s%d offen offset:%d", v(e, 4), pOUT, sT1, 64*cp)
            A("s_cmp_eq_u32 s%d, 2\ns_cbranch_scc1 L_op4_s2", sSP)
            for r in range(3): rnd(r, r+1, 0)
            for r in range(3): add(r, 0, 10*(2-r))
            out(0)
            A("s_branch L_op_next")
            A.label("L_op4_s2")
            for r in range(2): rnd(r, 1, r)
            for r in range(2): add(r, r, 10*(1-r))
            out(0); out(1)
            A("s_branch L_op_next")
        else:
            dbg_wait(A, sT2, 0, 8, vZ, t0, ws, sleep=4)
            A("s_mul_i32 s%d, s%d, 5\ns_add_u32 s%d, s%d, 5\ns_add_u32 s%d, s%d, s%d", sAO, sKS, sAB, sAO, sAO, sAO, sW)
            A.label("L_op_red")
            A("s_cmp_ge_u32 s%d, s%d\ns_cbranch_scc1 L_op_next", sAO, sAB)
            A("s_mul_i32 s%d, s%d, 26\ns_lshr_b32 s%d, s%d, 8\ns_mul_i32 s%d, s%d, 10\ns_sub_u32 s%d, s%d, s%d", sT1, sAO, sT1, sT1, sT2, sT1, sT2, sAO, sT2)
            A("s_lshr_b32 s%d, s%d, 1\ns_and_b32 s%d, s%d, 1", sT3, sT2, sT2, sT2)
            sexpr(A, sBO[0], 0, (1, sPO), (20480, sT1), (4096, sT3), (1024, sT2))
            for j in range(8):
                A("s_add_u32 s%d, s%d, %d", sT0, sBO[0], j*81920)
                for i in range(2): A("buffer_load_dwordx4 %s, v%d, %s, s%d offen offset:%d sc1", v(vAF+8*j+4*i, 4), vL16, ws, sT0, 2048*i)
            sexpr(A, sT1, 0, (32*2560, sT1), (16*2560, sT2), (64, sT3), (128*2560, sBLK), (1280, sB), (320, sCB))
            for j in range(1, 8):
                A("s_waitcnt vmcnt(%d)", 14-2*j)
                for h2 in range(4): A("v_pk_add_f32 %s, %s, %s", v(vAF+2*h2, 2), v(vAF+2*h2, 2), v(vAF+8*j+2*h2, 2))
            for i in range(4): A("v_cvt_pk_bf16_f32 v%d, v%d, v%d", vE+i, vAF+2*i, vAF+2*i+1)
            A("s_nop 1\nv_permlane16_swap_b32 v%d, v%d\nv_permlane16_swap_b32 v%d, v%d", vE, vE+2, vE+1, vE+3)
            A("buffer_store_dwordx4 %s, v%d, s[8:11], s%d offen", v(vE, 4), pOUT, sT1)
            A("s_add_u32 s%d, s%d, 4\ns_branch L_op_red", sAO, sAO)
    A.label("L_op_done")

def main_op():
    import chain
    A = Asm(); K = "op_kernel"
    chain.emit_common_prologue(A)
    A("s_cmp_lt_u32 s%d, 4\ns_cbranch_scc1 L_end", sT3)
    A("s_cmp_ge_u32 s%d, 32\ns_cbranch_scc1 L_end", chain.sJ)
    A("s_bfe_u32 s%d, s%d, 0x10001\ns_and_b32 s%d, s%d, 1\ns_lshr_b32 s%d, s%d, 1", sB, sT3, sT1, sT3, sT2, chain.sJ)
    sexpr(A, sH, 0, (16, sT1), (1, sT2))
    A("s_and_b32 s%d, s%d, 1\ns_cbranch_scc1 L_end", sMAT, chain.sJ)
    A("s_mul_i32 s%d, s%d, 56\ns_add_u32 s%d, s0, s%d\ns_addc_u32 s%d, s1, 0", sT0, sB, sKA, sT0, sKA+1)
    A("v_mov_b32 v1, 1\nv_lshlrev_b32 v2, 2, v0\ns_lshl_b32 s%d, s%d, 6\ns_mov_b64 exec, 0xffff\ns_cmp_lg_u32 s%d, 0\ns_cbranch_scc1 L_t1\nbuffer_atomic_add v1, v2, s[12:15], s%d offen offset:%d\nL_t1:\ns_mov_b64 exec, -1", sT0, sB, sW, sT0, D_FO)
    A("s_memrealtime s[92:93]\ns_memtime s[96:97]")
    emit_wof(A)
    A("s_memrealtime s[90:91]")
    emit_op(A)
    A("s_waitcnt lgkmcnt(0)\ns_sub_u32 s90, s90, s92\ns_mov_b64 exec, 1\nv_mov_b32 v1, s90\nv_mov_b32 v2, 60\nbuffer_atomic_umax v1, v2, s[12:15], 0 offen\ns_nop 1")
    A("s_memtime s[98:99]\ns_waitcnt lgkmcnt(0)\ns_sub_u32 s98, s98, s96\ns_mov_b64 exec, 1\nv_mov_b32 v1, s98\nv_mov_b32 v2, 56\nbuffer_atomic_umax v1, v2, s[12:15], 0 offen\ns_nop 1")
    A("s_memrealtime s[94:95]\ns_waitcnt lgkmcnt(0)\ns_sub_u32 s94, s94, s92\ns_mov_b64 exec, 1\nv_mov_b32 v1, s94\nv_mov_b32 v2, 52\nbuffer_atomic_umax v1, v2, s[12:15], 0 offen")
    A.label("L_end"); A("s_endpgm")
    chain.emit_stubs(A, "L_end")
    open("op.s", "w").write(build_file([(K, 256, 256, 163840)], [(K, A, 512, 102, 256)]))

def main_qa():
    import chain
    A = Asm(); K = "qa_kernel"
    chain.emit_common_prologue(A)
    A("s_cmp_lt_u32 s%d, 4\ns_cbranch_scc1 L_end", sT3)
    A("s_cmp_ge_u32 s%d, 32\ns_cbranch_scc1 L_end", chain.sJ)
    A("s_bfe_u32 s%d, s%d, 0x10001\ns_and_b32 s%d, s%d, 1\ns_lshr_b32 s%d, s%d, 1", sB, sT3, sT1, sT3, sT2, chain.sJ)
    sexpr(A, sH, 0, (16, sT1), (1, sT2))
    A("s_and_b32 s%d, s%d, 1", sMAT, chain.sJ)
    A("s_memrealtime s[52:53]\ns_memtime s[54:55]")
    emit_qa(A, timing=True)
    A("s_mov_b64 s[92:93], s[52:53]\ns_mov_b64 s[96:97], s[54:55]")
    A("s_memtime s[98:99]\ns_waitcnt lgkmcnt(0)\ns_sub_u32 s98, s98, s96\ns_mov_b64 exec, 1\nv_mov_b32 v1, s98\nv_mov_b32 v2, 52\nbuffer_atomic_umax v1, v2, s[12:15], 0 offen\ns_nop 1")
    A("s_memrealtime s[94:95]\ns_waitcnt lgkmcnt(0)\ns_sub_u32 s94, s94, s92\ns_mov_b64 exec, 1\nv_mov_b32 v1, s94\nv_mov_b32 v2, 48\nbuffer_atomic_umax v1, v2, s[12:15], 0 offen")
    A.label("L_end"); A("s_endpgm")
    chain.emit_stubs(A, "L_end")
    open("qa.s", "w").write(build_file([(K, 256, 256, 163840)], [(K, A, 512, 102, 256)]))

def main(sfx):
    import chain
    A = Asm(); K = "kv_kernel"
    chain.emit_common_prologue(A)
    A("s_cmp_lt_u32 s%d, 4\ns_cbranch_scc1 L_end", sT3)
    A("s_cmp_ge_u32 s%d, 32\ns_cbranch_scc1 L_end", chain.sJ)
    A("s_bfe_u32 s%d, s%d, 0x10001\ns_and_b32 s%d, s%d, 1\ns_lshr_b32 s%d, s%d, 1", sB, sT3, sT1, sT3, sT2, chain.sJ)
    sexpr(A, sH, 0, (16, sT1), (1, sT2))
    A("s_and_b32 s%d, s%d, 1", sMAT, chain.sJ)
    A("s_memrealtime s[92:93]\ns_memtime s[96:97]")
    emit_kv(A)
    A("s_memtime s[98:99]\ns_waitcnt lgkmcnt(0)\ns_sub_u32 s98, s98, s96\ns_mov_b64 exec, 1\nv_mov_b32 v1, s98\nv_mov_b32 v2, 68\nbuffer_atomic_umax v1, v2, s[12:15], 0 offen\ns_nop 1")
    A("s_memrealtime s[94:95]\ns_waitcnt lgkmcnt(0)\ns_sub_u32 s94, s94, s92\ns_mov_b64 exec, 1\nv_mov_b32 v1, s94\nv_mov_b32 v2, 64\nbuffer_atomic_umax v1, v2, s[12:15], 0 offen\ns_lshl_b32 s94, s18, 2\ns_add_u32 s94, s94, 72\nv_mov_b32 v2, s94\nbuffer_atomic_umax v1, v2, s[12:15], 0 offen")
    A.label("L_end"); A("s_endpgm")
    chain.emit_stubs(A, "L_end")
    txt = build_file([(K, 256, 256, 163840)], [(K, A, 512, 102, 256)])
    open("kv%s.s" % sfx, "w").write(txt)
    import re
    open("kv_plain.s", "w").write(re.sub(r"(buffer_store_dwordx[24] .*) sc1", r"\1", txt))
    open("kv_nt.s", "w").write(re.sub(r"(buffer_store_dwordx[24] .*) sc1", r"\1 nt", txt))
    open("kv_nost.s", "w").write(re.sub(r"buffer_store_dwordx[24] .*", r"s_nop 0", txt))
    open("kv_nodma%s.s" % sfx, "w").write(re.sub(r"buffer_load_dwordx4 v1, s\[8:11\], s34 .*", r"s_nop 0", re.sub(r"buffer_store_dwordx[24] .*", r"s_nop 0", txt)))

if __name__ == "__main__":
    main("")
    main_qa()
```

```python
import struct, math
from asmlib import *
from layout import *

sW, sB, sX, sJ = 16, 17, 18, 19
sH, sU, sGRP, sM = 20, 21, 22, 23
sFCHo, sFKVo, sNEED = 28, 42, 40
sSTEP, sSLOTI, sPAR, sME = 24, 25, 26, 27
sPW = 25
sT0, sT1, sT2, sT3 = 29, 30, 31, 32
sRW = 33
sKXO, sVXO = 34, 35
sKMO, sVMO = 36, 37
sRB = 39
sSCL = 38
sWM1 = 40
sVB = 41
sAVAIL = 43
sEVEN = 44
sDELTA, sKVB = 46, 47
(oSCst, oSCld, oPBst, oPBst2, oPB0, oPB1, oPB2, oPB3, oXPst, oXPstr, oXPl0, oXPlB, oXPr0, oXPrB, sONEL, sONEH) = range(48, 64)
sPTR = 64
sTS = 64
sSPIN = 3
SPIN_LIMIT = 100000
sKA = 88
WS = "s[4:7]"

def f32bits(x): return struct.unpack("<I", struct.pack("<f", x))[0]

def sexpr(A, dst, const, *terms, tmp=sT0):
    first = True
    for (coef, reg) in terms:
        tgt = dst if first else tmp
        if coef == 1:
            if first: A("s_mov_b32 s%d, s%d", dst, reg)
            else: A("s_add_u32 s%d, s%d, s%d", dst, dst, reg)
        else:
            A("s_mul_i32 s%d, s%d, %d", tgt, reg, coef)
            if not first: A("s_add_u32 s%d, s%d, s%d", dst, dst, tmp)
        first = False
    if first: A("s_mov_b32 s%d, %d", dst, const)
    elif const: A("s_add_u32 s%d, s%d, %d", dst, dst, const)

def emit_common_prologue(A):
    A("s_cmp_ge_u32 s2, 256\ns_cbranch_scc1 L_end")
    A("s_mov_b32 s%d, 0", sSPIN)
    A("s_load_dwordx2 s[4:5], s[0:1], 128")
    A("s_load_dwordx2 s[12:13], s[0:1], 120")
    A("v_lshrrev_b32 v1, 6, v0")
    A("v_and_b32 v0, 63, v0")
    A("s_getreg_b32 s%d, hwreg(HW_REG_XCC_ID)", sT3)
    A("v_readfirstlane_b32 s%d, v1", sW)
    A("s_and_b32 s%d, s%d, 7", sT3, sT3)
    A("s_mov_b32 s6, 0x10000000\ns_mov_b32 s7, 0x20000")
    A("s_mov_b32 s14, 256\ns_mov_b32 s15, 0x20000")
    A("s_waitcnt lgkmcnt(0)")
    A("s_cmp_lg_u32 s%d, 0\ns_cbranch_scc1 L_tk_done", sW)
    A("s_mov_b64 exec, 1")
    A("s_lshl_b32 s%d, s%d, 2", sT0, sT3)
    A("v_mov_b32 v1, 1\nv_mov_b32 v2, s%d\nv_mov_b32 v3, %d", sT0, L_BCAST)
    A("buffer_atomic_add v1, v2, s[12:15], 0 offen sc0")
    A("s_waitcnt vmcnt(0)")
    A("ds_write_b32 v3, v1")
    A("s_waitcnt lgkmcnt(0)")
    A("s_mov_b64 exec, -1")
    A.label("L_tk_done")
    A("s_barrier")
    A("v_mov_b32 v3, %d\nds_read_b32 v1, v3\ns_waitcnt lgkmcnt(0)", L_BCAST)
    A("v_readfirstlane_b32 s%d, v1", sJ)

class VAlloc:
    def __init__(self, start, end):
        self.n = start; self.end = end
    def __call__(self, cnt=1, align=1):
        self.n = (self.n + align - 1)//align*align
        r = self.n; self.n += cnt
        assert self.n <= self.end, "out of vgprs"
        return r

def spin_stub(A, lab_retry):
    st = A.newlabel("L_spin")
    A.stubs.append((st, lab_retry))
    return st

def emit_stubs(A, lab_abort):
    for st, lab in A.stubs:
        A.label(st)
        A("s_add_u32 s%d, s%d, 1\ns_cmp_le_u32 s%d, %d\ns_cbranch_scc1 %s", sSPIN, sSPIN, sSPIN, SPIN_LIMIT, lab)
        A("s_movk_i32 s%d, %d\ns_branch %s    ; %s", sSPIN, len([1 for x in A.lines if x.startswith("L_spin")]), lab_abort, lab)
    A.stubs = []

def wait_flags(A, voff, vt, soff, need_sgpr, lanes_mask, cache_sgpr=None, once=False):
    l0 = A.newlabel(); l1 = A.newlabel()
    if cache_sgpr is not None:
        A("s_cmp_ge_u32 s%d, s%d\ns_cbranch_scc1 %s", cache_sgpr, need_sgpr, l1)
    A("s_mov_b64 exec, %d", lanes_mask)
    A.label(l0)
    A("buffer_load_dword v%d, v%d, %s, s%d offen sc1\ns_waitcnt vmcnt(0)", vt, voff, WS, soff)
    if not once:
        A("v_cmp_gt_u32 vcc, s%d, v%d", need_sgpr, vt)
        l2 = A.newlabel()
        A("s_cbranch_vccz %s\ns_sleep 4\ns_branch %s", l2, spin_stub(A, l0))
        A.label(l2)
    if cache_sgpr is not None:
        A("v_readlane_b32 s%d, v%d, 0\nv_readlane_b32 s%d, v%d, 1\ns_nop 3\ns_min_u32 s%d, s%d, s%d", cache_sgpr, vt, sT0, vt, cache_sgpr, cache_sgpr, sT0)
    A("s_mov_b64 exec, -1")
    A.label(l1)

def emit_abort(A):
    A("s_mov_b64 exec, 1\nv_mov_b32 v1, 1\nv_mov_b32 v2, 60\nbuffer_atomic_add v1, v2, s[12:15], 0 offen")
    A("s_lshl_b32 s%d, s%d, 8\ns_or_b32 s%d, s%d, s%d\ns_lshl_b32 s%d, s%d, 8\ns_or_b32 s%d, s%d, s%d\ns_lshl_b32 s%d, s%d, 4\ns_or_b32 s%d, s%d, s%d", sT0, sSTEP, sSPIN, sSPIN, sT0, sSPIN, sSPIN, sSPIN, sSPIN, sME, sSPIN, sSPIN, sSPIN, sSPIN, sW)
    A("s_not_b32 s%d, s%d\nv_mov_b32 v3, s%d\nv_mov_b32 v2, 56\nbuffer_atomic_umax v3, v2, s[12:15], 0 offen\ns_endpgm", sSPIN, sSPIN, sSPIN)

def tagcheck(A, regs, vt, lab_retry):
    lab_retry = spin_stub(A, lab_retry)
    def tree(op):
        r = list(regs)
        A(op % (vt, r[0], r[1], r[2])); i = 3
        while i + 1 < len(r):
            A(op % (vt, vt, r[i], r[i+1])); i += 2
        if i < len(r):
            A(op % (vt, vt, r[i], r[i]))
    l0 = A.newlabel(); l1 = A.newlabel()
    A("s_cmp_eq_u32 s%d, 0\ns_cbranch_scc1 %s", sPAR, l0)
    tree("v_bitop3_b32 v%d, v%d, v%d, v%d bitop3:0x80")
    A("v_and_b32 v%d, 1, v%d\nv_cmp_ne_u32 vcc, 1, v%d\ns_cbranch_vccnz %s\ns_branch %s", vt, vt, vt, lab_retry, l1)
    A.label(l0)
    tree("v_or3_b32 v%d, v%d, v%d, v%d")
    A("v_and_b32 v%d, 1, v%d\nv_cmp_ne_u32 vcc, 0, v%d\ns_cbranch_vccnz %s", vt, vt, vt, lab_retry)
    A.label(l1)

def emit_chain(A, timing=False, nsteps=64, opt={}):
    V = VAlloc(1, 152)
    vAmem = V()
    vBias = V(1, 2)
    vL16 = V()
    vT = [V() for _ in range(8)]
    assert vT[0] % 4 == 0
    t0, t1, t2, t3, t4, t5, vN, vG = vT
    vSC = vT[4]
    vSEL = V(4, 4)
    vIdxQK, vIdxWo = V(), V()
    vQKw, vQrd, vKrd = V(), V(), V()
    vWVrd = vKrd
    pSC, pVMst, pA, pB, pPB, pXP = V(), V(), V(), V(), V(), V()
    pL8 = pB
    pKM = pVMst
    vVMIr, vKVr, pLT = V(), V(), V()
    vMEMw, vMEMw4 = V(), V()
    vAF = V(40, 4)
    vVX = V(24, 4)
    vBUF = V(24, 4)
    vKX = V(12, 4)
    vACC = V(20, 4)
    assert vKX == vBUF+24 and vACC == vKX+12
    NVB = 6
    WO_V = 152
    def wo_oct(i): return a(240 + 8*i, 8) if i < 2 else v(WO_V + 8*(i-2), 8)
    def wo_reg(i, r): return a(240 + 8*i + r) if i < 2 else v(WO_V + 8*(i-2) + r)
    ws = WS
    def ts(i):
        if timing and not opt.get("os"): A("s_mem%stime s[%d:%d]", "real" if opt.get("rt") else "", sTS+2*i, sTS+2*i+1)
    def adv(*regs):
        for r in regs: A("s_add_u32 s%d, s%d, s%d", r, r, sDELTA)

    def advr(*regs):
        if opt.get("ringr"): adv(*regs)
        else:
            for r in regs: A("s_add_u32 s%d, s%d, 20480", r, r)
    def stamp(i):
        if not timing: return
        A("s_memrealtime s[96:97]\ns_waitcnt lgkmcnt(0)\ns_mov_b64 exec, 1\nv_mov_b32 v%d, s96\nv_mov_b32 v%d, 0", vACC+18, vACC+19)
        sexpr(A, 98, DBG_OFF+65536, (256, 2), (64, sW), tmp=99)
        A("buffer_store_dword v%d, v%d, %s, s98 offen offset:%d\ns_mov_b64 exec, -1", vACC+18, vACC+19, ws, 4*i)
    stamp(0)
    A("s_lshr_b32 s%d, s%d, 1", sT1, sJ); sexpr(A, sH, 0, (16, sX), (1, sT1))
    A("s_and_b32 s%d, s%d, 1", sU, sJ)
    sexpr(A, sRW, 0, (32, sW), (1, sJ))
    sexpr(A, sRB, RING_OFF, (RING*SLOT, sB))
    sexpr(A, sME, 0, (32, sX), (1, sJ))
    A("s_max_u32 s%d, s%d, 1\ns_sub_u32 s%d, s%d, 1", sWM1, sW, sWM1, sWM1)
    A("s_mov_b32 s%d, 0x%08x", sSCL, f32bits((192 ** -0.5) * math.log2(math.e)))
    A("s_mov_b32 s%d, 0x55555555\ns_mov_b32 s%d, 0x55555555", sEVEN, sEVEN+1)
    A("s_mul_i32 s%d, s%d, 56", sT0, sB)
    A("s_add_u32 s%d, s0, s%d\ns_addc_u32 s%d, s1, 0", sKA, sT0, sKA+1)
    A("s_load_dwordx2 s[%d:%d], s[%d:%d], 8", sPTR, sPTR+1, sKA, sKA+1)
    A("s_load_dwordx4 s[%d:%d], s[%d:%d], 16", sPTR+4, sPTR+7, sKA, sKA+1)
    A("s_load_dwordx4 s[%d:%d], s[%d:%d], 32", sPTR+8, sPTR+11, sKA, sKA+1)
    sexpr(A, oSCst, 0, (1, sRB), (REC, sME), (512, sW))
    A("s_xor_b32 s%d, s%d, 1", sT1, sME)
    sexpr(A, oSCld, 0, (1, sRB), (REC, sT1))
    sexpr(A, oPBst, R_PB, (1, sRB), (10240, sME), (2048, sW))
    sexpr(A, oPBst2, R_PB+8192, (1, sRB), (10240, sME), (512, sW))
    sexpr(A, oPB0, R_PB, (1, sRB), (32*10240, sX), (128, sRW))
    for i in (1, 2, 3): sexpr(A, oPB0+i, i*8*10240, (1, oPB0))
    sexpr(A, oXPst, R_XPL, (1, sRB), (10240, sX), (128, sRW))
    if opt.get("ringr"): sexpr(A, oXPstr, R_XPR-R_XPL, (1, oXPst))
    else: sexpr(A, oXPstr, XR_OFF, (64*20480, sB), (10240, sX), (128, sRW))
    sexpr(A, oXPl0, R_XPL, (1, sRB), (10240, sX), (2048, sW))
    sexpr(A, oXPlB, R_XPL+8192, (1, sRB), (10240, sX), (512, sW))
    A("s_xor_b32 s%d, s%d, 1", sT1, sX)
    if opt.get("ringr"):
        sexpr(A, oXPr0, R_XPR, (1, sRB), (10240, sT1), (2048, sW))
        sexpr(A, oXPrB, R_XPR+8192, (1, sRB), (10240, sT1), (512, sW))
    else:
        sexpr(A, oXPr0, XR_OFF, (64*20480, sB), (10240, sT1), (2048, sW))
        sexpr(A, oXPrB, XR_OFF+8192, (64*20480, sB), (10240, sT1), (512, sW))
    A("s_mov_b32 s%d, 0x3f80\ns_mov_b32 s%d, 0x3f800000", sONEL, sONEH)
    sexpr(A, sT2, 0, (32, sB), (1, sH))
    sexpr(A, sKMO, KM_OFF, (HM, sT2), (1536, sU))
    sexpr(A, sVMO, VM_OFF, (HM, sT2), (1536, sU))
    sexpr(A, sKXO, KX_OFF, (HS, sT2), (6144, sU), (1536, sW))
    sexpr(A, sVXO, VX_OFF-KX_OFF, (1, sKXO))
    A("v_and_b32 v%d, 15, v0\nv_lshrrev_b32 v%d, 4, v0", vN, vG)
    A("v_lshlrev_b32 v%d, 4, v0", vL16)
    A("v_lshrrev_b32 v%d, 1, v%d\nv_mul_u32_u24 v%d, %d, v%d", t0, vN, t0, MEM_RS, t0)
    A("v_and_b32 v%d, 1, v%d\nv_lshl_add_u32 v%d, v%d, 1, v%d\nv_lshl_add_u32 v%d, v%d, 4, v%d\nv_add_u32 v%d, %d, v%d", t1, vN, t2, vG, t1, vAmem, t2, t0, vAmem, L_MEM, vAmem)
    A("v_cmp_eq_u32 vcc, 1, v%d", t1)
    A("v_mov_b32 v%d, 0x4444\nv_mov_b32 v%d, 0xeeee\nv_cndmask_b32 v%d, v%d, v%d, vcc", t2, t3, vIdxQK, t2, t3)
    A("v_mov_b32 v%d, 0x8888\nv_mov_b32 v%d, 0xdddd\nv_cndmask_b32 v%d, v%d, v%d, vcc", t2, t3, vIdxWo, t2, t3)
    A("v_mov_b32 v%d, 0x3f80\nv_mov_b32 v%d, 0x3f800000\nv_cndmask_b32 v%d, v%d, v%d, vcc\nv_lshrrev_b32 v%d, 1, v%d", t2, t3, t2, t2, t3, t3, vN)
    for r in range(4):
        A("v_cmp_eq_u32 vcc, %d, v%d\ns_nop 1\nv_cndmask_b32 v%d, 0, v%d, vcc", r, t3, vSEL+r, t2)
    A("v_lshl_add_u32 v%d, v%d, 3, v%d\nv_lshlrev_b32 v%d, 4, v%d", t0, vG, t3, pSC, t0)
    A("v_lshlrev_b32 v%d, 3, v0", pB)
    A("s_lshr_b32 s%d, s%d, 1\ns_and_b32 s%d, s%d, 1", sT1, sW, sT2, sW)
    sexpr(A, sT1, L_Q, (8*QK_RS, sT1), (96, sT2))
    A("v_mul_u32_u24 v%d, %d, v%d\nv_add_u32 v%d, s%d, v%d\nv_lshl_add_u32 v%d, v%d, 1, v%d", t0, 2*QK_RS, vG, t0, sT1, t0, vQKw, vN, t0)
    A("v_mul_u32_u24 v%d, %d, v%d\nv_lshl_add_u32 v%d, v%d, 4, v%d\nv_add_u32 v%d, %d, v%d", t0, QK_RS, t3, vQrd, vG, t0, vQrd, L_Q, vQrd)
    A("v_and_b32 v%d, 1, v%d\nv_lshlrev_b32 v%d, 8, v%d\nv_lshl_add_u32 v%d, v%d, 4, v%d\nv_add_u32 v%d, %d, v%d", t0, vG, t0, t0, vVMIr, vN, t0, vVMIr, L_VMI, vVMIr)
    A("v_lshlrev_b32 v%d, 4, v%d\nv_lshl_add_u32 v%d, v%d, 9, v%d", t0, vN, pA, vG, t0)
    A("v_lshrrev_b32 v%d, 3, v%d\nv_lshl_add_u32 v%d, v%d, 2, v%d\nv_mul_u32_u24 v%d, 10240, v%d\nv_and_b32 v%d, 7, v%d\nv_lshl_add_u32 v%d, v%d, 4, v%d", t1, vN, t1, t1, vG, t1, t1, t2, vN, pPB, t2, t1)
    A("v_lshl_add_u32 v%d, v%d, 3, v%d", pXP, vG, t0)
    lw = A.newlabel(); lw2 = A.newlabel()
    A("s_cmp_eq_u32 s%d, 0\ns_cbranch_scc1 %s", sW, lw)
    A("v_lshrrev_b32 v%d, 1, v%d\nv_lshl_add_u32 v%d, v%d, 8, v%d\nv_and_b32 v%d, 1, v%d\nv_lshl_add_u32 v%d, v%d, 2, v%d", t1, vG, t1, t1, t0, pVMst, vG, pVMst, pVMst, t1)
    sexpr(A, sT1, 0, (512, sWM1)); A("v_add_u32 v%d, s%d, v%d", pVMst, sT1, pVMst)
    sexpr(A, sT1, L_WV, (4096, sWM1)); A("v_add_u32 v%d, s%d, v%d", vWVrd, sT1, vL16)
    A("s_branch %s", lw2)
    A.label(lw)
    A("v_lshlrev_b32 v%d, 4, v%d\nv_lshl_add_u32 v%d, v%d, 7, v%d", t1, t2, pKM, vG, t1)
    A("v_mul_u32_u24 v%d, %d, v%d\nv_lshl_add_u32 v%d, v%d, 4, v%d\nv_add_u32 v%d, %d, v%d", t0, QK_RS, t2, vKrd, vG, t0, vKrd, L_K, vKrd)
    A.label(lw2)
    A("v_add_u32 v%d, %d, v%d", vKVr, L_KB, vL16)
    A("v_lshlrev_b32 v%d, 7, v0", pLT)
    sexpr(A, sT1, L_MEM, (320, sW))
    A("v_mul_u32_u24 v%d, %d, v%d\nv_add_u32 v%d, s%d, v%d", t0, 2*MEM_RS, vG, t0, sT1, t0)
    A("v_lshl_add_u32 v%d, v%d, 4, v%d\nv_lshl_add_u32 v%d, v%d, 2, v%d\nv_add_u32 v%d, 256, v%d", vMEMw, vN, t0, vMEMw4, vN, t0, vMEMw4, vMEMw4)
    A("v_cmp_lt_u32 vcc, 1, v%d\nv_mov_b32 v%d, 0\nv_mov_b32 v%d, 0xf149f2ca\nv_cndmask_b32 v%d, v%d, v%d, vcc", vG, t0, t1, vBias, t0, t1)

    for k in range(RING):
        inv = 1 - (k & 1)
        for r in range(4): A("v_mov_b32 v%d, %d", vBUF+r, inv)
        A("s_add_u32 s%d, s%d, %d\nbuffer_store_dwordx4 %s, v%d, %s, s%d offen", sT0, oSCst, k*SLOT, v(vBUF,4), pSC, ws, sT0)
        A("s_add_u32 s%d, s%d, %d\nbuffer_store_dwordx4 %s, v%d, %s, s%d offen", sT0, oPBst, k*SLOT, v(vBUF,4), pA, ws, sT0)
        A("buffer_store_dwordx4 %s, v%d, %s, s%d offen offset:256", v(vBUF,4), pA, ws, sT0)
        A("s_add_u32 s%d, s%d, %d\nbuffer_store_dwordx2 %s, v%d, %s, s%d offen", sT0, oPBst2, k*SLOT, v(vBUF,2), pL8, ws, sT0)
        lab = A.newlabel()
        A("s_cmp_ge_u32 s%d, 80\ns_cbranch_scc1 %s", sRW, lab)
        A("s_mov_b64 exec, 0x00ff00ff")
        A("s_add_u32 s%d, s%d, %d\nbuffer_store_dwordx2 %s, v%d, %s, s%d offen", sT0, oXPst, k*SLOT, v(vBUF,2), pXP, ws, sT0)
        if opt.get("ringr"): A("s_add_u32 s%d, s%d, %d\nbuffer_store_dwordx2 %s, v%d, %s, s%d offen sc1", sT0, oXPstr, k*SLOT, v(vBUF,2), pXP, ws, sT0)
        elif k == 0:
            A("s_mov_b64 exec, -1\nv_mul_u32_u24 v%d, 20480, v%d\nv_and_b32 v%d, 7, v%d\nv_lshl_add_u32 v%d, v%d, 4, v%d", t0, vG, t1, vN, t0, t1, t0)
            A("v_and_b32 v%d, 1, v%d\nv_xor_b32 v%d, 1, v%d", vBUF+4, vG, vBUF+4, vBUF+4)
            for r in range(1, 4): A("v_mov_b32 v%d, v%d", vBUF+4+r, vBUF+4)
            A("s_mov_b32 exec_lo, 0x00ff00ff\ns_mov_b32 exec_hi, 0x00ff00ff")
            for i in range(16):
                A("s_add_u32 s%d, s%d, %d\nbuffer_store_dwordx4 %s, v%d, %s, s%d offen sc1", sT0, oXPstr, i*4*20480, v(vBUF+4,4), t0, ws, sT0)
        A("s_mov_b64 exec, -1")
        A.label(lab)
        A("s_nop 1")
    sexpr(A, sFCHo, F_CH, (64*128, sB), (128, sME))
    sexpr(A, sFKVo, F_KV, (32*256, sB), (256, sH))
    A("v_mov_b32 v%d, 0\ns_mov_b64 exec, 1\nbuffer_store_dword v%d, v%d, %s, s%d offen sc1\ns_mov_b64 exec, -1", t0, t0, t0, ws, sFCHo)
    A("s_waitcnt vmcnt(0) lgkmcnt(0)")
    A("s_barrier")
    A("s_cmp_lg_u32 s%d, 0\ns_cbranch_scc1 L_ch_rdy", sW)
    A("s_mov_b64 exec, 1\nv_mov_b32 v%d, 1", t1)
    A("buffer_atomic_add v%d, v%d, s[12:15], 0 offen offset:%d", t1, t0, D_READY)
    A("s_mov_b64 exec, -1")
    A.label("L_ch_rdy")

    stamp(1)
    vD = [vAF, vAF+1, vAF+2]
    vTRq = [vAF+3, vAF+4, vAF+5]
    vTRv = vAF+6
    sexpr(A, sT1, 0, (384, sH), (192, sU))
    for i in range(3):
        A("v_add_u32 v%d, %d, v0\nv_mul_u32_u24 v%d, 171, v%d\nv_lshrrev_b32 v%d, 11, v%d", t0, 64*i, t1, t0, t1, t1)
        A("v_mul_u32_u24 v%d, 12, v%d\nv_sub_u32 v%d, v%d, v%d", t2, t1, t2, t0, t2)
        A("v_mul_u32_u24 v%d, 12288, v%d\nv_lshl_add_u32 v%d, v%d, 4, v%d\nv_add_u32 v%d, s%d, v%d", t1, t1, t1, t2, t1, vD[i], sT1, t1)
    A("v_lshrrev_b32 v%d, 1, v%d\nv_and_b32 v%d, 1, v%d\nv_lshlrev_b32 v%d, 2, v%d\nv_lshl_add_u32 v%d, v%d, 4, v%d", t0, vG, t1, vG, t1, t1, t0, t0, t1)
    A("v_lshrrev_b32 v%d, 3, v%d\nv_lshl_add_u32 v%d, v%d, 3, v%d\nv_bfe_u32 v%d, v%d, 2, 1\nv_add_u32 v%d, v%d, v%d\nv_mul_u32_u24 v%d, 192, v%d", t1, vN, t0, t1, t0, t1, vN, t0, t0, t1, t5, t0)
    A("v_and_b32 v%d, 3, v%d", t4, vN)
    A("v_add_u32 v%d, %d, v%d", t5, L_WV, t5)
    A("v_lshl_add_u32 v%d, v%d, 3, v%d", vTRv, t4, t5)
    A("s_lshr_b32 s%d, s%d, 1\ns_mul_i32 s%d, s%d, 24576\ns_and_b32 s%d, s%d, 1\ns_mul_i32 s%d, s%d, 48", sT1, sW, sT1, sT1, sT2, sW, sT2, sT2)
    A("v_add_u32 v%d, s%d, v%d", t5, sT1, t5)
    for t in range(3):
        A("v_lshl_add_u32 v%d, v%d, 2, s%d\nv_add_u32 v%d, %d, v%d", t0, t4, sT2, t0, 16*t, t0)
        A("v_bfe_u32 v%d, v%d, 2, 1\nv_lshrrev_b32 v%d, 5, v%d", t3, t0, t2, t0)
        A("v_cmp_eq_u32 vcc, 2, v%d\nv_mad_u32_u24 v%d, v%d, 3, v%d\nv_mad_u32_u24 v%d, v%d, 3, 2", t2, t1, t2, t3, t3, t3)
        A("v_cndmask_b32 v%d, v%d, v%d, vcc\nv_lshlrev_b32 v%d, 4, v%d", t1, t1, t3, t1, t1)
        A("v_bfe_u32 v%d, v%d, 3, 2\nv_lshl_add_u32 v%d, v%d, 2, v%d", t3, t0, t1, t3, t1)
        A("v_lshl_add_u32 v%d, v%d, 1, v%d", vTRq[t], t1, t5)
    A("s_waitcnt lgkmcnt(0)")
    A("s_cmp_lt_u32 s%d, 2\ns_cselect_b32 s8, s%d, s%d\ns_cselect_b32 s9, s%d, s%d", sW, sPTR+4, sPTR+6, sPTR+5, sPTR+7)
    A("s_mov_b32 s10, %d\ns_mov_b32 s11, 0x20000", 640*6144*2)
    sVS = 92
    A("s_mov_b32 s%d, s%d\ns_mov_b32 s%d, s%d\ns_mov_b32 s%d, %d\ns_mov_b32 s%d, 0x20000", sVS, sPTR+8, sVS+1, sPTR+9, sVS+2, 640*6144*2, sVS+3)
    A("s_and_b32 s%d, s%d, 1", sT2, sW)
    sexpr(A, sGRP, 0, (64*12288, sT2))
    sexpr(A, sM, L_WV, (12288, sW))
    def dma64(srd, goff_s, goff_c, lds_s, lds_c):
        for i in range(12):
            A("s_add_u32 s%d, s%d, %d\ns_add_u32 m0, s%d, %d", sT0, goff_s, goff_c + (i//3)*16*12288, lds_s, lds_c + i*1024)
            A("s_nop 0\nbuffer_load_dwordx4 v%d, %s, s%d offen lds", vD[i % 3], srd, sT0)
    def qk_dma(c): dma64("s[8:11]", sGRP, c*128*12288, sM, (c % 2)*49152)
    svs = "s[%d:%d]" % (sVS, sVS+3)
    sexpr(A, sPW, 0, (64*12288, sW))
    def v_dma(kbase):
        dma64(svs, sPW, kbase*64*12288, sM, kbase*12288)
    qk_dma(0); qk_dma(1)
    A("s_mov_b32 s96, s%d\ns_mov_b32 s97, s%d\ns_mov_b32 s98, %d\ns_mov_b32 s99, 0x20000", sPTR+10, sPTR+11, 640*6144*2)
    A("v_and_b32 v%d, 1, v%d\nv_lshrrev_b32 v%d, 1, v%d\nv_lshlrev_b32 v%d, 2, v%d\nv_lshl_add_u32 v%d, v%d, 4, v%d\nv_mul_u32_u24 v%d, 1280, v%d", t0, vG, t1, vG, t1, t1, t0, t0, t1, t0, t0)
    sexpr(A, sT1, 0, (96*1280, sME), (320, sW))
    A("v_add_u32 v%d, s%d, v%d", t0, sT1, t0)
    A("v_lshl_add_u32 v%d, v%d, 4, v%d", t1, vN, t0)
    A("v_lshl_add_u32 v%d, v%d, 2, v%d\nv_add_u32 v%d, 256, v%d", t2, vN, t0, t2, t2)
    tb = vAF + 8
    areas = [vAF+8, vVX+0, vKX]
    for kap in range(3):
        for q in range(2):
            for r in range(4):
                A("s_mov_b32 s%d, %d", sT0, (32*kap + 8*q + r)*1280)
                A("buffer_load_dwordx4 %s, v%d, s[96:99], s%d offen", v(areas[kap] + 4*(4*q+r), 4), t1, sT0)
                A("buffer_load_dword %s, v%d, s[96:99], s%d offen", wo_reg(12+kap, q*4+r), t2, sT0)
    lab = A.newlabel()
    A("s_cmp_ge_u32 s%d, 2\ns_cbranch_scc1 %s", sW, lab)
    v_dma(8)
    A.label(lab)
    first_extra = True
    for c in range(5):
        A("s_waitcnt vmcnt(%d)\ns_barrier", 60 if c < 2 else 12)
        for kk in range(2):
            for t in range(3):
                for q in range(2):
                    for rp in range(2):
                        A("ds_read_b64_tr_b16 %s, v%d offset:%d", a(80*t + 8*(2*c+kk) + 4*q + 2*rp, 2), vTRq[t], (64*kk + 32*q + 2*rp)*192)
        for t in range(3): A("v_%s_u32 v%d, 49152, v%d", "add" if c % 2 == 0 else "subrev", vTRq[t], vTRq[t])
        A("s_waitcnt lgkmcnt(0)\ns_barrier")
        if c + 2 < 5: qk_dma(c+2)
        elif c == 3: v_dma(4)
        else: v_dma(0)
    A("s_waitcnt vmcnt(0)\ns_barrier")
    for kap in range(3):
        for qr in range(8):
            for be in range(4):
                i = be*3+kap
                if i < 2: A("v_accvgpr_write_b32 %s, v%d", wo_reg(i, qr), areas[kap] + 4*qr + be)
                else: A("v_mov_b32 %s, v%d", wo_reg(i, qr), areas[kap] + 4*qr + be)
    stamp(2); stamp(3)
    A("s_mov_b32 s%d, s%d", sT2, sW)
    A.label("L_wv_loop")
    A("s_mul_i32 s%d, s%d, 12288\nv_add_u32 v%d, s%d, v%d\nv_add_u32 v%d, s%d, v%d\nv_add_u32 v%d, %d, v%d", sT0, sT2, t0, sT0, vTRv, t1, sT0, vL16, t1, L_WV, t1)
    for tau in range(6):
        for q in range(2):
            for rp in range(2):
                A("ds_read_b64_tr_b16 %s, v%d offset:%d", v(vVX + 8*tau + 4*q + 2*rp, 2), t0, (32*q + 2*rp)*192 + 32*tau)
    A("s_waitcnt lgkmcnt(0)")
    for i in range(12):
        A("ds_write_b128 v%d, %s offset:%d", t1, v(vVX+4*i,4), 1024*i)
    A("s_waitcnt lgkmcnt(0)")
    A("s_add_u32 s%d, s%d, 4\ns_cmp_lt_u32 s%d, 10\ns_cbranch_scc1 L_wv_loop", sT2, sT2, sT2)

    stamp(4)
    A("s_mov_b32 s8, s%d\ns_mov_b32 s9, s%d\ns_mov_b32 s10, 10240", sPTR, sPTR+1)
    A("s_lshl_b32 s%d, s%d, 6\nv_add_u32 v%d, s%d, v0", sT0, sW, t0, sT0)
    for i in range(3):
        A("v_add_u32 v%d, %d, v%d", t1, 256*i, t0)
        A("v_mul_u32_u24 v%d, 205, v%d\nv_lshrrev_b32 v%d, 14, v%d", t2, t1, t2, t2)
        A("v_lshlrev_b32 v%d, 4, v%d", t3, t1)
        A("buffer_load_dwordx4 %s, v%d, s[8:11], 0 offen", v(vBUF,4), t3)
        A("v_mul_u32_u24 v%d, %d, v%d\nv_add_u32 v%d, v%d, v%d\nv_add_u32 v%d, %d, v%d", t2, MEM_RS-1280, t2, t4, t3, t2, t4, L_MEM, t4)
        A("v_cmp_gt_u32 vcc, 640, v%d\ns_waitcnt vmcnt(0)\ns_and_b64 exec, exec, vcc", t1)
        A("ds_write_b128 v%d, %s", t4, v(vBUF,4))
        A("s_mov_b64 exec, -1\ns_waitcnt lgkmcnt(0)")

    def kv_dma(part):
        so = sKXO if part == 0 else sVXO
        if part == 0: A("s_mov_b32 m0, s%d\ns_xor_b32 s%d, s%d, %d", sKVB, sKVB, sKVB, 8192)
        else: A("s_mov_b32 m0, s%d\ns_nop 0", sVB)
        A("buffer_load_dwordx4 v%d, %s, s%d offen sc1 lds", vL16, ws, so)
        A("s_mov_b32 exec_hi, 0")
        A("buffer_load_dwordx4 v%d, %s, s%d offen offset:1024 sc1 lds", vL16, ws, so)
        A("s_mov_b32 exec_hi, -1\ns_add_u32 s%d, s%d, 12288", so, so)
    sexpr(A, sKVB, L_KB, (1536, sW))
    sexpr(A, sVB, L_VB, (1536, sW))
    A("s_mov_b32 s%d, 0\ns_mov_b32 s%d, 3", sAVAIL, sNEED)
    A("v_mov_b32 v%d, 0", t0)
    A.label("L_ch_wait")
    A("buffer_load_dword v%d, v%d, s[12:15], 0 offen offset:%d sc1\ns_waitcnt vmcnt(0)", t1, t0, D_READY)
    A("v_cmp_gt_u32 vcc, %d, v%d\ns_cbranch_vccz L_ch_go0\ns_sleep 8\ns_branch %s", opt.get("nready", 256), t1, spin_stub(A, "L_ch_wait"))
    A.label("L_ch_go0")
    def kv_check():
        if not opt.get("noflags"):
            A("v_lshlrev_b32 v%d, 7, v0", t0)
            wait_flags(A, t0, t1, sFKVo, sNEED, 3, cache_sgpr=sAVAIL)
            A("s_add_u32 s%d, s%d, 1\ns_min_u32 s%d, s%d, 64", sNEED, sNEED, sNEED, sNEED)
    kv_check()
    kv_dma(0); kv_dma(1); kv_dma(0)
    A("s_waitcnt vmcnt(0)")
    A.label("L_ch_go")
    stamp(5)
    A("s_mov_b32 s%d, 0\ns_mov_b32 s%d, 0\ns_mov_b32 s%d, 0", sSTEP, sSLOTI, sPAR)
    if timing:
        for i in range(90, 102): A("s_mov_b32 s%d, 0", i)
    A("s_waitcnt lgkmcnt(0)")

    for r in range(20): A("v_mov_b32 v%d, 0", vACC+r)
    vPS = vAF
    vS = vAF + 12
    vP = vAF + 24
    vVm = vAF + 28
    vOA = vAF + 28
    vP0 = vT[4]
    def sc_loads():
        for t in range(3):
            A("buffer_load_dwordx4 %s, v%d, %s, s%d offen offset:%d sc1", v(vPS+4*t,4), pSC, ws, oSCld, 512*t)
    def vread(i):
        kap, tt = i//2, i % 2
        if i == 10: A("v_add_u32 v%d, %d, v%d", vWVrd, 5*12288, vWVrd)
        for q in range(2):
            A("ds_read_b128 %s, v%d offset:%d", v(vBUF+8*(i % NVB)+4*q,4), vWVrd, (kap % 5)*12288 + tt*2048 + q*1024)
        if i == 19: A("v_subrev_u32 v%d, %d, v%d", vWVrd, 5*12288, vWVrd)
    def vproj(poll_at):
        for i in range(3, 6): vread(i)
        for i in range(20):
            A("s_waitcnt lgkmcnt(%d)", min(2*(NVB-1), 2*(19-i)))
            A("v_smfmac_f32_16x16x64_bf16 %s, %s, %s, v%d", v(vACC+12+4*(i % 2),4), v(vAF+4*(i//2),4), v(vBUF+8*(i % NVB),8), vIdxQK)
            if i + NVB < 20: vread(i+NVB)
        A("s_nop 7")
        for tt in range(2):
            A("v_add_f32 v%d, v%d, v%d\nv_add_f32 v%d, v%d, v%d", vACC+12+4*tt, vACC+12+4*tt, vACC+13+4*tt, vACC+14+4*tt, vACC+14+4*tt, vACC+15+4*tt)
            A("v_cvt_pk_bf16_f32 v%d, v%d, v%d\nds_write_b32 v%d, v%d offset:%d", vT[tt], vACC+12+4*tt, vACC+14+4*tt, pVMst, vT[tt], L_VMI+8*tt)
    A.label("L_step")
    A("s_barrier")
    ts(0)
    for kap in range(10):
        A("ds_read_b128 %s, v%d offset:%d", v(vAF+4*kap,4), vAmem, 128*kap)
    lk = A.newlabel(); lk2 = A.newlabel()
    A("s_cmp_eq_u32 s%d, 2\ns_cbranch_scc1 %s", sW, lk)
    def kxr(t):
        for kap in range(2): A("ds_read_b128 %s, v%d offset:%d", v(vKX+4*kap,4), vKVr, 2048*t + 1024*kap)
        for hi in range(2): A("ds_read_b64 %s, v%d offset:%d", v(vKX+8+2*hi,2), vKVr, 4096 + 1024*hi + 8*t)
    kxr(0)
    A("s_branch %s", lk2)
    A.label(lk)
    kxr(1)
    A.label(lk2)
    for kap in range(10):
        A("s_waitcnt lgkmcnt(%d)", 13-kap if kap < 4 else min(15, 19-kap))
        for t in range(3):
            A("v_smfmac_f32_16x16x64_bf16 %s, %s, %s, v%d", v(vACC+4*t,4), v(vAF+4*kap,4), a(80*t+8*kap,8), vIdxQK)
            if kap == 9: vread(t)
            if kap == 3:
                for tv in (2*t, 2*t+1): A("ds_read_b128 %s, v%d offset:%d", v(vVX+4*tv,4), vL16, L_VB+1024*tv)
            if kap == 5 and t == 0: A("v_xor_b32 v%d, 8192, v%d", vKVr, vKVr)
    A("s_mov_b32 s%d, %d", sT0, SLOT)
    A("s_cmp_eq_u32 s%d, %d\ns_cselect_b32 s%d, %d, s%d", sSLOTI, RING-1, sDELTA, (-(RING-1)*SLOT) & 0xffffffff, sT0)
    for t in range(3):
        if t == 2: A("s_nop 0")
        A("v_add_f32 v%d, v%d, v%d\nv_add_f32 v%d, v%d, v%d", vACC+4*t, vACC+4*t, vACC+4*t+1, vACC+4*t+2, vACC+4*t+2, vACC+4*t+3)
        A("v_cvt_pk_bf16_f32 v%d, v%d, v%d", vT[t], vACC+4*t, vACC+4*t+2)
        A("ds_write_b16 v%d, v%d offset:%d\nds_write_b16_d16_hi v%d, v%d offset:%d", vQKw, vT[t], 32*t, vQKw, vT[t], 32*t+QK_RS)
    A("s_waitcnt lgkmcnt(0)\ns_barrier")
    ts(1)
    A("s_cmp_eq_u32 s%d, 3\ns_cbranch_scc1 L_w3", sW)
    for kap in range(3):
        A("ds_read_b128 %s, v%d offset:%d", v(vACC+4*kap,4), vQrd, 64*kap)
    A("s_cmp_lg_u32 s%d, 0\ns_cbranch_scc1 L_sc_x", sW)
    for kap in range(3):
        A("ds_read_b128 %s, v%d offset:%d", v(vKX+4*kap,4), vKrd, 64*kap)
    A.label("L_sc_x")
    A("s_lshl_b32 s%d, s%d, 9\nv_add_u32 v%d, s%d, v%d", sT0, sW, t0, sT0, pSC)
    A("s_waitcnt lgkmcnt(0)")
    A("v_mfma_f32_16x16x32_bf16 %s, %s, %s, 0", v(vSC,4), v(vKX,4), v(vACC,4))
    for kap in (1, 2):
        A("v_mfma_f32_16x16x32_bf16 %s, %s, %s, %s", v(vSC,4), v(vKX+4*kap,4), v(vACC+4*kap,4), v(vSC,4))
    A("s_mov_b64 exec, s[%d:%d]", sEVEN, sEVEN+1)
    A("s_nop 6")
    for r in range(4): A("v_and_or_b32 v%d, v%d, -2, s%d", vSC+r, vSC+r, sPAR)
    A("buffer_store_dwordx4 %s, v%d, %s, s%d offen", v(vSC,4), pSC, ws, oSCst)
    A("ds_write_b128 v%d, %s offset:%d", t0, v(vSC,4), L_SCO)
    A("s_mov_b64 exec, -1")
    A("s_cmp_eq_u32 s%d, 0\ns_cbranch_scc1 L_w0", sW)
    A("s_waitcnt lgkmcnt(0)")
    vproj(0)
    A("s_branch L_b2p")
    A.label("L_w3")
    vproj(0)
    A("s_branch L_b2p")
    A.label("L_w0")
    def km_export():
        A("s_mov_b32 exec_lo, 0x00ff00ff\ns_mov_b32 exec_hi, 0x00ff00ff")
        for kap in range(3):
            A("buffer_store_dwordx4 %s, v%d, %s, s%d offen offset:%d sc1", v(vKX+4*kap,4), pKM, ws, sKMO, 512*kap)
        A("s_mov_b64 exec, -1")
    A("s_cmp_eq_u32 s%d, %d\ns_cbranch_scc1 L_b2p", sSTEP, nsteps-1)
    for h2 in range(2):
        A("v_pk_add_f32 %s, %s, %s op_sel_hi:[1,0]", v(vSC+2*h2,2), v(vSC+2*h2,2), v(vBias,2))
    if opt.get("pa0", 2): A("s_sleep %d", opt.get("pa0", 2))
    A.label("L_pa")
    sc_loads()
    A("s_waitcnt vmcnt(0)")
    tagcheck(A, range(vPS, vPS+12), t0, "L_pa")
    for h2 in range(2):
        A("v_pk_add_f32 %s, %s, %s", v(vPS+2*h2,2), v(vPS+2*h2,2), v(vSC+2*h2,2))
    A("s_mov_b64 exec, s[%d:%d]", sEVEN, sEVEN+1)
    for t in (1, 2, 0): A("ds_write_b128 v%d, %s offset:%d", pSC, v(vPS+4*t,4), L_PSC+512*t)
    A("s_mov_b64 exec, -1")
    A.label("L_b2p")
    A("s_waitcnt lgkmcnt(0)\ns_barrier")
    ts(2)
    for t in (1, 2):
        A("ds_read_b128 %s, v%d offset:%d", v(vS+4*t,4), pSC, L_SCO+512*t)
        A("ds_read_b128 %s, v%d offset:%d", v(vPS+4*t,4), pSC, L_PSC+512*t)
    A("ds_read_b128 %s, v%d offset:%d", v(vS,4), pSC, L_PSC)
    for t in range(3): A("ds_read_b128 %s, v%d offset:%d", v(vVm+4*t,4), vVMIr, 512*t)
    A("s_cmp_eq_u32 s%d, %d\ns_cbranch_scc1 L_ch_done", sSTEP, nsteps-1)
    if not opt.get("nov"): kv_dma(1)
    ts(3)
    for t in (1, 2):
        A("s_waitcnt lgkmcnt(%d)", 6 if t == 1 else 4)
        for h2 in range(2):
            A("v_pk_add_f32 %s, %s, %s", v(vS+4*t+2*h2,2), v(vS+4*t+2*h2,2), v(vPS+4*t+2*h2,2))
    A("v_max3_f32 v%d, v%d, v%d, v%d", t0, vS+4, vS+5, vS+6)
    A("v_max3_f32 v%d, v%d, v%d, v%d", t1, vS+7, vS+8, vS+9)
    A("v_max3_f32 v%d, v%d, v%d, v%d", t0, t0, vS+10, vS+11)
    A("s_waitcnt lgkmcnt(3)")
    A("v_max3_f32 v%d, v%d, v%d, v%d", t1, t1, vS, vS+1)
    A("v_max3_f32 v%d, v%d, v%d, v%d", t0, t0, vS+2, vS+3)
    A("v_max_f32 v%d, v%d, v%d\nv_max_f32 v%d, v%d, v%d", t2, t0, t1, t0, t0, t1)
    A("s_nop 1\nv_permlane32_swap_b32 v%d, v%d", t0, t2)
    A("v_max_f32 v%d, v%d, v%d\nv_max_f32 v%d, v%d, v%d", t1, t0, t2, t0, t0, t2)
    A("s_nop 1\nv_permlane16_swap_b32 v%d, v%d", t0, t1)
    A("v_max_f32 v%d, v%d, v%d\nv_mul_f32 v%d, s%d, v%d", t0, t0, t1, t0, sSCL, t0)
    def sfma(r): A("v_pk_fma_f32 %s, %s, s[%d:%d], %s op_sel_hi:[1,0,0] neg_lo:[0,0,1] neg_hi:[0,0,1]", v(vS+r,2), v(vS+r,2), sSCL, sSCL+1, v(t0,2))
    for r in range(4, 12, 2): sfma(r)
    for r in range(4, 12): A("v_exp_f32 v%d, v%d", vS+r, vS+r)
    for r in (0, 2): sfma(r)
    for i in range(4): A("v_cvt_pk_bf16_f32 v%d, v%d, v%d", vP+i, vS+4+2*i, vS+5+2*i)
    A("v_exp_f32 v%d, v%d\nv_exp_f32 v%d, v%d", vS, vS, vS+1, vS+1)
    ts(4)
    vO = vBUF
    pk = lambda d, x: "v_pk_add_f32 %s, %s, %s" % (v(d,2), v(d,2), v(x,2))
    side = {0: "v_exp_f32 v%d, v%d\nv_exp_f32 v%d, v%d" % (vS+2, vS+2, vS+3, vS+3),
            1: pk(vS+4, vS+6) + "\n" + pk(vS+8, vS+10) + "\nv_cvt_pk_bf16_f32 v%d, v%d, v%d" % (vP0, vS, vS+1),
            2: "v_cvt_pk_bf16_f32 v%d, v%d, v%d\n" % (vP0+1, vS+2, vS+3) + pk(vS, vS+2) + "\n" + pk(vS+4, vS+8),
            3: pk(vS, vS+4) + "\nv_add_f32 v%d, v%d, v%d\nv_add_f32 v%d, v%d, v%d\ns_nop 0" % (t0, vS, vS+1, t1, vS, vS+1),
            4: "v_permlane32_swap_b32 v%d, v%d\nv_add_f32 v%d, v%d, v%d\nv_add_f32 v%d, v%d, v%d\ns_nop 0" % (t0, t1, t2, t0, t1, t0, t0, t1),
            5: "v_permlane16_swap_b32 v%d, v%d\nv_add_f32 v%d, v%d, v%d\nv_rcp_f32 v%d, v%d\ns_waitcnt lgkmcnt(0)" % (t0, t2, t0, t0, t2, vS, t0)}
    for t in range(6):
        A("v_mfma_f32_16x16x32_bf16 %s, %s, %s, 0", v(vO+4*t,4), v(vVX+4*t,4), v(vP,4))
        A(side[t])
    def exports():
        A("v_and_b32 v%d, 7, v0\nv_lshrrev_b32 v%d, 4, v0\nv_mul_u32_u24 v%d, %d, v%d\nv_lshl_add_u32 v%d, v%d, 4, v%d", t0, t1, t2, QK_RS, t0, t2, t1, t2)
        for kap in range(3): A("ds_read_b128 %s, v%d offset:%d", v(vKX+4*kap,4), t2, L_K+64*kap)
        for p in range(3): A("ds_read_b128 %s, v%d offset:%d", v(vVX+4*p,4), vVMIr, 512*p)
        A("v_lshlrev_b32 v%d, 4, v%d\nv_lshl_add_u32 v%d, v%d, 7, v%d", t0, t0, t0, t1, t0)
        A("s_mov_b32 exec_lo, 0x00ff00ff\ns_mov_b32 exec_hi, 0x00ff00ff\ns_waitcnt lgkmcnt(3)")
        for kap in range(3):
            A("buffer_store_dwordx4 %s, v%d, %s, s%d offen offset:%d sc1", v(vKX+4*kap,4), t0, ws, sKMO, 512*kap)
        A("s_mov_b32 exec_lo, -1\ns_mov_b32 exec_hi, 0\ns_waitcnt lgkmcnt(0)")
        for p in range(3):
            A("buffer_store_dwordx4 %s, v%d, %s, s%d offen offset:%d sc1", v(vVX+4*p,4), vL16, ws, sVMO, 512*p)
        A("v_mov_b32 v%d, 0\nv_mov_b32 v%d, s%d\ns_mov_b64 exec, 1\nbuffer_store_dword v%d, v%d, %s, s%d offen sc1\ns_mov_b64 exec, -1", t2, t3, sSTEP, t3, t2, ws, sFCHo)
        A("s_add_u32 s%d, s%d, %d\ns_add_u32 s%d, s%d, %d", sKMO, sKMO, 3072, sVMO, sVMO, 3072)
    def ocvt(t):
        for h2 in range(2):
            A("v_pk_mul_f32 %s, %s, %s op_sel_hi:[1,0]", v(vO+4*t+2*h2,2), v(vO+4*t+2*h2,2), v(vS,2))
            A("v_cvt_pk_bf16_f32 v%d, v%d, v%d", vOA+2*t+h2, vO+4*t+2*h2, vO+4*t+2*h2+1)
    for t in range(6):
        A("v_mfma_f32_16x16x16_bf16 %s, %s, %s, %s", v(vO+4*t,4), v(vVm+2*t,2), v(vP0,2), v(vO+4*t,4))
        for r in range(4*t, min(4*t+4, 20)): A("v_mov_b32 v%d, 0", vACC+r)
    ocvt(0); ocvt(1); ocvt(2)
    ts(5)
    for kap in range(3):
        for be in range(5):
            A("v_smfmac_f32_16x16x64_bf16 %s, %s, %s, v%d", v(vACC+4*be,4), v(vOA+4*kap,4), wo_oct(be*3+kap), vIdxWo)
            if kap == 0 and be < 3: ocvt(3+be)
            if kap == 1 and be == 0: adv(oSCst, oSCld)
    A("s_nop 3")
    for be in range(5):
        for h2 in range(2):
            dst = vBUF + 4*h2 + be if be < 4 else vBUF + 8 + h2
            A("v_cvt_pk_bf16_f32 v%d, v%d, v%d", dst, vACC+4*be+2*h2, vACC+4*be+2*h2+1)
        if be == 3:
            for r in (0, 2, 4, 6): A("v_and_or_b32 v%d, v%d, -2, s%d", vBUF+r, vBUF+r, sPAR)
            A("buffer_store_dwordx4 %s, v%d, %s, s%d offen", v(vBUF,4), pA, ws, oPBst)
            A("buffer_store_dwordx4 %s, v%d, %s, s%d offen offset:256", v(vBUF+4,4), pA, ws, oPBst)
    A("v_and_or_b32 v%d, v%d, -2, s%d", vBUF+8, vBUF+8, sPAR)
    A("buffer_store_dwordx2 %s, v%d, %s, s%d offen", v(vBUF+8,2), pL8, ws, oPBst2)
    ts(6)
    if timing: ts(7)
    A("s_cmp_ge_u32 s%d, 80\ns_cbranch_scc1 L_nored", sRW)
    sets = [vVX, vAF]
    def pb_loads(k):
        for i in range(4):
            A("buffer_load_dwordx4 %s, v%d, %s, s%d offen sc1", v(sets[k]+4*i,4), pPB, ws, oPB0+i)
    if opt.get("pb0", 7): A("s_sleep %d", opt.get("pb0", 7))
    pb_loads(0)
    A("s_sleep %d", opt.get("pb1", 2))
    for k in range(2):
        A.label("L_pb%d" % k)
        pb_loads(1-k)
        A("s_waitcnt vmcnt(4)")
        A("v_mfma_f32_16x16x32_bf16 %s, %s, %s, 0", v(vKX,4), v(vSEL,4), v(sets[k],4))
        for i in (1, 2, 3):
            A("v_mfma_f32_16x16x32_bf16 %s, %s, %s, %s", v(vKX,4), v(vSEL,4), v(sets[k]+4*i,4), v(vKX,4))
        tagcheck(A, range(sets[k], sets[k]+16, 2), t1, "L_pb%d" % (1-k))
        if k == 0: A("s_branch L_pbok")
    A.label("L_pbok")
    for r in range(4): A("v_add_f32_dpp v%d, v%d, v%d row_ror:8 row_mask:0xf bank_mask:0xf", vKX+4+r, vKX+r, vKX+r)
    A("s_mov_b64 exec, 0x00ff00ff")
    A("v_cvt_pk_bf16_f32 v%d, v%d, v%d\nv_cvt_pk_bf16_f32 v%d, v%d, v%d", vKX+8, vKX+4, vKX+5, vKX+9, vKX+6, vKX+7)
    A("v_and_or_b32 v%d, v%d, -2, s%d", vKX+8, vKX+8, sPAR)
    if opt.get("swap"): A("buffer_store_dwordx2 %s, v%d, %s, s%d offen", v(vKX+8,2), pXP, ws, oXPst)
    A("buffer_store_dwordx2 %s, v%d, %s, s%d offen sc1", v(vKX+8,2), pXP, ws, oXPstr)
    if not opt.get("swap"): A("buffer_store_dwordx2 %s, v%d, %s, s%d offen", v(vKX+8,2), pXP, ws, oXPst)
    A("s_mov_b64 exec, -1")
    ts(7)
    if opt.get("pc0", 10): A("s_sleep %d", opt.get("pc0", 10))
    A("s_branch L_pc0")
    A.label("L_nored")
    lab = A.newlabel()
    A("s_cmp_lg_u32 s%d, 3\ns_cbranch_scc1 %s", sW, lab)
    if opt.get("expd", 22): A("s_sleep %d", opt.get("expd", 22))
    if not opt.get("noexp"): exports()
    kv_check()
    if opt.get("expd", 22): A("s_branch L_pc0")
    A.label(lab)
    A("s_sleep %d", opt.get("pcn", 26))
    A.label("L_pc0")
    adv(oPBst, oPBst2, oPB0, oPB1, oPB2, oPB3, oXPst)
    advr(oXPstr)
    for r in range(20): A("v_mov_b32 v%d, 0", vACC+r)
    ts(8)
    vL, vR, vU = vBUF, vBUF+12, vAF
    def xp_loads(base, o0, oB):
        for rho in range(2):
            A("buffer_load_dwordx4 %s, v%d, %s, s%d offen offset:%d sc1", v(base+4*rho,4), pA, ws, o0, 256*rho)
        A("buffer_load_dwordx2 %s, v%d, %s, s%d offen sc1", v(base+8,2), pB, ws, oB)
    if not opt.get("seq", 1):
        xp_loads(vL, oXPl0, oXPlB)
        if opt.get("pc1", 0): A("s_sleep %d", opt.get("pc1", 0))
        xp_loads(vR, oXPr0, oXPrB)
        A("s_waitcnt vmcnt(3)\ns_branch L_pc1")
    A.label("L_pc")
    xp_loads(vL, oXPl0, oXPlB)
    A("s_waitcnt vmcnt(0)")
    A.label("L_pc1")
    tagcheck(A, range(vL, vL+10, 2), t1, "L_pc")
    ts(9)
    if opt.get("seq", 1): xp_loads(vR, oXPr0, oXPrB)
    for i in range(10):
        A("v_lshlrev_b32 v%d, 16, v%d\nv_and_b32 v%d, 0xffff0000, v%d", vU+2*i, vL+i, vU+2*i+1, vL+i)
    adv(oXPl0, oXPlB)
    A("s_add_u32 s%d, s%d, 1\ns_add_u32 s%d, s%d, 1\ns_cmp_eq_u32 s%d, %d\ns_cselect_b32 s%d, 0, s%d", sSTEP, sSTEP, sSLOTI, sSLOTI, sSLOTI, RING, sSLOTI, sSLOTI)
    A("s_branch L_pr1")
    A.label("L_pr")
    xp_loads(vR, oXPr0, oXPrB)
    A.label("L_pr1")
    A("s_waitcnt vmcnt(0)")
    tagcheck(A, range(vR, vR+10, 2), t1, "L_pr")
    ts(10)
    for i in range(10):
        A("v_dot2_f32_bf16 v%d, v%d, s%d, v%d\nv_dot2_f32_bf16 v%d, v%d, s%d, v%d", vU+2*i, vR+i, sONEL, vU+2*i, vU+2*i+1, vR+i, sONEH, vU+2*i+1)
    for i in range(10):
        A("v_cvt_pk_bf16_f32 v%d, v%d, v%d", vL+i, vU+2*i, vU+2*i+1)
        if i == 3: A("ds_write_b128 v%d, %s", vMEMw, v(vL,4))
        if i == 7: A("ds_write_b128 v%d, %s offset:%d", vMEMw, v(vL+4,4), MEM_RS)
    A("ds_write_b32 v%d, v%d\nds_write_b32 v%d, v%d offset:%d", vMEMw4, vL+8, vMEMw4, vL+9, MEM_RS)
    if not opt.get("nok"): kv_dma(0)
    advr(oXPr0, oXPrB)
    A("s_xor_b32 s%d, s%d, 1", sPAR, sPAR)
    if timing and not opt.get("os"):
        ts(11); ts(12)
        A("s_waitcnt lgkmcnt(0)")
        if opt.get("rt"):
            lab = A.newlabel()
            A("s_cmp_lg_u32 s%d, 41\ns_cbranch_scc1 %s", sSTEP, lab)
            for i in range(12): A("s_mov_b32 s%d, s%d", 90+i, sTS+2*i)
            A.label(lab)
        else:
          for i in range(12):
            A("s_sub_u32 s%d, s%d, s%d\ns_add_u32 s%d, s%d, s%d", sT0, sTS+2*(i+1), sTS+2*i, 90+i, 90+i, sT0)
    A("s_waitcnt lgkmcnt(0)")
    A("s_branch L_step")
    A.label("L_ch_done")
    A("s_waitcnt lgkmcnt(0)")
    lab = A.newlabel()
    A("s_cmp_lg_u32 s%d, 3\ns_cbranch_scc1 %s", sW, lab)
    exports()
    A.label(lab)
    if timing: A("s_mov_b32 s%d, s98\ns_mov_b32 s%d, s99\ns_mov_b32 s%d, s96\ns_mov_b32 s%d, s97", 64, 65, 66, 67)
    stamp(6)
    if timing: A("s_mov_b32 s98, s64\ns_mov_b32 s99, s65\ns_mov_b32 s96, s66\ns_mov_b32 s97, s67")
    if timing:
        sexpr(A, sT1, DBG_OFF, (256, 2), (64, sW))
        A("s_mov_b64 exec, 1\nv_mov_b32 v2, 0")
        for i in range(12):
            A("v_mov_b32 v1, s%d\nbuffer_store_dword v1, v2, %s, s%d offen offset:%d\ns_nop 1", 90+i, ws, sT1, 4*i)
        A("v_mov_b32 v1, s%d\nbuffer_store_dword v1, v2, %s, s%d offen offset:56\ns_nop 1", sME, ws, sT1)
        A("v_mov_b32 v1, s%d\nbuffer_store_dword v1, v2, %s, s%d offen offset:52\ns_nop 1", sB, ws, sT1)
        A("v_mov_b32 v1, 1\nbuffer_store_dword v1, v2, %s, s%d offen offset:60", ws, sT1)
        A("s_mov_b64 exec, -1")
    A("s_waitcnt vmcnt(0) lgkmcnt(0)\ns_barrier")
    lab = A.newlabel()
    A("s_cmp_lg_u32 s%d, 3\ns_cbranch_scc1 %s", sW, lab)
    A("v_mov_b32 v%d, 0\nv_mov_b32 v%d, 64\ns_mov_b64 exec, 1\nbuffer_store_dword v%d, v%d, %s, s%d offen sc1\ns_mov_b64 exec, -1", t0, t1, t1, t0, ws, sFCHo)
    A.label(lab)

def gen_chain_only(timing=True, opt={}):
    A = Asm()
    K = "chain_kernel"
    emit_common_prologue(A)
    A("s_cmp_ge_u32 s%d, 4\ns_cbranch_scc1 L_end", sT3)
    A("s_cmp_ge_u32 s%d, 32\ns_cbranch_scc1 L_end", sJ)
    A("s_lshr_b32 s%d, s%d, 1\ns_and_b32 s%d, s%d, 1", sB, sT3, sX, sT3)
    emit_chain(A, timing=timing, opt=opt)
    A.label("L_end")
    A("s_endpgm")
    emit_stubs(A, "L_abort")
    A.label("L_abort")
    emit_abort(A)
    return build_file([(K, 256, 256, 163840)], [(K, A, 512, 102, 256)])

if __name__ == "__main__":
    base = dict(nready=128, noflags=1)
    open("chain_t.s", "w").write(gen_chain_only(True, base))
    open("chain_r.s", "w").write(gen_chain_only(True, dict(base, rt=1)))
    import sys
    for i, arg in enumerate(sys.argv[1:]):
        open("chain_v%d.s" % i, "w").write(gen_chain_only(True, dict(base, **eval("dict(%s)" % arg))))
```

```python
NSEG = 64
HS = 64*12288 + 4352
HM = 64*3072 + 1280
KX_OFF = 0
VX_OFF = KX_OFF + 64*HS
OX_OFF = VX_OFF + 64*HS
KM_OFF = OX_OFF + 2*64*32*12288
VM_OFF = KM_OFF + 64*HM
RING_OFF = VM_OFF + 64*HM
REC = 2048
R_SC = 0
R_PB = 64*REC
R_XPL = R_PB + 64*10240
R_XPR = R_XPL + 2*10240
SLOT = R_XPR + 2*10240
RING = 3
FLAG_OFF = RING_OFF + 2*RING*SLOT
F_KV = FLAG_OFF
F_CH = F_KV + 128*128
XR_OFF = F_CH + 128*128
SK_OFF = XR_OFF + 2*64*20480
FO_OFF = SK_OFF + 96*128
F_END = FO_OFF + 32*128
WOF_OFF = 184*1024*1024
PART_OFF = 208*1024*1024
SCRATCH_OFF = 180*1024*1024
DBG_OFF = 202*1024*1024
L_MEM = 0
MEM_RS = 1344
L_SCO = L_MEM
L_PSC = L_MEM + 2048
L_VMI = 38976
L_Q = L_MEM + 8*MEM_RS
QK_RS = 224
L_K = L_Q + 8*QK_RS
L_KVB = L_K + 8*QK_RS
L_KB = 16384
L_VB = 32768
L_BCAST = 38912
L_WV = 40960

assert F_END < SCRATCH_OFF and SCRATCH_OFF + 256*16384 <= WOF_OFF and WOF_OFF + 2*192*40960 < DBG_OFF
D_TICKET = 0
D_CHRDY = 32
D_OVF = 32
D_READY = 40
D_QUEUE = 44
D_Q8 = 224
D_WOF = 48
D_FO = 64
D_SK = 192
import os
SPLIT = eval(os.environ.get('SPLIT', '[1]*8 + [4]*5 + [8]*3'))
FIRST_SPLIT = 8
QA_U = int(os.environ.get('QA_U', 6))
NR2 = int(os.environ.get('NR2', 16))
```

```python
import sys
from asmlib import *
from layout import *
import chain, bulk
from chain import sexpr, sW, sB, sX, sJ, sH, sT0, sT1, sT2, sT3, WS

def gen(opt={}, listform=False, prof=False):
    A = Asm(); K = KNAME + "_kernel"
    chain.emit_common_prologue(A)
    def stamp(i):
        if not prof: return
        A("s_memrealtime s[96:97]\ns_waitcnt lgkmcnt(0)\ns_mov_b64 exec, 1\nv_mov_b32 v1, s96\nv_mov_b32 v2, 0")
        sexpr(A, 98, DBG_OFF+131072, (256, 2), (64, sW), tmp=99)
        A("buffer_store_dword v1, v2, %s, s98 offen offset:%d\ns_mov_b64 exec, -1\ns_nop 1", WS, 4*i)
    A("s_mov_b32 s%d, s%d\ns_mov_b32 s%d, s%d", bulk.sXCD, sT3, bulk.sJJ, sJ)
    stamp(0)
    A("s_cmp_ge_u32 s%d, 32\ns_cbranch_scc1 L_end", sJ)
    A("s_cmp_ge_u32 s%d, 4\ns_cbranch_scc1 L_bulk", sT3)
    A("s_lshr_b32 s%d, s%d, 1\ns_and_b32 s%d, s%d, 1", sB, sT3, sX, sT3)
    chain.emit_chain(A, timing=False, opt=opt)
    stamp(1)
    A("s_mov_b32 s%d, 0\ns_branch L_op", bulk.sIT)
    A.label("L_bulk")
    A("s_bfe_u32 s%d, s%d, 0x10001\ns_and_b32 s%d, s%d, 1\ns_lshr_b32 s%d, s%d, 1", sB, sT3, sT1, sT3, sT2, sJ)
    sexpr(A, sH, 0, (16, sT1), (1, sT2))
    A("s_and_b32 s%d, s%d, 1", bulk.sMAT, sJ)
    sexpr(A, sT1, F_KV, (32*256, sB), (256, sH), (128, bulk.sMAT))
    lab = A.newlabel()
    A("s_cmp_lg_u32 s%d, 0\ns_cbranch_scc1 %s", sW, lab)
    A("v_mov_b32 v1, 0\nv_lshlrev_b32 v3, 7, v0\ns_mov_b32 s%d, %d", sT0, SK_OFF)
    lz = A.newlabel()
    A("s_cmp_lg_u32 s%d, 0\ns_cbranch_scc1 %s", sJ, lz)
    A("buffer_store_dword v1, v3, %s, s%d offen sc1\ns_add_u32 s%d, s%d, 8192\nbuffer_store_dword v1, v3, %s, s%d offen sc1", WS, sT0, sT0, sT0, WS, sT0)
    A.label(lz)
    A("v_mov_b32 v1, 0\nv_mov_b32 v2, 1\ns_mov_b64 exec, 1\nbuffer_store_dword v1, v1, %s, s%d offen sc1\ns_waitcnt vmcnt(0)", WS, sT1)
    A("buffer_atomic_add v2, v1, s[12:15], 0 offen offset:%d\ns_mov_b64 exec, -1", D_READY)
    A.label(lab)
    bulk.emit_kv(A)
    stamp(2)
    A("s_cmp_eq_u32 s%d, 0\ns_cbranch_scc1 L_qa", bulk.sMAT)
    bulk.emit_wof(A)
    stamp(4)
    A.label("L_qa")
    A("v_mov_b32 v1, 0")
    bulk.dbg_wait(A, None, D_READY, 256, 1, 2)
    bulk.emit_qa(A)
    stamp(3)
    A("s_mov_b32 s%d, s%d", bulk.sIT, bulk.sMAT)
    A.label("L_op")
    bulk.emit_op(A, prof)
    stamp(5)
    A.label("L_end")
    A("s_endpgm")
    chain.emit_stubs(A, "L_abort")
    A.label("L_abort")
    chain.emit_abort(A)
    txt = build_file([(K, 256, 256, 163840)], [(K, A, 512, 102, 256)])
    if not listform: txt = txt.replace("; @launch kernel=%s grid" % K, "; @launch grid")
    return txt

if __name__ == "__main__":
    open("cdna_kernels/%s.s" % KNAME, "w").write(gen())
    open("gen/%s" % (sys.argv[1] if len(sys.argv) > 1 else "all_l.s"), "w").write(gen(listform=True, prof=True))
```

```python
from asmlib import *
from layout import *
from chain import wait_flags, sexpr, spin_stub, sW, sB, sH, sT0, sT1, sT2, sT3, WS, VAlloc, f32bits, sSPIN
import math

sMAT = 18
sXO = 34
sXB = 35
sSEG = 36
sST0, sST1 = 37, 38
sFLG = 39
sG0, sL0, sG1 = 40, 41, 42
sKA = 88
X_BUF = 40960
L_X = 0
L_QI = 5*20480

def load_w(A, ptr_off, tag):
    vD = [1, 2, 3]; vTR = 4; t0, t1, t2, vN, vG = 5, 6, 7, 8, 9
    A("s_mul_i32 s%d, s%d, 56\ns_add_u32 s%d, s0, s%d\ns_addc_u32 s%d, s1, 0", sT0, sB, sKA, sT0, sKA+1)
    ptr_off(A)
    A("s_mov_b32 s10, %d\ns_mov_b32 s11, 0x20000", 640*6144*2)
    A("v_and_b32 v%d, 15, v0\nv_lshrrev_b32 v%d, 4, v0", vN, vG)
    sexpr(A, sT1, 0, (384, sH), (32*12288, sW))
    for i in range(3):
        A("v_add_u32 v%d, %d, v0\nv_mul_u32_u24 v%d, 171, v%d\nv_lshrrev_b32 v%d, 12, v%d", t0, 64*i, t1, t0, t1, t1)
        A("v_mul_u32_u24 v%d, 24, v%d\nv_sub_u32 v%d, v%d, v%d", t2, t1, t2, t0, t2)
        A("v_mul_u32_u24 v%d, 12288, v%d\nv_lshl_add_u32 v%d, v%d, 4, v%d\nv_add_u32 v%d, s%d, v%d", t1, t1, t1, t2, t1, vD[i], sT1, t1)
    A("v_lshrrev_b32 v%d, 2, v%d\nv_lshl_add_u32 v%d, v%d, 3, v%d\nv_mul_u32_u24 v%d, 384, v%d", t0, vN, t0, vG, t0, t0, t0)
    A("v_and_b32 v%d, 3, v%d\nv_lshl_add_u32 v%d, v%d, 3, v%d\ns_mul_i32 s%d, s%d, 96\nv_add_u32 v%d, s%d, v%d", t1, vN, t0, t1, t0, sT1, sW, vTR, sT1, t0)
    sexpr(A, sL0, 0, (12288, sW))
    A("s_waitcnt lgkmcnt(0)")
    def dma(c):
        for i in range(12):
            A("s_mov_b32 s%d, %d\ns_add_u32 m0, s%d, %d", sT0, (c*128 + (i//3)*8)*12288, sL0, (c % 2)*49152 + i*1024)
            A("s_nop 0\nbuffer_load_dwordx4 v%d, s[8:11], s%d offen lds", vD[i % 3], sT0)
    A("s_barrier")
    dma(0); dma(1)
    for c in range(5):
        A("s_waitcnt vmcnt(%d)\ns_barrier", 12 if c < 4 else 0)
        for kk in range(4):
            for t in range(3):
                for hf in range(2):
                    A("ds_read_b64_tr_b16 %s, v%d offset:%d", a(80*t + 4*(4*c+kk) + 2*hf, 2), vTR, (32*kk + 4*hf)*384 + 32*t)
        A("v_%s_u32 v%d, 49152, v%d", "add" if c % 2 == 0 else "subrev", vTR, vTR)
        A("s_waitcnt lgkmcnt(0)\ns_barrier")
        if c + 2 < 5: dma(c+2)

OPT = {"il": 1}
class VM:
    def __init__(self, A): self.A = A; self.ops = []; self.waits = []
    def op(self, tag, n=1): self.ops += [tag]*n
    def wait(self, needs):
        self.A("s_waitcnt vmcnt(@@)")
        self.waits.append((len(self.A.lines)-1, len(self.ops), needs))
    def resolve(self):
        n = len(self.ops)
        for line, p, needs in self.waits:
            best = 63
            for tag, back in needs:
                idx = [i for i, t in enumerate(self.ops) if t == tag and (back > 0 or i < p)]
                q = max(idx)
                best = min(best, p - q - 1 + back*n)
            assert best >= 0
            self.A.lines[line] = self.A.lines[line].replace("@@", str(best))

HB = 20480
class Proj:
    def __init__(self, A, vXD, vXr, vXo, vXF, vACC, vTmp, NR=6):
        self.A, self.vXD, self.vXr, self.vXF, self.vACC, self.vTmp = A, vXD, vXr, vXF, vACC, vTmp; self.NR = NR; self.vXo = vXo
    def setup(self, x0=None):
        A = self.A
        A("s_load_dwordx2 s[8:9], s[%d:%d], 0", sKA, sKA+1)
        A("s_mov_b32 s10, %d", 2048*1280)
        A("v_lshrrev_b32 v5, 3, v0\nv_xor_b32 v6, v5, v0\nv_and_b32 v6, 7, v6\nv_mul_u32_u24 v5, 1280, v5\nv_lshl_add_u32 v5, v6, 4, v5")
        sexpr(A, sT1, 0, (8*1280, sW))
        A("v_add_u32 v%d, s%d, v5", self.vXD, sT1)
        sexpr(A, sL0, L_X, (5120, sW))
        r = self.vXr
        A("v_lshrrev_b32 v5, 4, v0\nv_xor_b32 v5, v5, v0\nv_and_b32 v5, 7, v5\nv_and_b32 v6, 7, v0\nv_lshlrev_b32 v6, 7, v6\nv_lshl_add_u32 v5, v5, 4, v6")
        A("v_bfe_u32 v6, v0, 3, 1\nv_mul_u32_u24 v6, 5120, v6\nv_add_u32 v%d, v5, v6\nv_add_u32 v%d, %d, v%d", r, r+1, HB, r)
        A("v_xor_b32 v%d, 64, v%d\nv_xor_b32 v%d, 64, v%d", self.vXo, r, self.vXo+1, r+1)
        A("s_mov_b32 s%d, %s\ns_mov_b32 s%d, s%d", sXO, "0" if x0 is None else "s%d" % x0, sXB, sL0)
        A("s_waitcnt lgkmcnt(0)")
        for j in range(self.NR-2):
            for f in self.dma_fillers(j % 2): A(f)
        A("s_waitcnt vmcnt(0)\ns_barrier")
        self.rd(0, 0); self.rd(0, 1)
    def dma_fillers(self, kh):
        out = []
        for i in range(5):
            t = "s_add_u32 m0, s%d, %d\ns_nop 0\nbuffer_load_dwordx4 v%d, s[8:11], s%d offen offset:%d lds" % (sXB, i*1024 - i*128, self.vXD, sXO, i*128)
            if i == 4:
                t += "\ns_add_u32 s%d, s%d, %d\ns_add_u32 s%d, s%d, %d" % (sXO, sXO, 640 if kh == 0 else 32*1280 - 640, sXB, sXB, HB)
                t += "\ns_add_u32 s%d, s%d, %d\ns_cmp_ge_u32 s%d, s%d\ns_cselect_b32 s%d, s%d, s%d" % (sT0, sL0, self.NR*HB, sXB, sT0, sXB, sL0, sXB)
            out.append(t)
        return out
    def rd(self, kh, k, only=None):
        for tt in range(2):
            if only is not None and tt != only: continue
            self.A("ds_read_b128 %s, v%d offset:%d", v(self.vXF + 8*((10*kh+k) % 4) + 4*tt, 4), (self.vXr if k % 2 == 0 else self.vXo) + kh, tt*10240 + (k//2)*1024)
    def half(self, kh, w_is_a, fill, vm, xtag, needs, gap=None):
        A = self.A
        dm = self.dma_fillers((kh + self.NR) % 2)
        if gap is not None: dm[4] += "\ns_add_u32 s%d, s%d, s%d" % (sXO, sXO, gap)
        for k in range(10):
            if k == 8:
                vm.wait(needs)
                A("s_barrier")
                r, t = self.vXr + kh, self.vTmp
                A("v_add_u32 v%d, %d, v%d\nv_subrev_u32 v%d, %d, v%d\nv_min_u32 v%d, v%d, v%d", r, 2*HB, r, t, self.NR*HB, r, r, r, t)
                A("v_xor_b32 v%d, 64, v%d", self.vXo + kh, r)
            nk = (kh, k+2) if k < 8 else (1-kh, k-8)
            if not OPT.get("il"): self.rd(*nk)
            A("s_waitcnt lgkmcnt(%d)", 4 if not OPT.get("il") else 2)
            kk = 10*kh + k
            for t in range(3):
                for tt in range(2):
                    acc = v(self.vACC + 8*t + 4*tt, 4); w = a(80*t + 4*kk, 4); x = v(self.vXF + 8*(kk % 4) + 4*tt, 4)
                    A("v_mfma_f32_16x16x32_bf16 %s, %s, %s, %s", acc, w if w_is_a else x, x if w_is_a else w, "0" if kk == 0 else acc)
                    if OPT.get("il") and tt == 0 and t < 2: self.rd(*nk, only=t)
                    if t == 2 and tt == 0 and k < 5:
                        A(dm[k]); vm.op(xtag)
            if k in fill:
                A(fill[k][0])
                for tag, n in fill[k][1]: vm.op(tag, n)

def emit_kv(A):
    ws = WS
    def ptr(A):
        A("s_lshl_b32 s%d, s%d, 3\ns_add_u32 s%d, s%d, s%d\ns_addc_u32 s%d, s%d, 0", sT0, sMAT, 90, sKA, sT0, 91, sKA+1)
        A("s_load_dwordx2 s[8:9], s[90:91], 24")
    load_w(A, ptr, "kv")
    vXD, vXr, vL16, vZ, vF, vTmp = 1, 2, 4, 10, 11, 12
    vXF, vACC, vO = 16, 48, 72
    P = Proj(A, vXD, vXr, 14, vXF, vACC, vTmp)
    A("v_lshlrev_b32 v%d, 4, v0\nv_mov_b32 v%d, 0\ns_mov_b32 s%d, 0", vL16, vZ, sSEG)
    sexpr(A, sT2, 0, (32, sB), (1, sH))
    sexpr(A, sFLG, F_KV, (256, sT2), (128, sMAT))
    A("s_lshr_b32 s%d, s%d, 1\ns_and_b32 s%d, s%d, 1", sT1, sW, sT3, sW)
    sexpr(A, sST0, KX_OFF-12288, (HS, sT2), (6144, sT1), (1024, sT3))
    sexpr(A, sST1, KX_OFF+4096-12288, (HS, sT2), (6144, sT1), (1024, sT3))
    A("s_cmp_eq_u32 s%d, 0\ns_cbranch_scc1 L_kv_st", sMAT)
    sexpr(A, sST0, VX_OFF-12288, (HS, sT2), (3072, sW))
    A.label("L_kv_st")
    A("s_mov_b32 s%d, s%d\ns_mov_b32 s%d, s%d", sG0, sST0, sG1, sST1)
    sexpr(A, sST0, SCRATCH_OFF, (16384, 2))
    A("s_mov_b32 s%d, s%d", sST1, sST0)
    P.setup()
    A("s_cmp_eq_u32 s%d, 1\ns_cbranch_scc1 L_kv1_loop", sMAT)
    for mat in range(2):
        L = "L_kv%d" % mat
        NST = 3
        def stores():
            if mat == 0:
                o = ["buffer_store_dwordx4 %s, v%d, %s, s%d offen offset:%d sc1" % (v(vO+4*i, 4), vL16, ws, sST0 if i < 2 else sST1, 2048 if i == 1 else 0) for i in range(3)]
                return [o[0] + "\n" + o[1], o[2]]
            o = ["buffer_store_dwordx4 %s, v%d, %s, s%d offen offset:%d sc1" % (v(vO+4*t, 4), vL16, ws, sST0, 1024*t) for t in range(3)]
            return [o[0] + "\n" + o[1], o[2]]
        A.label(L+"_loop")
        st = stores()
        l3 = A.newlabel()
        vm = VM(A)
        P.half(0, mat == 0, {5: (st[0], [("S", 2)]), 6: (st[1], [("S", NST-2)])}, vm, "X0", [("X1", 2)])
        flag = ("s_cmp_lg_u32 s%d, 0\ns_cbranch_scc1 %s\ns_cmp_lt_u32 s%d, 1\ns_cbranch_scc1 %s\n" % (sW, l3, sSEG, l3) +
                "s_cmp_lt_u32 s%d, 6\ns_cselect_b32 s%d, 0, 1\ns_sub_u32 s%d, s%d, s%d\nv_mov_b32 v%d, s%d\ns_mov_b64 exec, 1\n" % (sSEG, sT0, sT0, sSEG, sT0, vF, sT0) +
                "buffer_store_dword v%d, v%d, %s, s%d offen sc1\ns_mov_b64 exec, -1\n%s:" % (vF, vZ, ws, sFLG, l3))
        l4 = A.newlabel()
        early = "s_cmp_ge_u32 s%d, 6\ns_cbranch_scc1 %s\ns_waitcnt vmcnt(5)\n%s:" % (sSEG, l4, l4)
        P.half(1, mat == 0, {7: (early, []), 8: (flag, [])}, vm, "X1", [("X0", 1), ("S", 1)])
        vm.resolve()
        A("s_cmp_eq_u32 s%d, 0\ns_cselect_b32 s%d, s%d, s%d\ns_cselect_b32 s%d, s%d, s%d", sSEG, sST0, sG0, sST0, sST1, sG1, sST1)
        A("s_add_u32 s%d, s%d, 12288\ns_add_u32 s%d, s%d, 12288\ns_add_u32 s%d, s%d, 1", sST0, sST0, sST1, sST1, sSEG, sSEG)
        A("s_nop 1")
        if mat == 0:
            for t in range(3):
                for tt in range(2):
                    for h2 in range(2):
                        A("v_cvt_pk_bf16_f32 v%d, v%d, v%d", vO + (4*tt + 2*t if t < 2 else 8 + 2*tt) + h2, vACC + 8*t + 4*tt + 2*h2, vACC + 8*t + 4*tt + 2*h2 + 1)
        else:
            for t in range(3):
                for i in range(4):
                    A("v_cvt_pk_bf16_f32 v%d, v%d, v%d", vO + 4*t + i, vACC + 8*t + 2*i, vACC + 8*t + 2*i + 1)
        A("s_cmp_lt_u32 s%d, 64\ns_cbranch_scc1 %s_loop", sSEG, L)
        for x in stores(): A(x)
        if mat == 0: A("s_branch L_kv_fin")
    A.label("L_kv_fin")
    A("s_waitcnt vmcnt(0) lgkmcnt(0)\ns_barrier")
    lab = A.newlabel()
    A("s_cmp_lg_u32 s%d, 0\ns_cbranch_scc1 %s", sW, lab)
    A("v_mov_b32 v%d, 64\ns_mov_b64 exec, 1", vF)
    A("buffer_store_dword v%d, v%d, %s, s%d offen sc1\ns_mov_b64 exec, -1", vF, vZ, ws, sFLG)
    A.label(lab)


sUN = 36
sKXa, sKMa, sOXa = 37, 38, 39
sAV = 43
sSC2 = 44
sFCH = 45
sKXb, sKXc, sVXa, sVXb, sVXc, sVMa = 46, 47, 48, 49, 50, 51
sGAP, sSTR, sPREV = 56, 57, 58

def merge(A, M, Vv):
    n = len(M); done = 0
    for i, m in enumerate(M):
        A(m)
        upto = (len(Vv)*(i+1))//n
        for x in Vv[done:upto]:
            if callable(x): x()
            else: A(x)
        done = upto

def softmax_stream(vS, nv, vP, vP0, bias, t0, t1, t2, sSC):
    o = ["s_nop 7"]
    o += bias
    r = list(range(vS, vS+nv))
    o.append("v_max3_f32 v%d, v%d, v%d, v%d" % (t0, r[0], r[1], r[2]))
    o.append("v_max3_f32 v%d, v%d, v%d, v%d" % (t1, r[3], r[4], r[5]))
    o.append("v_max3_f32 v%d, v%d, v%d, v%d" % (t0, t0, r[6], r[7]))
    if nv == 12:
        o.append("v_max3_f32 v%d, v%d, v%d, v%d" % (t1, t1, r[8], r[9]))
        o.append("v_max3_f32 v%d, v%d, v%d, v%d" % (t0, t0, r[10], r[11]))
    o += ["v_max_f32 v%d, v%d, v%d" % (t2, t0, t1), "v_max_f32 v%d, v%d, v%d" % (t0, t0, t1), "s_nop 1", "v_permlane32_swap_b32 v%d, v%d" % (t0, t2)]
    o += ["v_max_f32 v%d, v%d, v%d" % (t1, t0, t2), "v_max_f32 v%d, v%d, v%d" % (t0, t0, t2), "s_nop 1", "v_permlane16_swap_b32 v%d, v%d" % (t0, t1)]
    o += ["v_max_f32 v%d, v%d, v%d" % (t0, t0, t1), "v_mul_f32 v%d, s%d, v%d" % (t0, sSC, t0)]
    o += ["v_fma_f32 v%d, v%d, s%d, -v%d" % (x, x, sSC, t0) for x in r]
    o += ["v_exp_f32 v%d, v%d" % (x, x) for x in r]
    o += ["v_cvt_pk_bf16_f32 v%d, v%d, v%d" % (vP0+i, vS+2*i, vS+2*i+1) for i in range(2)]
    o += ["v_cvt_pk_bf16_f32 v%d, v%d, v%d" % (vP+i, vS+4+2*i, vS+5+2*i) for i in range((nv-4)//2)]
    if nv == 8: o += ["v_mov_b32 v%d, 0" % (vP+2), "v_mov_b32 v%d, 0" % (vP+3)]
    pk = lambda d, x: "v_pk_add_f32 %s, %s, %s" % (v(d,2), v(d,2), v(x,2))
    o += [pk(vS, vS+2), pk(vS+4, vS+6)]
    if nv == 12: o += [pk(vS+8, vS+10), pk(vS, vS+8)]
    o += [pk(vS, vS+4), "v_add_f32 v%d, v%d, v%d" % (t0, vS, vS+1), "v_add_f32 v%d, v%d, v%d" % (t1, vS, vS+1), "s_nop 1",
          "v_permlane32_swap_b32 v%d, v%d" % (t0, t1), "v_add_f32 v%d, v%d, v%d" % (t2, t0, t1), "v_add_f32 v%d, v%d, v%d" % (t0, t0, t1), "s_nop 1",
          "v_permlane16_swap_b32 v%d, v%d" % (t0, t2), "v_add_f32 v%d, v%d, v%d" % (t0, t0, t2), "v_rcp_f32 v%d, v%d" % (vS, t0), "s_nop 1"]
    return o

def emit_qa(A, nunits=16, timing=False):
    ws = WS
    load_w(A, lambda A: A("s_load_dwordx2 s[8:9], s[%d:%d], 16", sKA, sKA+1), "qa")
    vXD, vXr, vL16, vZ, vTmp = 1, 2, 4, 10, 12
    pKM, pVM, vQw, vQw2, vQr, vFL = 5, 6, 7, 8, 9, 11
    t0, t1, t2 = 13, 14, 15
    vXF, vACC, vK, vV, vVm = 16, 48, 72, 144, 192
    vB0, vDG, vS0, vS1, vPa, vPb, vP0a, vP0b = 216, 220, 224, 232, 244, 248, 252, 254
    vN, vG = vS0, vS0+1
    P = Proj(A, vXD, vXr, 218, vXF, vACC, vTmp, NR=5)
    A("s_mul_i32 s%d, s%d, %d", sGAP, sMAT, 128*1280)
    P.setup(sGAP)
    A("v_lshlrev_b32 v%d, 4, v0\nv_mov_b32 v%d, 0\ns_mov_b32 s%d, s%d\ns_mov_b32 s%d, 0\ns_mov_b32 s%d, -1", vL16, vZ, sUN, sMAT, sAV, sPREV)
    A("v_and_b32 v%d, 15, v0\nv_lshrrev_b32 v%d, 4, v0\nv_lshlrev_b32 v%d, 7, v0", vN, vG, vFL)
    A("v_and_b32 v%d, 7, v%d\nv_lshlrev_b32 v%d, 4, v%d\nv_lshl_add_u32 v%d, v%d, 7, v%d", t0, vN, t0, t0, pKM, vG, t0)
    A("v_and_b32 v%d, 31, v0\nv_lshlrev_b32 v%d, 4, v%d", t0, pVM, t0)
    A("s_lshr_b32 s%d, s%d, 1\ns_and_b32 s%d, s%d, 1", sT1, sW, sT3, sW)
    sexpr(A, sT2, L_QI, (3072, sT1), (1024, sT3)); A("v_add_u32 v%d, s%d, v%d", vQw, sT2, vL16)
    sexpr(A, sT2, L_QI+2048, (3072, sT1), (8, sT3)); A("v_add_u32 v%d, s%d, v%d", vQw2, sT2, vL16)
    sexpr(A, sT2, L_QI, (12288, sW)); A("v_add_u32 v%d, s%d, v%d", vQr, sT2, vL16)
    A("v_mov_b32 v%d, 0xf149f2ca\nv_cmp_lt_u32 vcc, 1, v%d\ns_nop 1\nv_cndmask_b32 v%d, 0, v%d, vcc", t1, vG, vB0, t1)
    for r in range(4):
        A("v_lshl_add_u32 v%d, v%d, 2, %d\nv_cmp_gt_u32 vcc, v%d, v%d\ns_nop 1\nv_cndmask_b32 v%d, 0, v%d, vcc", t0, vG, r, t0, vN, vDG+r, t1)
    A("s_mov_b32 s%d, 0x%08x", sSC2, f32bits((192 ** -0.5) * math.log2(math.e)))
    sexpr(A, sT2, 0, (32, sB), (1, sH))
    sexpr(A, sKXa, KX_OFF, (HS, sT2), (12288, sW), (4*12288, sMAT))
    sexpr(A, sKMa, KM_OFF, (HM, sT2), (3072, sW), (4*3072, sMAT))
    sexpr(A, sOXa, OX_OFF, (128*32*6144, sB), (2*32*6144, sW), (6144, sH), (8*32*6144, sMAT))
    sexpr(A, sFCH, F_CH, (256, sT2))
    sexpr(A, sT1, F_KV, (256, sT2)); A("s_mov_b32 s%d, 64", sT2)
    wait_flags(A, vFL, t0, sT1, sT2, 3)
    def ts(i):
        if timing: A("s_memtime s[%d:%d]", 60+2*i, 61+2*i)
    if timing:
        for i in range(88, 102): A("s_mov_b32 s%d, 0", i)
    A.label("L_qa_loop")
    ts(0)
    A("s_cmp_lt_u32 s%d, %d\ns_cselect_b32 s%d, 2, 1\ns_cselect_b32 s%d, %d, 0", sUN, QA_U, sSTR, sGAP, 128*1280)
    vm = VM(A)
    def ld4(dst, voff, so, off): return "buffer_load_dwordx4 %s, v%d, %s, s%d offen offset:%d sc1" % (v(dst, 4), voff, ws, so, off)
    A("s_add_u32 s%d, s%d, 4096\ns_add_u32 s%d, s%d, 6144", sKXb, sKXa, sKXc, sKXa)
    A("s_add_u32 s%d, s%d, %d\ns_add_u32 s%d, s%d, 4096\ns_add_u32 s%d, s%d, 8192", sVXa, sKXa, VX_OFF-KX_OFF, sVXb, sVXa, sVXc, sVXa)
    A("s_add_u32 s%d, s%d, %d\ns_add_u32 s%d, s%d, 10240", sVMa, sKMa, VM_OFF-KM_OFF, sG0, sKXa)
    kx = []
    for u in range(2):
        for t in range(2):
            for kap in range(2): kx.append(ld4(vK + 24*(1+t) + 4*(3*u+kap), vL16, sKXa if u == 0 else sKXc, 2048*t + 1024*kap))
            kx.append(ld4(vK + 24*(1+t) + 4*(3*u+2), vL16, sKXb if u == 0 else sG0, 1024*t))
    vx = [ld4(vV + 4*tau, vL16, (sVXa, sVXb, sVXc)[tau//4], 1024*(tau % 4)) for tau in range(12)]
    mm = [ld4(vK + 4*k6, pKM, sKMa, 512*k6) for k6 in range(6)] + [ld4(vVm + 4*p, pVM, sVMa, 512*p) for p in range(6)]
    def spread(lst, ks, tag):
        out = {}
        n = (len(lst) + len(ks) - 1)//len(ks)
        for i, k in enumerate(ks):
            part = lst[i*n:(i+1)*n]
            if part: out[k] = ("\n".join(part), [(tag, len(part))])
        return out
    l3 = A.newlabel()
    oflag = ("s_cmp_lg_u32 s%d, 0\ns_cbranch_scc1 %s\ns_cmp_eq_u32 s%d, -1\ns_cbranch_scc1 %s\n" % (sW, l3, sPREV, l3) +
             "s_lshl_b32 s%d, s%d, 4\ns_add_u32 s%d, s%d, s%d\ns_lshl_b32 s%d, s%d, 7\ns_add_u32 s%d, s%d, %d\n" % (sT1, sB, sT0, sPREV, sT1, sT0, sT0, sT0, sT0, FO_OFF) +
             "v_mov_b32 v%d, 1\ns_mov_b64 exec, 1\nbuffer_atomic_add v%d, v%d, %s, s%d offen\ns_mov_b64 exec, -1\n%s:" % (t0, t0, vZ, ws, sT0, l3))
    def qcvt():
        A("s_nop 1")
        for t in range(3):
            for tt in range(2):
                for h2 in range(2):
                    A("v_cvt_pk_bf16_f32 v%d, v%d, v%d", vS0 + (4*tt + 2*t if t < 2 else 8 + 2*tt) + h2, vACC + 8*t + 4*tt + 2*h2, vACC + 8*t + 4*tt + 2*h2 + 1)
    def qwr(sg, tt):
        return "ds_write_b128 v%d, %s offset:%d\nds_write_b64 v%d, %s offset:%d" % (vQw, v(vS0+4*tt, 4), (2*sg+tt)*6144, vQw2, v(vS0+8+2*tt, 2), (2*sg+tt)*6144)
    lds = [(x, "K") for x in kx + vx]
    fills = {hj: {} for hj in range(8)}
    slots = [(hj, k) for hj in range(1, 6) for k in range(5, 10)]
    for (x, tag), (hj, k) in zip(lds, slots): fills[hj][k] = (x, [(tag, 1)])
    mslots = [(hj, k) for hj in (6, 7) for k in range(4, 10)]
    for x, (hj, k) in zip(mm, mslots):
        lb = A.newlabel()
        fills[hj][k] = ("s_cmp_lt_u32 s%d, s%d\ns_cbranch_scc1 %s\n%s\n%s:" % (sAV, sG1, lb, x, lb), [])
    fills[1][8] = (fills[1][8][0] + "\n" + oflag, fills[1][8][1])
    for hj in (2, 4, 6):
        for tt in range(2): fills[hj][tt] = (qwr(hj//2 - 1, tt), [])
    for hj in range(8):
        if hj == 6:
            A("s_lshl_b32 s%d, s%d, 2\ns_add_u32 s%d, s%d, s%d\ns_add_u32 s%d, s%d, 1", sG1, sUN, sG1, sG1, sW, sG1, sG1)
            wait_flags(A, vFL, t0, sFCH, sG1, 3, cache_sgpr=sAV, once=True)
        src = hj + 1 - 3
        needs = [("X%d" % (src % 8), 1 if src < 0 else 0)]
        if hj == 1: needs.append(("O", 1))
        P.half(hj % 2, True, fills[hj], vm, "X%d" % hj, needs, gap=sGAP if hj == 4 else None)
        if hj % 2 == 1: qcvt()
        ts(hj+1)
    for tt in range(2): A(qwr(3, tt))
    lb = A.newlabel()
    A("s_cmp_ge_u32 s%d, s%d\ns_cbranch_scc1 %s", sAV, sG1, lb)
    wait_flags(A, vFL, t0, sFCH, sG1, 3, cache_sgpr=sAV)
    for x in mm: A(x)
    A.label(lb)
    A("s_waitcnt lgkmcnt(0)\ns_barrier")
    vQ = vACC
    def qrd(qh):
        for k6 in range(6): A("ds_read_b128 %s, v%d offset:%d", v(vQ+4*k6, 4), vQr, 6144*qh + 1024*k6)
    qrd(0)
    A("s_waitcnt vmcnt(0)")
    ts(9)
    for u in range(2):
        for i in range(2): A("v_swap_b32 v%d, v%d", vK + 24 + 4*(3*u+2) + 2 + i, vK + 48 + 4*(3*u+2) + i)
    mf = "v_mfma_f32_16x16x32_bf16 %s, %s, %s, %s"
    for k6 in range(6):
        A("s_waitcnt lgkmcnt(%d)", 5-k6)
        for tl in range(2):
            A(mf, v(vS0+4*tl, 4), v(vK+24*tl+4*k6, 4), v(vQ+4*k6, 4), "0" if k6 == 0 else v(vS0+4*tl, 4))
    qrd(1)
    b0 = lambda S: ["v_pk_add_f32 %s, %s, %s op_sel_hi:[1,0]" % (v(S+2*h2,2), v(S+2*h2,2), v(vB0,2)) for h2 in range(2)]
    dg = lambda S: ["v_pk_add_f32 %s, %s, %s" % (v(S+2*h2,2), v(S+2*h2,2), v(vDG+2*h2,2)) for h2 in range(2)]
    M = []
    for k6 in range(6):
        for tl in range(3):
            M.append(("s_waitcnt lgkmcnt(%d)\n" % (5-k6) if tl == 0 else "") + mf % (v(vS1+4*tl, 4), v(vK+24*tl+4*k6, 4), v(vQ+4*k6, 4), "0" if k6 == 0 else v(vS1+4*tl, 4)))
    for x in softmax_stream(vS0, 8, vPa, vP0a, b0(vS0)+dg(vS0+4), t0, t1, t2, sSC2)[:8]: A(x)
    merge(A, M, softmax_stream(vS0, 8, vPa, vP0a, b0(vS0)+dg(vS0+4), t0, t1, t2, sSC2)[8:])
    oreg = [[vK + 4*t for t in range(12)], [vK + 48 + 4*t for t in range(6)] + [vACC + 4*t for t in range(6)]]
    def pv(qh, vP, vP0):
        o = []
        for t in range(12):
            o.append(mf % (v(oreg[qh][t],4), v(vV+4*t,4), v(vP,4), "0"))
        for t in range(12):
            o.append("v_mfma_f32_16x16x16_bf16 %s, %s, %s, %s" % (v(oreg[qh][t],4), v(vVm+2*t,2), v(vP0,2), v(oreg[qh][t],4)))
        return o
    def ofin(qh, vS):
        o = ["s_nop 7"]
        for kap in range(6):
            a0, a1 = oreg[qh][2*kap], oreg[qh][2*kap+1]
            for i, src in enumerate((a0, a0+2, a1, a1+2)):
                o.append("v_pk_mul_f32 %s, %s, %s op_sel_hi:[1,0]" % (v(src,2), v(src,2), v(vS,2)))
                o.append("v_cvt_pk_bf16_f32 v%d, v%d, v%d" % (a0+i, src, src+1))
            def st(kap=kap, a0=a0):
                A("buffer_store_dwordx4 %s, v%d, %s, s%d offen offset:%d sc1", v(a0,4), vL16, ws, (sOXa if kap < 4 else sT1) if qh == 0 else (sG0 if kap < 4 else sG1), 1024*(kap % 4))
                vm.op("O")
            o.append(st)
        return o
    A("s_add_u32 s%d, s%d, 4096\ns_add_u32 s%d, s%d, %d\ns_add_u32 s%d, s%d, %d", sT1, sOXa, sG0, sOXa, 32*6144, sG1, sOXa, 32*6144+4096)
    merge(A, pv(0, vPa, vP0a), softmax_stream(vS1, 12, vPb, vP0b, b0(vS1)+dg(vS1+8), t0, t1, t2, sSC2))
    ts(10)
    merge(A, pv(1, vPb, vP0b), ofin(0, vS0))
    ts(11)
    for x in ofin(1, vS1):
        if callable(x): x()
        else: A(x)
    vm.resolve()
    if timing:
        ts(12)
        A("s_waitcnt lgkmcnt(0)")
        for i in range(12): A("s_sub_u32 s%d, s%d, s%d\ns_add_u32 s%d, s%d, s%d", sT0, 62+2*i, 60+2*i, 88+i, 88+i, sT0)
    for r_, c_ in ((sKXa, 4*12288), (sKMa, 4*3072), (sOXa, 8*32*6144)):
        A("s_mul_i32 s%d, s%d, %d\ns_add_u32 s%d, s%d, s%d", sT0, sSTR, c_, r_, r_, sT0)
    A("s_mov_b32 s%d, s%d\ns_add_u32 s%d, s%d, s%d", sPREV, sUN, sUN, sUN, sSTR)
    A("s_cmp_eq_u32 s%d, 0\ns_cselect_b32 s%d, %d, %d", sMAT, sT0, nunits, QA_U)
    A("s_cmp_lt_u32 s%d, s%d\ns_cbranch_scc1 L_qa_loop", sUN, sT0)
    A("s_waitcnt vmcnt(0) lgkmcnt(0)\ns_barrier")
    A(oflag.replace(l3, l3+"b"))
    if timing:
        sexpr(A, sT1, DBG_OFF, (256, 2), (64, sW))
        A("s_mov_b64 exec, 1")
        for i in range(12):
            A("v_mov_b32 v1, s%d\nbuffer_store_dword v1, v%d, %s, s%d offen offset:%d\ns_nop 1", 88+i, vZ, ws, sT1, 4*i)
        A("v_mov_b32 v1, 1\nbuffer_store_dword v1, v%d, %s, s%d offen offset:60\ns_mov_b64 exec, -1", vZ, ws, sT1)


def dbg_wait(A, byte_off_sgpr, const_off, need, vz, vt, srd="s[12:15]", sleep=8):
    l0 = A.newlabel(); l1 = A.newlabel()
    A("s_cmp_lg_u32 s%d, 0\ns_cbranch_scc1 %s", sW, l1)
    A.label(l0)
    A("buffer_load_dword v%d, v%d, %s, %s offen offset:%d sc1\ns_waitcnt vmcnt(0)", vt, vz, srd, "s%d" % byte_off_sgpr if byte_off_sgpr is not None else "0", const_off)
    A("v_cmp_gt_u32 vcc, %s, v%d\ns_cbranch_vccz %s\ns_sleep %d\ns_branch %s", str(need), vt, l1, sleep, spin_stub(A, l0))
    A.label(l1)
    A("s_barrier")

def emit_wof(A):
    ws = WS
    vD, vTR, vL16, vZ, t0, t1 = 1, 2, 3, 4, 5, 6
    vF = 16
    A("s_load_dwordx2 s[8:9], s[%d:%d], 40", sKA, sKA+1)
    A("s_mov_b32 s10, %d\ns_mov_b32 s11, 0x20000", 6144*1280)
    A("v_lshlrev_b32 v%d, 4, v0\nv_mov_b32 v%d, 0", vL16, vZ)
    A("v_lshrrev_b32 v%d, 2, v0\nv_mul_u32_u24 v%d, 1280, v%d\nv_and_b32 v%d, 3, v0\nv_lshl_add_u32 v%d, v%d, 3, v%d", t0, t0, t0, t1, t0, t1, t0)
    A("s_mul_i32 s%d, s%d, 320\nv_add_u32 v%d, s%d, v%d", sT0, sW, vTR, sT0, t0)
    sexpr(A, sG0, 0, (192*1280, sH), (10240, sW))
    sexpr(A, sL0, 0, (10240, sW))
    sexpr(A, sST0, WOF_OFF, (192*40960, sB), (6*40960, sH), (10240, sW))
    A("s_waitcnt vmcnt(0) lgkmcnt(0)\ns_barrier")
    def dma(k):
        for i in range(10):
            if i % 4 == 0: A("s_add_u32 m0, s%d, %d\ns_add_u32 s%d, s%d, %d", sL0, (k % 3)*40960 + i*1024, sT0, sG0, k*40960 + i*1024)
            A("buffer_load_dwordx4 v%d, s[8:11], s%d offen offset:%d lds", vL16, sT0, (i % 4)*1024)
    dma(0); dma(1)
    for k in range(6):
        A("s_waitcnt vmcnt(%d)\ns_barrier", (10 if k < 5 else 0) + (10 if k > 0 else 0))
        if k + 2 < 6: dma(k+2)
        for ct in range(10):
            for hf in range(2):
                A("ds_read_b64_tr_b16 %s, v%d offset:%d", v(vF + 4*ct + 2*hf, 2), vTR, 16*1280*hf + 32*ct)
        A("v_add_u32 v%d, %d, v%d", vTR, (40960 if k % 3 != 2 else -81920) & 0xffffffff, vTR)
        for ct in range(10):
            if ct % 4 == 0: A("s_add_u32 s%d, s%d, %d", sT0, sST0, k*40960 + ct*1024)
            A("s_waitcnt lgkmcnt(%d)\nbuffer_store_dwordx4 %s, v%d, %s, s%d offen offset:%d sc1", min(15, 18-2*ct), v(vF+4*ct, 4), vL16, ws, sT0, (ct % 4)*1024)
        A("s_nop 1")
    A("s_waitcnt vmcnt(0)\ns_barrier")
    lab = A.newlabel()
    A("s_cmp_lg_u32 s%d, 0\ns_cbranch_scc1 %s", sW, lab)
    A("v_mov_b32 v%d, 1\ns_mov_b64 exec, 1\nbuffer_atomic_add v%d, v%d, s[12:15], 0 offen offset:%d\ns_mov_b64 exec, -1", t0, t0, vZ, D_WOF)
    A.label(lab)

sBLK, sCB, sKS, sSP, sNB, sNB0 = 20, 21, 22, 23, 24, 25
sAO, sAB, sBO0, sBO1, sIT = 34, 35, 36, 37, 38
sXCD, sJJ = 100, 101
sTILE, sPO = 47, 46
def emit_op(A, prof=False):
    ws = WS
    NRA = 6
    vL16, vZ, vAr, vAn, pOUT, t0, t1, t2 = 1, 2, 3, 4, 5, 6, 7, 8
    vE, vAF, vBF = 8, 16, 96
    A("v_lshlrev_b32 v%d, 4, v0\nv_mov_b32 v%d, 0", vL16, vZ)
    A("s_load_dwordx2 s[8:9], s[0:1], 112\ns_mov_b32 s10, %d\ns_mov_b32 s11, 0x20000", 2048*2560)
    A("v_and_b32 v%d, 15, v0\nv_mul_u32_u24 v%d, 2560, v%d\nv_bfe_u32 v%d, v0, 4, 1\nv_lshl_add_u32 v%d, v%d, 5, v%d\nv_lshrrev_b32 v%d, 5, v0\nv_lshl_add_u32 v%d, v%d, 4, v%d", t0, t0, t0, t1, t0, t1, t0, t1, pOUT, t1, t0)
    if prof: A("s_mov_b32 s95, 8")
    dbg_wait(A, None, D_WOF, 64, vZ, t0)
    A("s_lshr_b32 s%d, s%d, 1\ns_and_b32 s%d, s%d, 1", sT1, sW, sT2, sW)
    sexpr(A, sG0, WOF_OFF, (40960, sT1), (5120, sT2))
    sexpr(A, sL0, 0, (5120, sW))
    A("s_cmp_eq_u32 s%d, 0\ns_cbranch_scc1 L_op_next", sIT)
    A("s_bfe_u32 s%d, s%d, 0x10001\ns_and_b32 s%d, s%d, 1\ns_lshr_b32 s%d, s%d, 3\ns_lshl_b32 s%d, s%d, 1\ns_bfe_u32 s%d, s%d, 0x20001", sB, sXCD, sKS, sXCD, sT2, sJJ, sBLK, sT2, sCB, sJJ)
    sexpr(A, sTILE, 0, (16, sB), (4, sT2), (1, sCB))
    sexpr(A, sPO, PART_OFF, (2*163840, sTILE))
    A("s_mov_b32 s%d, 2\ns_mov_b32 s%d, 12\ns_branch L_op4_go", sSP, sNB)
    A.label("L_op_next")
    A("s_waitcnt vmcnt(0) lgkmcnt(0)\ns_barrier")
    if prof:
        A("s_memrealtime s[96:97]\ns_waitcnt lgkmcnt(0)\ns_mov_b64 exec, 1\nv_mov_b32 v%d, s96\ns_min_u32 s95, s95, 9", t0)
        sexpr(A, 98, DBG_OFF+131072+24, (256, 2), (64, sW), (4, 95), tmp=99)
        A("buffer_store_dword v%d, v%d, %s, s98 offen\ns_mov_b64 exec, -1\ns_add_u32 s95, s95, 1", t0, vZ, ws)
    def bcast_atomic(val_text, soff, off, dst, srd="s[12:15]"):
        lab = A.newlabel()
        A("s_cmp_lg_u32 s%d, 0\ns_cbranch_scc1 %s", sW, lab)
        A("v_mov_b32 v%d, %s\ns_mov_b64 exec, 1\nbuffer_atomic_add v%d, v%d, %s, s%d offen offset:%d sc0\nv_mov_b32 v%d, %d\ns_waitcnt vmcnt(0)\nds_write_b32 v%d, v%d\ns_waitcnt lgkmcnt(0)\ns_mov_b64 exec, -1", t0, val_text, t0, vZ, srd, soff, off, t1, NRA*HB, t1, t0)
        A.label(lab)
        A("s_barrier\nv_mov_b32 v%d, %d\nds_read_b32 v%d, v%d\ns_waitcnt lgkmcnt(0)\nv_readfirstlane_b32 s%d, v%d\ns_nop 3", t1, NRA*HB, t0, t1, dst, t0)
    A("s_and_b32 s%d, s%d, 3\ns_lshl_b32 s%d, s%d, 2", sKS, sXCD, sT0, sXCD)
    bcast_atomic("1", sT0, D_Q8, sIT)
    A("s_cmp_lt_u32 s%d, 4\ns_cbranch_scc1 L_op_finc", sXCD)
    A("s_cmp_ge_u32 s%d, %d\ns_cbranch_scc1 L_op_done", sIT, NR2 + 16)
    A("s_cmp_ge_u32 s%d, %d\ns_cbranch_scc1 L_op_fin", sIT, NR2)
    A("s_and_b32 s%d, s%d, 3\ns_bfe_u32 s%d, s%d, 0x10002\ns_lshr_b32 s%d, s%d, 3", sCB, sIT, sB, sIT, sT2, sIT)
    sexpr(A, sBLK, 8, (2, sT2))
    sexpr(A, sTILE, 32, (1, sIT))
    sexpr(A, sPO, PART_OFF + 64*163840, (4*163840, sIT))
    A("s_mov_b32 s%d, 4\ns_mov_b32 s%d, 6\ns_branch L_op4_go", sSP, sNB)
    assert NR2 == 16
    A.label("L_op_fin")
    A("s_sub_u32 s%d, s%d, %d\ns_lshr_b32 s%d, s%d, 2\ns_and_b32 s%d, s%d, 3\ns_and_b32 s%d, s%d, 1\ns_lshr_b32 s%d, s%d, 1\ns_add_u32 s%d, s%d, 2\ns_branch L_op_fin2", sT2, sIT, NR2, sBLK, sT2, sCB, sT2, sB, sXCD, sKS, sXCD, sKS, sKS)
    A.label("L_op_finc")
    A("s_cmp_ge_u32 s%d, 32\ns_cbranch_scc1 L_op_done", sIT)
    A("s_lshr_b32 s%d, s%d, 3\ns_bfe_u32 s%d, s%d, 0x10002\ns_and_b32 s%d, s%d, 3\ns_mov_b32 s%d, s%d", sBLK, sIT, sB, sIT, sCB, sIT, sKS, sXCD)
    A.label("L_op_fin2")
    sexpr(A, sT2, 0, (8, sBLK), (4, sB), (1, sCB))
    A("s_add_u32 s%d, s%d, 12", sBLK, sBLK)
    sexpr(A, sTILE, 32 + NR2, (1, sT2))
    sexpr(A, sPO, PART_OFF + (64 + 4*NR2)*163840, (6*81920, sT2))
    A("s_mov_b32 s%d, 6\ns_mov_b32 s%d, 4\ns_branch L_op2_go", sSP, sNB)
    def ps(i):
        if not prof: return
        A("s_memrealtime s[96:97]\ns_waitcnt lgkmcnt(0)\ns_mov_b64 exec, 1\nv_mov_b32 v%d, s96", t0)
        sexpr(A, 98, DBG_OFF+131072+64+4*i, (256, 2), tmp=99)
        A("buffer_store_dword v%d, v%d, %s, s98 offen\nv_mov_b32 v%d, s%d\nbuffer_store_dword v%d, v%d, %s, s98 offen offset:%d\ns_mov_b64 exec, -1", t0, vZ, ws, t1, sBLK, t1, vZ, ws, 52-4*i)
    def adma():
        o = []
        for i in range(5):
            t = ""
            if i == 0: t = "s_mov_b32 m0, s%d\ns_nop 0\n" % sAB
            if i == 4: t = "s_add_u32 m0, s%d, 4096\ns_add_u32 s%d, s%d, 4096\n" % (sAB, sT0, sAO)
            t += "buffer_load_dwordx4 v%d, %s, s%d offen offset:%d sc1 lds" % (vL16, ws, sAO if i < 4 else sT0, 1024*(i % 4))
            if i == 4:
                t += "\ns_add_u32 s%d, s%d, %d\ns_add_u32 s%d, s%d, %d" % (sAO, sAO, 81920, sAB, sAB, HB)
                t += "\ns_add_u32 s%d, s%d, %d\ns_cmp_ge_u32 s%d, s%d\ns_cselect_b32 s%d, s%d, s%d" % (sT0, sL0, NRA*HB, sAB, sT0, sAB, sL0, sAB)
                t += "\ns_cmp_ge_u32 s%d, s%d\ns_cselect_b32 s%d, 0x7f000000, s%d" % (sAO, sAE, sAO, sAO)
            o.append(t)
        return o
    sBO = [42, 43, 44, 45]
    sAE, sBE, sROT = 48, 49, 50
    for MT in (4, 2):
        L = "L_op%d" % MT
        NQ = 10*MT
        PW = NQ*1024
        A.label(L+"_go")
        A("s_mul_i32 s%d, s%d, s%d\ns_lshl_b32 s%d, s%d, 3", sT2, sKS, sNB, sT2, sT2)
        sexpr(A, sAO, 0, (1, sG0), (192*40960, sB), (40960, sT2), (10240, sCB))
        sexpr(A, sBO[0], OX_OFF, (128*196608, sB), (8*196608, sBLK), (MT*196608, sW), (1024, sT2))
        if MT == 2: A("s_add_u32 s%d, s%d, %d", sBO[1], sBO[0], 196608)
        else:
            A("s_cmp_eq_u32 s%d, 2\ns_cselect_b32 s%d, 1, 0\ns_lshl_b32 s%d, s%d, s%d\ns_mov_b32 s%d, s%d", sSP, sT0, sROT, sKS, sT0, sT1, sBO[0])
            for t in range(4):
                A("s_add_u32 s%d, s%d, %d\ns_and_b32 s%d, s%d, 3\ns_mul_i32 s%d, s%d, 196608\ns_add_u32 s%d, s%d, s%d", sT0, sROT, t, sT0, sT0, sT0, sT0, sBO[t], sT1, sT0)
        A("s_mov_b32 s%d, s%d", sAB, sL0)
        sexpr(A, sAE, 0, (8*40960, sNB), (1, sAO))
        sexpr(A, sBE, 0, (8*1024, sNB), (1, sBO[0]))
        def bld(slot):
            o = []
            for tt in range(MT):
                for ks in range(2):
                    o.append("buffer_load_dwordx4 %s, v%d, %s, s%d offen offset:%d sc1" % (v(vBF + 8*MT*slot + 4*MT*ks + 4*tt, 4), vL16, ws, sBO[tt], 1024*ks))
                o[-1] += "\ns_add_u32 s%d, s%d, 2048" % (sBO[tt], sBO[tt])
            o[-1] += "\ns_cmp_ge_u32 s%d, s%d\n" % (sBO[0], sBE) + "\n".join("s_cselect_b32 s%d, 0x7f000000, s%d" % (sBO[tt], sBO[tt]) for tt in range(MT))
            return o
        for st in range(NRA-2):
            for x in adma(): A(x)
        sexpr(A, sT1, FO_OFF, (16*128, sB), (128, sBLK))
        dbg_wait(A, sT1, 0, 32, vZ, t0, ws)
        if MT == 4: dbg_wait(A, sT1, 128, 32, vZ, t0, ws)
        if MT == 2: ps(0)
        for st in range(3):
            for x in bld(st): A(x)
        for r in range(4*NQ): A("v_accvgpr_write_b32 a%d, 0", r)
        A("v_mov_b32 v%d, v%d\nv_add_u32 v%d, %d, v%d", vAr, vL16, vAn, HB, vL16)
        A("s_waitcnt vmcnt(0)\ns_barrier")
        def ard(ks, ct, reg): A("ds_read_b128 %s, v%d offset:%d", v(vAF + 40*ks + 4*ct, 4), reg, 10240*ks + 1024*ct)
        for ct in range(10): ard(0, ct, vAr)
        if MT == 2: ps(1)
        A.label(L+"_loop")
        vm = VM(A)
        for st in range(4):
            dm = adma(); bl = bld((st+3) % 4)
            fill = [(x, "A%d" % st) for x in dm] + [(x, "B%d" % st) for x in bl]
            pos = {(i*20)//len(fill): f for i, f in enumerate(fill)}
            for ks in range(2):
                if ks == 1:
                    vm.wait([("A%d" % ((st+1) % 4), 1 if st < 3 else 0)])
                    A("s_barrier")
                else:
                    vm.wait([("B%d" % ((st+1) % 4), 1 if st < 3 else 0)])
                for ct in range(10):
                    A("s_waitcnt lgkmcnt(9)")
                    for tt in range(MT):
                        acc = a(4*(MT*ct+tt), 4)
                        A("v_mfma_f32_16x16x32_bf16 %s, %s, %s, %s", acc, v(vAF + 40*ks + 4*ct, 4), v(vBF + 8*MT*st + 4*MT*ks + 4*tt, 4), acc)
                        if tt == 0: ard(1-ks, ct, vAr if ks == 0 else vAn)
                        if tt == 1 and 10*ks+ct in pos:
                            A(pos[10*ks+ct][0]); vm.op(pos[10*ks+ct][1])
            A("v_mov_b32 v%d, v%d\nv_add_u32 v%d, %d, v%d\nv_subrev_u32 v%d, %d, v%d\nv_min_u32 v%d, v%d, v%d", vAr, vAn, vAn, HB, vAn, t0, NRA*HB, vAn, vAn, vAn, t0)
        vm.resolve()
        A("s_sub_u32 s%d, s%d, 1\ns_cmp_lg_u32 s%d, 0\ns_cbranch_scc1 %s_loop", sNB, sNB, sNB, L)
        A("s_nop 7")
        if MT == 2:
            ps(2)
            sexpr(A, sT1, 0, (1, sPO), (4*PW, sKS), (PW, sW))
            for i in range(NQ):
                if i % 4 == 0: A("s_add_u32 s%d, s%d, %d", sT0, sT1, 1024*i)
                A("buffer_store_dwordx4 %s, v%d, %s, s%d offen offset:%d sc1", a(4*i, 4), vL16, ws, sT0, 1024*(i % 4))
        else:
            sexpr(A, sT1, 0, (1, sPO), (4*PW, sKS), (PW, sW))
            for t in (3, 2, 1):
                if t == 1: A("s_cmp_eq_u32 s%d, 2\ns_cbranch_scc1 L_op4_pub", sSP)
                A("s_add_u32 s%d, s%d, %d\ns_and_b32 s%d, s%d, 3\ns_mul_i32 s%d, s%d, 10240\ns_add_u32 s%d, s%d, s%d", sT2, sROT, t, sT2, sT2, sT2, sT2, sT2, sT2, sT1)
                for ct in range(10):
                    if ct % 4 == 0: A("s_add_u32 s%d, s%d, %d", sT0, sT2, 1024*ct)
                    A("buffer_store_dwordx4 %s, v%d, %s, s%d offen offset:%d sc1", a(4*(4*ct+t), 4), vL16, ws, sT0, 1024*(ct % 4))
            A.label("L_op4_pub")
        A("s_waitcnt vmcnt(0)\ns_barrier")
        sexpr(A, sT2, SK_OFF, (128, sTILE))
        lab = A.newlabel()
        A("s_cmp_lg_u32 s%d, 0\ns_cbranch_scc1 %s", sW, lab)
        A("v_mov_b32 v%d, 1\ns_mov_b64 exec, 1\nbuffer_atomic_add v%d, v%d, %s, s%d offen\ns_mov_b64 exec, -1", t0, t0, vZ, ws, sT2)
        A.label(lab)
        if MT == 4:
            for t in range(2):
                for ct in range(10):
                    for r in range(4): A("v_accvgpr_read_b32 v%d, a%d", vBF + 40*t + 4*ct + r, 4*(4*ct+t) + r)
            dbg_wait(A, sT2, 0, "s%d" % sSP, vZ, t0, ws, sleep=4)
            vR = vBF + 80
            dst = [vAF, vAF+40, vR]
            def rnd(r, slice_add, slot):
                A("s_add_u32 s%d, s%d, %d\ns_sub_u32 s%d, s%d, 1\ns_and_b32 s%d, s%d, s%d", sT1, sKS, slice_add, sT0, sSP, sT1, sT1, sT0)
                A("s_add_u32 s%d, s%d, %d\ns_and_b32 s%d, s%d, 3", sT2, sROT, slot, sT2, sT2)
                sexpr(A, sT1, 0, (4*PW, sT1), (1, sPO), (PW, sW), (10240, sT2))
                for ct in range(10):
                    if ct % 4 == 0: A("s_add_u32 s%d, s%d, %d", sT0, sT1, 1024*ct)
                    A("buffer_load_dwordx4 %s, v%d, %s, s%d offen offset:%d sc1", v(dst[r]+4*ct, 4), vL16, ws, sT0, 1024*(ct % 4))
            def add(r, slot, left):
                for ct in range(10):
                    A("s_waitcnt vmcnt(%d)", left + 9 - ct)
                    for h2 in range(2): A("v_pk_add_f32 %s, %s, %s", v(vBF+40*slot+4*ct+2*h2, 2), v(vBF+40*slot+4*ct+2*h2, 2), v(dst[r]+4*ct+2*h2, 2))
            def out(slot):
                A("s_add_u32 s%d, s%d, %d\ns_and_b32 s%d, s%d, 3", sT2, sROT, slot, sT2, sT2)
                sexpr(A, sT1, 0, (128*2560, sBLK), (64*2560, sW), (16*2560, sT2), (1280, sB), (320, sCB))
                for cp in range(5):
                    e = vE + 4*(cp % 2)
                    x0 = vBF + 40*slot + 8*cp; x1 = x0 + 4
                    A("v_cvt_pk_bf16_f32 v%d, v%d, v%d\nv_cvt_pk_bf16_f32 v%d, v%d, v%d", e, x0, x0+1, e+1, x0+2, x0+3)
                    A("v_cvt_pk_bf16_f32 v%d, v%d, v%d\nv_cvt_pk_bf16_f32 v%d, v%d, v%d", e+2, x1, x1+1, e+3, x1+2, x1+3)
                    A("s_nop 1\nv_permlane16_swap_b32 v%d, v%d\nv_permlane16_swap_b32 v%d, v%d", e, e+2, e+1, e+3)
                    A("buffer_store_dwordx4 %s, v%d, s[8:11], s%d offen offset:%d", v(e, 4), pOUT, sT1, 64*cp)
            A("s_cmp_eq_u32 s%d, 2\ns_cbranch_scc1 L_op4_s2", sSP)
            for r in range(3): rnd(r, r+1, 0)
            for r in range(3): add(r, 0, 10*(2-r))
            out(0)
            A("s_branch L_op_next")
            A.label("L_op4_s2")
            for r in range(2): rnd(r, 1, r)
            for r in range(2): add(r, r, 10*(1-r))
            out(0); out(1)
            A("s_branch L_op_next")
        else:
            ps(3)
            dbg_wait(A, sT2, 0, 6, vZ, t0, ws, sleep=4)
            ps(4)
            A("s_mul_i32 s%d, s%d, 27\ns_add_u32 s%d, s%d, 29\ns_lshr_b32 s%d, s%d, 2\ns_min_u32 s%d, s%d, 40\ns_add_u32 s%d, s%d, 2\ns_lshr_b32 s%d, s%d, 2\ns_add_u32 s%d, s%d, s%d", sAO, sKS, sAB, sAO, sAB, sAB, sAB, sAB, sAO, sAO, sAO, sAO, sAO, sAO, sW)
            A.label("L_op_red")
            A("s_cmp_ge_u32 s%d, s%d\ns_cbranch_scc1 L_op_next", sAO, sAB)
            A("s_mul_i32 s%d, s%d, 26\ns_lshr_b32 s%d, s%d, 8\ns_mul_i32 s%d, s%d, 10\ns_sub_u32 s%d, s%d, s%d", sT1, sAO, sT1, sT1, sT2, sT1, sT2, sAO, sT2)
            A("s_lshr_b32 s%d, s%d, 1\ns_and_b32 s%d, s%d, 1", sT3, sT2, sT2, sT2)
            sexpr(A, sBO[0], 0, (1, sPO), (20480, sT1), (4096, sT3), (1024, sT2))
            for j in range(6):
                A("s_add_u32 s%d, s%d, %d", sT0, sBO[0], j*81920)
                for i in range(2): A("buffer_load_dwordx4 %s, v%d, %s, s%d offen offset:%d sc1", v(vAF+8*j+4*i, 4), vL16, ws, sT0, 2048*i)
            sexpr(A, sT1, 0, (32*2560, sT1), (16*2560, sT2), (64, sT3), (128*2560, sBLK), (1280, sB), (320, sCB))
            for j in range(1, 6):
                A("s_waitcnt vmcnt(%d)", 10-2*j)
                for h2 in range(4): A("v_pk_add_f32 %s, %s, %s", v(vAF+2*h2, 2), v(vAF+2*h2, 2), v(vAF+8*j+2*h2, 2))
            for i in range(4): A("v_cvt_pk_bf16_f32 v%d, v%d, v%d", vE+i, vAF+2*i, vAF+2*i+1)
            A("s_nop 1\nv_permlane16_swap_b32 v%d, v%d\nv_permlane16_swap_b32 v%d, v%d", vE, vE+2, vE+1, vE+3)
            A("buffer_store_dwordx4 %s, v%d, s[8:11], s%d offen", v(vE, 4), pOUT, sT1)
            A("s_add_u32 s%d, s%d, 4\ns_branch L_op_red", sAO, sAO)
    A.label("L_op_done")

def main_op():
    import chain
    A = Asm(); K = "op_kernel"
    chain.emit_common_prologue(A)
    A("s_cmp_lt_u32 s%d, 4\ns_cbranch_scc1 L_end", sT3)
    A("s_cmp_ge_u32 s%d, 32\ns_cbranch_scc1 L_end", chain.sJ)
    A("s_bfe_u32 s%d, s%d, 0x10001\ns_and_b32 s%d, s%d, 1\ns_lshr_b32 s%d, s%d, 1", sB, sT3, sT1, sT3, sT2, chain.sJ)
    sexpr(A, sH, 0, (16, sT1), (1, sT2))
    A("s_and_b32 s%d, s%d, 1\ns_cbranch_scc1 L_end", sMAT, chain.sJ)
    A("s_mul_i32 s%d, s%d, 56\ns_add_u32 s%d, s0, s%d\ns_addc_u32 s%d, s1, 0", sT0, sB, sKA, sT0, sKA+1)
    A("v_mov_b32 v1, 1\nv_lshlrev_b32 v2, 2, v0\ns_lshl_b32 s%d, s%d, 6\ns_mov_b64 exec, 0xffff\ns_cmp_lg_u32 s%d, 0\ns_cbranch_scc1 L_t1\nbuffer_atomic_add v1, v2, s[12:15], s%d offen offset:%d\nL_t1:\ns_mov_b64 exec, -1", sT0, sB, sW, sT0, D_FO)
    A("s_memrealtime s[92:93]\ns_memtime s[96:97]")
    emit_wof(A)
    A("s_memrealtime s[90:91]")
    emit_op(A)
    A("s_waitcnt lgkmcnt(0)\ns_sub_u32 s90, s90, s92\ns_mov_b64 exec, 1\nv_mov_b32 v1, s90\nv_mov_b32 v2, 60\nbuffer_atomic_umax v1, v2, s[12:15], 0 offen\ns_nop 1")
    A("s_memtime s[98:99]\ns_waitcnt lgkmcnt(0)\ns_sub_u32 s98, s98, s96\ns_mov_b64 exec, 1\nv_mov_b32 v1, s98\nv_mov_b32 v2, 56\nbuffer_atomic_umax v1, v2, s[12:15], 0 offen\ns_nop 1")
    A("s_memrealtime s[94:95]\ns_waitcnt lgkmcnt(0)\ns_sub_u32 s94, s94, s92\ns_mov_b64 exec, 1\nv_mov_b32 v1, s94\nv_mov_b32 v2, 52\nbuffer_atomic_umax v1, v2, s[12:15], 0 offen")
    A.label("L_end"); A("s_endpgm")
    chain.emit_stubs(A, "L_end")
    open("op.s", "w").write(build_file([(K, 256, 256, 163840)], [(K, A, 512, 102, 256)]))

def main_qa():
    import chain
    A = Asm(); K = "qa_kernel"
    chain.emit_common_prologue(A)
    A("s_cmp_lt_u32 s%d, 4\ns_cbranch_scc1 L_end", sT3)
    A("s_cmp_ge_u32 s%d, 32\ns_cbranch_scc1 L_end", chain.sJ)
    A("s_bfe_u32 s%d, s%d, 0x10001\ns_and_b32 s%d, s%d, 1\ns_lshr_b32 s%d, s%d, 1", sB, sT3, sT1, sT3, sT2, chain.sJ)
    sexpr(A, sH, 0, (16, sT1), (1, sT2))
    A("s_and_b32 s%d, s%d, 1", sMAT, chain.sJ)
    A("s_memrealtime s[52:53]\ns_memtime s[54:55]")
    emit_qa(A, timing=True)
    A("s_mov_b64 s[92:93], s[52:53]\ns_mov_b64 s[96:97], s[54:55]")
    A("s_memtime s[98:99]\ns_waitcnt lgkmcnt(0)\ns_sub_u32 s98, s98, s96\ns_mov_b64 exec, 1\nv_mov_b32 v1, s98\nv_mov_b32 v2, 52\nbuffer_atomic_umax v1, v2, s[12:15], 0 offen\ns_nop 1")
    A("s_memrealtime s[94:95]\ns_waitcnt lgkmcnt(0)\ns_sub_u32 s94, s94, s92\ns_mov_b64 exec, 1\nv_mov_b32 v1, s94\nv_mov_b32 v2, 48\nbuffer_atomic_umax v1, v2, s[12:15], 0 offen")
    A.label("L_end"); A("s_endpgm")
    chain.emit_stubs(A, "L_end")
    open("qa.s", "w").write(build_file([(K, 256, 256, 163840)], [(K, A, 512, 102, 256)]))

def main(sfx):
    import chain
    A = Asm(); K = "kv_kernel"
    chain.emit_common_prologue(A)
    A("s_cmp_lt_u32 s%d, 4\ns_cbranch_scc1 L_end", sT3)
    A("s_cmp_ge_u32 s%d, 32\ns_cbranch_scc1 L_end", chain.sJ)
    A("s_bfe_u32 s%d, s%d, 0x10001\ns_and_b32 s%d, s%d, 1\ns_lshr_b32 s%d, s%d, 1", sB, sT3, sT1, sT3, sT2, chain.sJ)
    sexpr(A, sH, 0, (16, sT1), (1, sT2))
    A("s_and_b32 s%d, s%d, 1", sMAT, chain.sJ)
    A("s_memrealtime s[92:93]\ns_memtime s[96:97]")
    emit_kv(A)
    A("s_memtime s[98:99]\ns_waitcnt lgkmcnt(0)\ns_sub_u32 s98, s98, s96\ns_mov_b64 exec, 1\nv_mov_b32 v1, s98\nv_mov_b32 v2, 68\nbuffer_atomic_umax v1, v2, s[12:15], 0 offen\ns_nop 1")
    A("s_memrealtime s[94:95]\ns_waitcnt lgkmcnt(0)\ns_sub_u32 s94, s94, s92\ns_mov_b64 exec, 1\nv_mov_b32 v1, s94\nv_mov_b32 v2, 64\nbuffer_atomic_umax v1, v2, s[12:15], 0 offen\ns_lshl_b32 s94, s18, 2\ns_add_u32 s94, s94, 72\nv_mov_b32 v2, s94\nbuffer_atomic_umax v1, v2, s[12:15], 0 offen")
    A.label("L_end"); A("s_endpgm")
    chain.emit_stubs(A, "L_end")
    txt = build_file([(K, 256, 256, 163840)], [(K, A, 512, 102, 256)])
    open("kv%s.s" % sfx, "w").write(txt)
    import re
    open("kv_plain.s", "w").write(re.sub(r"(buffer_store_dwordx[24] .*) sc1", r"\1", txt))
    open("kv_nt.s", "w").write(re.sub(r"(buffer_store_dwordx[24] .*) sc1", r"\1 nt", txt))
    open("kv_nost.s", "w").write(re.sub(r"buffer_store_dwordx[24] .*", r"s_nop 0", txt))
    open("kv_nodma%s.s" % sfx, "w").write(re.sub(r"buffer_load_dwordx4 v1, s\[8:11\], s34 .*", r"s_nop 0", re.sub(r"buffer_store_dwordx[24] .*", r"s_nop 0", txt)))

if __name__ == "__main__":
    main("")
    main_qa()
```

```python
import struct, math
from asmlib import *
from layout import *

sW, sB, sX, sJ = 16, 17, 18, 19
sH, sU, sGRP, sM = 20, 21, 22, 23
sFCHo, sFKVo, sNEED = 28, 42, 40
sSTEP, sSLOTI, sPAR, sME = 24, 25, 26, 27
sPW = 25
sT0, sT1, sT2, sT3 = 29, 30, 31, 32
sRW = 33
sKXO, sVXO = 34, 35
sKMO, sVMO = 36, 37
sRB = 39
sSCL = 38
sWM1 = 40
sVB = 41
sAVAIL = 43
sEVEN = 44
sDELTA, sKVB = 46, 47
(oSCst, oSCld, oPBst, oPBst2, oPB0, oPB1, oPB2, oPB3, oXPst, oXPstr, oXPl0, oXPlB, oXPr0, oXPrB, sONEL, sONEH) = range(48, 64)
sPTR = 64
sTS = 64
sSPIN = 3
import os
SPIN_LIMIT = int(os.environ.get('SPIN_LIMIT', 20000000))
sKA = 88
WS = "s[4:7]"

def f32bits(x): return struct.unpack("<I", struct.pack("<f", x))[0]

def sexpr(A, dst, const, *terms, tmp=sT0):
    first = True
    for (coef, reg) in terms:
        tgt = dst if first else tmp
        if coef == 1:
            if first: A("s_mov_b32 s%d, s%d", dst, reg)
            else: A("s_add_u32 s%d, s%d, s%d", dst, dst, reg)
        else:
            A("s_mul_i32 s%d, s%d, %d", tgt, reg, coef)
            if not first: A("s_add_u32 s%d, s%d, s%d", dst, dst, tmp)
        first = False
    if first: A("s_mov_b32 s%d, %d", dst, const)
    elif const: A("s_add_u32 s%d, s%d, %d", dst, dst, const)

def emit_common_prologue(A):
    A("s_cmp_ge_u32 s2, 256\ns_cbranch_scc1 L_end")
    A("s_mov_b32 s%d, 0", sSPIN)
    A("s_load_dwordx2 s[4:5], s[0:1], 128")
    A("s_load_dwordx2 s[12:13], s[0:1], 120")
    A("v_lshrrev_b32 v1, 6, v0")
    A("v_and_b32 v0, 63, v0")
    A("s_getreg_b32 s%d, hwreg(HW_REG_XCC_ID)", sT3)
    A("v_readfirstlane_b32 s%d, v1", sW)
    A("s_and_b32 s%d, s%d, 7", sT3, sT3)
    if os.environ.get("FORCE_OVF"):
        A("s_cmp_eq_u32 s%d, 5\ns_cselect_b32 s%d, 2, s%d\ns_and_b32 s%d, s2, 8\ns_cmp_eq_u32 s%d, 0\ns_cselect_b32 s%d, s%d, 0\ns_cmp_eq_u32 s%d, 1\ns_cselect_b32 s%d, s%d, s%d", sT3, sT3, sT3, sT0, sT0, sT0, sT3, sT3, sT3, sT0, sT3)
    A("s_mov_b32 s6, 0x10000000\ns_mov_b32 s7, 0x20000")
    A("s_mov_b32 s14, 256\ns_mov_b32 s15, 0x20000")
    A("s_waitcnt lgkmcnt(0)")
    A("s_cmp_lg_u32 s%d, 0\ns_cbranch_scc1 L_tk_done", sW)
    A("s_mov_b64 exec, 1")
    A("s_lshl_b32 s%d, s%d, 2", sT0, sT3)
    A("v_mov_b32 v1, 1\nv_mov_b32 v2, s%d\nv_mov_b32 v3, %d", sT0, L_BCAST)
    A("buffer_atomic_add v1, v2, s[12:15], 0 offen sc0")
    A("s_waitcnt vmcnt(0)")
    A("ds_write_b32 v3, v1")
    A("s_waitcnt lgkmcnt(0)")
    A("s_mov_b64 exec, -1")
    A.label("L_tk_done")
    A("s_barrier")
    A("v_mov_b32 v3, %d\nds_read_b32 v1, v3\ns_waitcnt lgkmcnt(0)", L_BCAST)
    A("v_readfirstlane_b32 s%d, v1", sJ)
    if os.environ.get("FORCE_OVF"):
        pass
    A("s_nop 3\ns_cmp_lt_u32 s%d, 32\ns_cbranch_scc1 L_role_ok", sJ)
    A("s_barrier\ns_cmp_lg_u32 s%d, 0\ns_cbranch_scc1 L_ov_1", sW)
    A("s_mov_b64 exec, 1\nv_mov_b32 v1, 1\nv_mov_b32 v2, %d\nbuffer_atomic_add v1, v2, s[12:15], 0 offen sc0\ns_waitcnt vmcnt(0)\nds_write_b32 v3, v1\ns_waitcnt lgkmcnt(0)\ns_mov_b64 exec, -1", D_OVF)
    A.label("L_ov_1")
    A("s_barrier\nds_read_b32 v1, v3\ns_waitcnt lgkmcnt(0)\nv_readfirstlane_b32 s%d, v1\nv_lshlrev_b32 v2, 2, v0", sT0)
    A.label("L_ov_2")
    A("buffer_load_dword v1, v2, s[12:15], 0 offen sc1\ns_waitcnt vmcnt(0)")
    for i in range(8): A("v_readlane_b32 s%d, v1, %d", 64+i, i)
    A("s_nop 3\ns_mov_b32 s%d, 0", sT1)
    for i in range(8): A("s_add_u32 s%d, s%d, s%d", sT1, sT1, 64+i)
    A("s_cmp_ge_u32 s%d, 256\ns_cbranch_scc1 L_ov_3\ns_sleep 8\ns_branch %s", sT1, spin_stub(A, "L_ov_2"))
    A.label("L_ov_3")
    for i in range(8):
        A("s_min_u32 s%d, s%d, 32\ns_add_u32 s%d, s%d, s%d\ns_mov_b32 s%d, %d\ns_cmp_lt_u32 s%d, 32\ns_cbranch_scc1 L_role_ok\ns_sub_u32 s%d, s%d, 32", sT1, 64+i, sJ, sT1, sT0, sT3, i, sJ, sT0, sJ)
    A.label("L_role_ok")

class VAlloc:
    def __init__(self, start, end):
        self.n = start; self.end = end
    def __call__(self, cnt=1, align=1):
        self.n = (self.n + align - 1)//align*align
        r = self.n; self.n += cnt
        assert self.n <= self.end, "out of vgprs"
        return r

def spin_stub(A, lab_retry):
    st = A.newlabel("L_spin")
    A.stubs.append((st, lab_retry))
    return st

def emit_stubs(A, lab_abort):
    for st, lab in A.stubs:
        A.label(st)
        A("s_add_u32 s%d, s%d, 1\ns_cmp_le_u32 s%d, %d\ns_cbranch_scc1 %s", sSPIN, sSPIN, sSPIN, SPIN_LIMIT, lab)
        A("s_movk_i32 s%d, %d\ns_branch %s    ; %s", sSPIN, len([1 for x in A.lines if x.startswith("L_spin")]), lab_abort, lab)
    A.stubs = []

def wait_flags(A, voff, vt, soff, need_sgpr, lanes_mask, cache_sgpr=None, once=False):
    l0 = A.newlabel(); l1 = A.newlabel()
    if cache_sgpr is not None:
        A("s_cmp_ge_u32 s%d, s%d\ns_cbranch_scc1 %s", cache_sgpr, need_sgpr, l1)
    A("s_mov_b64 exec, %d", lanes_mask)
    A.label(l0)
    A("buffer_load_dword v%d, v%d, %s, s%d offen sc1\ns_waitcnt vmcnt(0)", vt, voff, WS, soff)
    if not once:
        A("v_cmp_gt_u32 vcc, s%d, v%d", need_sgpr, vt)
        l2 = A.newlabel()
        A("s_cbranch_vccz %s\ns_sleep 4\ns_branch %s", l2, spin_stub(A, l0))
        A.label(l2)
    if cache_sgpr is not None:
        A("v_readlane_b32 s%d, v%d, 0\nv_readlane_b32 s%d, v%d, 1\ns_nop 3\ns_min_u32 s%d, s%d, s%d", cache_sgpr, vt, sT0, vt, cache_sgpr, cache_sgpr, sT0)
    A("s_mov_b64 exec, -1")
    A.label(l1)

def emit_abort(A):
    A("s_mov_b64 exec, 1\nv_mov_b32 v1, 1\nv_mov_b32 v2, 60\nbuffer_atomic_add v1, v2, s[12:15], 0 offen")
    A("s_lshl_b32 s%d, s%d, 8\ns_or_b32 s%d, s%d, s%d\ns_lshl_b32 s%d, s%d, 8\ns_or_b32 s%d, s%d, s%d\ns_lshl_b32 s%d, s%d, 4\ns_or_b32 s%d, s%d, s%d", sT0, sSTEP, sSPIN, sSPIN, sT0, sSPIN, sSPIN, sSPIN, sSPIN, sME, sSPIN, sSPIN, sSPIN, sSPIN, sW)
    A("s_not_b32 s%d, s%d\nv_mov_b32 v3, s%d\nv_mov_b32 v2, 56\nbuffer_atomic_umax v3, v2, s[12:15], 0 offen\ns_endpgm", sSPIN, sSPIN, sSPIN)

def tagcheck(A, regs, vt, lab_retry):
    lab_retry = spin_stub(A, lab_retry)
    def tree(op):
        r = list(regs)
        A(op % (vt, r[0], r[1], r[2])); i = 3
        while i + 1 < len(r):
            A(op % (vt, vt, r[i], r[i+1])); i += 2
        if i < len(r):
            A(op % (vt, vt, r[i], r[i]))
    l0 = A.newlabel(); l1 = A.newlabel()
    A("s_cmp_eq_u32 s%d, 0\ns_cbranch_scc1 %s", sPAR, l0)
    tree("v_bitop3_b32 v%d, v%d, v%d, v%d bitop3:0x80")
    A("v_and_b32 v%d, 1, v%d\nv_cmp_ne_u32 vcc, 1, v%d\ns_cbranch_vccnz %s\ns_branch %s", vt, vt, vt, lab_retry, l1)
    A.label(l0)
    tree("v_or3_b32 v%d, v%d, v%d, v%d")
    A("v_and_b32 v%d, 1, v%d\nv_cmp_ne_u32 vcc, 0, v%d\ns_cbranch_vccnz %s", vt, vt, vt, lab_retry)
    A.label(l1)

def emit_chain(A, timing=False, nsteps=64, opt={}):
    V = VAlloc(1, 152)
    vAmem = V()
    vBias = V(1, 2)
    vL16 = V()
    vT = [V() for _ in range(8)]
    assert vT[0] % 4 == 0
    t0, t1, t2, t3, t4, t5, vN, vG = vT
    vSC = vT[4]
    vSEL = V(4, 4)
    vIdxQK, vIdxWo = V(), V()
    vQKw, vQrd, vKrd = V(), V(), V()
    vWVrd = vKrd
    pSC, pVMst, pA, pB, pPB, pXP = V(), V(), V(), V(), V(), V()
    pL8 = pB
    pKM = pVMst
    vVMIr, vKVr, pLT = V(), V(), V()
    vMEMw, vMEMw4 = V(), V()
    vAF = V(40, 4)
    vVX = V(24, 4)
    vBUF = V(24, 4)
    vKX = V(12, 4)
    vACC = V(20, 4)
    assert vKX == vBUF+24 and vACC == vKX+12
    NVB = 6
    WO_V = 152
    def wo_oct(i): return a(240 + 8*i, 8) if i < 2 else v(WO_V + 8*(i-2), 8)
    def wo_reg(i, r): return a(240 + 8*i + r) if i < 2 else v(WO_V + 8*(i-2) + r)
    ws = WS
    def ts(i):
        if timing and not opt.get("os"): A("s_mem%stime s[%d:%d]", "real" if opt.get("rt") else "", sTS+2*i, sTS+2*i+1)
    def adv(*regs):
        for r in regs: A("s_add_u32 s%d, s%d, s%d", r, r, sDELTA)

    def advr(*regs):
        if opt.get("ringr"): adv(*regs)
        else:
            for r in regs: A("s_add_u32 s%d, s%d, 20480", r, r)
    def pstamp(i):
        if not opt.get("prof"): return
        A("s_memrealtime s[80:81]\ns_waitcnt lgkmcnt(0)\ns_mov_b64 exec, 1\nv_mov_b32 v%d, s80\nv_mov_b32 v%d, 0", t4, t5)
        sexpr(A, 82, DBG_OFF+131072+24+4*i, (256, 2), tmp=83)
        A("buffer_store_dword v%d, v%d, %s, s82 offen\ns_mov_b64 exec, -1", t4, t5, ws)
    def stamp(i):
        if not timing: return
        A("s_memrealtime s[96:97]\ns_waitcnt lgkmcnt(0)\ns_mov_b64 exec, 1\nv_mov_b32 v%d, s96\nv_mov_b32 v%d, 0", vACC+18, vACC+19)
        sexpr(A, 98, DBG_OFF+65536, (256, 2), (64, sW), tmp=99)
        A("buffer_store_dword v%d, v%d, %s, s98 offen offset:%d\ns_mov_b64 exec, -1", vACC+18, vACC+19, ws, 4*i)
    stamp(0)
    A("s_lshr_b32 s%d, s%d, 1", sT1, sJ); sexpr(A, sH, 0, (16, sX), (1, sT1))
    A("s_and_b32 s%d, s%d, 1", sU, sJ)
    sexpr(A, sRW, 0, (32, sW), (1, sJ))
    sexpr(A, sRB, RING_OFF, (RING*SLOT, sB))
    sexpr(A, sME, 0, (32, sX), (1, sJ))
    A("s_max_u32 s%d, s%d, 1\ns_sub_u32 s%d, s%d, 1", sWM1, sW, sWM1, sWM1)
    A("s_mov_b32 s%d, 0x%08x", sSCL, f32bits((192 ** -0.5) * math.log2(math.e)))
    A("s_mov_b32 s%d, 0x55555555\ns_mov_b32 s%d, 0x55555555", sEVEN, sEVEN+1)
    A("s_mul_i32 s%d, s%d, 56", sT0, sB)
    A("s_add_u32 s%d, s0, s%d\ns_addc_u32 s%d, s1, 0", sKA, sT0, sKA+1)
    A("s_load_dwordx2 s[%d:%d], s[%d:%d], 8", sPTR, sPTR+1, sKA, sKA+1)
    A("s_load_dwordx4 s[%d:%d], s[%d:%d], 16", sPTR+4, sPTR+7, sKA, sKA+1)
    A("s_load_dwordx4 s[%d:%d], s[%d:%d], 32", sPTR+8, sPTR+11, sKA, sKA+1)
    sexpr(A, oSCst, 0, (1, sRB), (REC, sME), (512, sW))
    A("s_xor_b32 s%d, s%d, 1", sT1, sME)
    sexpr(A, oSCld, 0, (1, sRB), (REC, sT1))
    sexpr(A, oPBst, R_PB, (1, sRB), (10240, sME), (2048, sW))
    sexpr(A, oPBst2, R_PB+8192, (1, sRB), (10240, sME), (512, sW))
    sexpr(A, oPB0, R_PB, (1, sRB), (32*10240, sX), (128, sRW))
    for i in (1, 2, 3): sexpr(A, oPB0+i, i*8*10240, (1, oPB0))
    sexpr(A, oXPst, R_XPL, (1, sRB), (10240, sX), (128, sRW))
    if opt.get("ringr"): sexpr(A, oXPstr, R_XPR-R_XPL, (1, oXPst))
    else: sexpr(A, oXPstr, XR_OFF, (64*20480, sB), (10240, sX), (128, sRW))
    sexpr(A, oXPl0, R_XPL, (1, sRB), (10240, sX), (2048, sW))
    sexpr(A, oXPlB, R_XPL+8192, (1, sRB), (10240, sX), (512, sW))
    A("s_xor_b32 s%d, s%d, 1", sT1, sX)
    if opt.get("ringr"):
        sexpr(A, oXPr0, R_XPR, (1, sRB), (10240, sT1), (2048, sW))
        sexpr(A, oXPrB, R_XPR+8192, (1, sRB), (10240, sT1), (512, sW))
    else:
        sexpr(A, oXPr0, XR_OFF, (64*20480, sB), (10240, sT1), (2048, sW))
        sexpr(A, oXPrB, XR_OFF+8192, (64*20480, sB), (10240, sT1), (512, sW))
    A("s_mov_b32 s%d, 0x3f80\ns_mov_b32 s%d, 0x3f800000", sONEL, sONEH)
    sexpr(A, sT2, 0, (32, sB), (1, sH))
    sexpr(A, sKMO, KM_OFF, (HM, sT2), (1536, sU))
    sexpr(A, sVMO, VM_OFF, (HM, sT2), (1536, sU))
    sexpr(A, sKXO, KX_OFF, (HS, sT2), (6144, sU), (1536, sW))
    sexpr(A, sVXO, VX_OFF-KX_OFF, (1, sKXO))
    A("v_and_b32 v%d, 15, v0\nv_lshrrev_b32 v%d, 4, v0", vN, vG)
    A("v_lshlrev_b32 v%d, 4, v0", vL16)
    A("v_lshrrev_b32 v%d, 1, v%d\nv_mul_u32_u24 v%d, %d, v%d", t0, vN, t0, MEM_RS, t0)
    A("v_and_b32 v%d, 1, v%d\nv_lshl_add_u32 v%d, v%d, 1, v%d\nv_lshl_add_u32 v%d, v%d, 4, v%d\nv_add_u32 v%d, %d, v%d", t1, vN, t2, vG, t1, vAmem, t2, t0, vAmem, L_MEM, vAmem)
    A("v_cmp_eq_u32 vcc, 1, v%d", t1)
    A("v_mov_b32 v%d, 0x4444\nv_mov_b32 v%d, 0xeeee\nv_cndmask_b32 v%d, v%d, v%d, vcc", t2, t3, vIdxQK, t2, t3)
    A("v_mov_b32 v%d, 0x8888\nv_mov_b32 v%d, 0xdddd\nv_cndmask_b32 v%d, v%d, v%d, vcc", t2, t3, vIdxWo, t2, t3)
    A("v_mov_b32 v%d, 0x3f80\nv_mov_b32 v%d, 0x3f800000\nv_cndmask_b32 v%d, v%d, v%d, vcc\nv_lshrrev_b32 v%d, 1, v%d", t2, t3, t2, t2, t3, t3, vN)
    for r in range(4):
        A("v_cmp_eq_u32 vcc, %d, v%d\ns_nop 1\nv_cndmask_b32 v%d, 0, v%d, vcc", r, t3, vSEL+r, t2)
    A("v_lshl_add_u32 v%d, v%d, 3, v%d\nv_lshlrev_b32 v%d, 4, v%d", t0, vG, t3, pSC, t0)
    A("v_lshlrev_b32 v%d, 3, v0", pB)
    A("s_lshr_b32 s%d, s%d, 1\ns_and_b32 s%d, s%d, 1", sT1, sW, sT2, sW)
    sexpr(A, sT1, L_Q, (8*QK_RS, sT1), (96, sT2))
    A("v_mul_u32_u24 v%d, %d, v%d\nv_add_u32 v%d, s%d, v%d\nv_lshl_add_u32 v%d, v%d, 1, v%d", t0, 2*QK_RS, vG, t0, sT1, t0, vQKw, vN, t0)
    A("v_mul_u32_u24 v%d, %d, v%d\nv_lshl_add_u32 v%d, v%d, 4, v%d\nv_add_u32 v%d, %d, v%d", t0, QK_RS, t3, vQrd, vG, t0, vQrd, L_Q, vQrd)
    A("v_and_b32 v%d, 1, v%d\nv_lshlrev_b32 v%d, 8, v%d\nv_lshl_add_u32 v%d, v%d, 4, v%d\nv_add_u32 v%d, %d, v%d", t0, vG, t0, t0, vVMIr, vN, t0, vVMIr, L_VMI, vVMIr)
    A("v_lshlrev_b32 v%d, 4, v%d\nv_lshl_add_u32 v%d, v%d, 9, v%d", t0, vN, pA, vG, t0)
    A("v_lshrrev_b32 v%d, 3, v%d\nv_lshl_add_u32 v%d, v%d, 2, v%d\nv_mul_u32_u24 v%d, 10240, v%d\nv_and_b32 v%d, 7, v%d\nv_lshl_add_u32 v%d, v%d, 4, v%d", t1, vN, t1, t1, vG, t1, t1, t2, vN, pPB, t2, t1)
    A("v_lshl_add_u32 v%d, v%d, 3, v%d", pXP, vG, t0)
    lw = A.newlabel(); lw2 = A.newlabel()
    A("s_cmp_eq_u32 s%d, 0\ns_cbranch_scc1 %s", sW, lw)
    A("v_lshrrev_b32 v%d, 1, v%d\nv_lshl_add_u32 v%d, v%d, 8, v%d\nv_and_b32 v%d, 1, v%d\nv_lshl_add_u32 v%d, v%d, 2, v%d", t1, vG, t1, t1, t0, pVMst, vG, pVMst, pVMst, t1)
    sexpr(A, sT1, 0, (512, sWM1)); A("v_add_u32 v%d, s%d, v%d", pVMst, sT1, pVMst)
    sexpr(A, sT1, L_WV, (4096, sWM1)); A("v_add_u32 v%d, s%d, v%d", vWVrd, sT1, vL16)
    A("s_branch %s", lw2)
    A.label(lw)
    A("v_lshlrev_b32 v%d, 4, v%d\nv_lshl_add_u32 v%d, v%d, 7, v%d", t1, t2, pKM, vG, t1)
    A("v_mul_u32_u24 v%d, %d, v%d\nv_lshl_add_u32 v%d, v%d, 4, v%d\nv_add_u32 v%d, %d, v%d", t0, QK_RS, t2, vKrd, vG, t0, vKrd, L_K, vKrd)
    A.label(lw2)
    A("v_add_u32 v%d, %d, v%d", vKVr, L_KB, vL16)
    A("v_lshlrev_b32 v%d, 7, v0", pLT)
    sexpr(A, sT1, L_MEM, (320, sW))
    A("v_mul_u32_u24 v%d, %d, v%d\nv_add_u32 v%d, s%d, v%d", t0, 2*MEM_RS, vG, t0, sT1, t0)
    A("v_lshl_add_u32 v%d, v%d, 4, v%d\nv_lshl_add_u32 v%d, v%d, 2, v%d\nv_add_u32 v%d, 256, v%d", vMEMw, vN, t0, vMEMw4, vN, t0, vMEMw4, vMEMw4)
    A("v_cmp_lt_u32 vcc, 1, v%d\nv_mov_b32 v%d, 0\nv_mov_b32 v%d, 0xf149f2ca\nv_cndmask_b32 v%d, v%d, v%d, vcc", vG, t0, t1, vBias, t0, t1)

    stamp(1)
    vD = [vAF, vAF+1, vAF+2]
    vTRq = [vAF+3, vAF+4, vAF+5]
    vTRv = vAF+6
    sexpr(A, sT1, 0, (384, sH), (192, sU))
    for i in range(3):
        A("v_add_u32 v%d, %d, v0\nv_mul_u32_u24 v%d, 171, v%d\nv_lshrrev_b32 v%d, 11, v%d", t0, 64*i, t1, t0, t1, t1)
        A("v_mul_u32_u24 v%d, 12, v%d\nv_sub_u32 v%d, v%d, v%d", t2, t1, t2, t0, t2)
        A("v_mul_u32_u24 v%d, 12288, v%d\nv_lshl_add_u32 v%d, v%d, 4, v%d\nv_add_u32 v%d, s%d, v%d", t1, t1, t1, t2, t1, vD[i], sT1, t1)
    A("v_lshrrev_b32 v%d, 1, v%d\nv_and_b32 v%d, 1, v%d\nv_lshlrev_b32 v%d, 2, v%d\nv_lshl_add_u32 v%d, v%d, 4, v%d", t0, vG, t1, vG, t1, t1, t0, t0, t1)
    A("v_lshrrev_b32 v%d, 3, v%d\nv_lshl_add_u32 v%d, v%d, 3, v%d\nv_bfe_u32 v%d, v%d, 2, 1\nv_add_u32 v%d, v%d, v%d\nv_mul_u32_u24 v%d, 192, v%d", t1, vN, t0, t1, t0, t1, vN, t0, t0, t1, t5, t0)
    A("v_and_b32 v%d, 3, v%d", t4, vN)
    A("v_add_u32 v%d, %d, v%d", t5, L_WV, t5)
    A("v_lshl_add_u32 v%d, v%d, 3, v%d", vTRv, t4, t5)
    A("s_and_b32 s%d, s%d, 1\ns_mul_i32 s%d, s%d, 48", sT2, sW, sT2, sT2)
    for t in range(3):
        A("v_lshl_add_u32 v%d, v%d, 2, s%d\nv_add_u32 v%d, %d, v%d", t0, t4, sT2, t0, 16*t, t0)
        A("v_bfe_u32 v%d, v%d, 2, 1\nv_lshrrev_b32 v%d, 5, v%d", t3, t0, t2, t0)
        A("v_cmp_eq_u32 vcc, 2, v%d\nv_mad_u32_u24 v%d, v%d, 3, v%d\nv_mad_u32_u24 v%d, v%d, 3, 2", t2, t1, t2, t3, t3, t3)
        A("v_cndmask_b32 v%d, v%d, v%d, vcc\nv_lshlrev_b32 v%d, 4, v%d", t1, t1, t3, t1, t1)
        A("v_bfe_u32 v%d, v%d, 3, 2\nv_lshl_add_u32 v%d, v%d, 2, v%d", t3, t0, t1, t3, t1)
        A("v_lshl_add_u32 v%d, v%d, 1, v%d", vTRq[t], t1, t5)
    A("s_waitcnt lgkmcnt(0)")
    srds = {0: 8, 1: 84, 2: 92}
    for m_, sd in srds.items():
        A("s_mov_b32 s%d, s%d\ns_mov_b32 s%d, s%d\ns_mov_b32 s%d, %d\ns_mov_b32 s%d, 0x20000", sd, sPTR+4+2*m_, sd+1, sPTR+5+2*m_, sd+2, 640*6144*2, sd+3)
    sexpr(A, sGRP, 0, (32*12288, sW))
    sexpr(A, sM, L_WV, (6144, sW))
    if opt.get("qfirst"): seq = [(n//5, n % 5) for n in range(15)]
    else: seq = [(n % 2, n//2) for n in range(10)] + [(2, k) for k in range(5)]
    def w_dma(n):
        m_, ck = seq[n]
        for i in range(6):
            A("s_add_u32 s%d, s%d, %d\ns_add_u32 m0, s%d, %d", sT0, sGRP, (ck*128 + (i//3)*16)*12288, sM, (n % 5)*24576 + i*1024)
            A("s_nop 0\nbuffer_load_dwordx4 v%d, s[%d:%d], s%d offen lds", vD[i % 3], srds[m_], srds[m_]+3, sT0)
    for n in range(5): w_dma(n)
    A("s_mov_b32 s96, s%d\ns_mov_b32 s97, s%d\ns_mov_b32 s98, %d\ns_mov_b32 s99, 0x20000", sPTR+10, sPTR+11, 640*6144*2)
    A("v_and_b32 v%d, 1, v%d\nv_lshrrev_b32 v%d, 1, v%d\nv_lshlrev_b32 v%d, 2, v%d\nv_lshl_add_u32 v%d, v%d, 4, v%d\nv_mul_u32_u24 v%d, 1280, v%d", t0, vG, t1, vG, t1, t1, t0, t0, t1, t0, t0)
    sexpr(A, sT1, 0, (96*1280, sME), (320, sW))
    A("v_add_u32 v%d, s%d, v%d", t0, sT1, t0)
    A("v_lshl_add_u32 v%d, v%d, 4, v%d", t1, vN, t0)
    A("v_lshl_add_u32 v%d, v%d, 2, v%d\nv_add_u32 v%d, 256, v%d", t2, vN, t0, t2, t2)
    tb = vAF + 8
    areas = [vAF+8, vVX+0, vKX]
    for kap in range(3):
        for q in range(2):
            for r in range(4):
                A("s_mov_b32 s%d, %d", sT0, (32*kap + 8*q + r)*1280)
                A("buffer_load_dwordx4 %s, v%d, s[96:99], s%d offen", v(areas[kap] + 4*(4*q+r), 4), t1, sT0)
                A("buffer_load_dword %s, v%d, s[96:99], s%d offen", wo_reg(12+kap, q*4+r), t2, sT0)
    A("s_mov_b32 s%d, s%d\ns_mov_b32 s%d, s%d\ns_mov_b32 s%d, 10240\ns_mov_b32 s%d, 0x20000", 76, sPTR, 77, sPTR+1, 78, 79)
    for r in range(2):
        sexpr(A, sT1, L_MEM + r*MEM_RS, (2*MEM_RS, sW)); sexpr(A, sT2, r*1280, (2560, sW))
        A("s_mov_b32 m0, s%d\ns_nop 0\nbuffer_load_dwordx4 v%d, s[76:79], s%d offen lds", sT1, vL16, sT2)
        A("s_mov_b64 exec, 0xffff\nbuffer_load_dwordx4 v%d, s[76:79], s%d offen offset:1024 lds\ns_mov_b64 exec, -1", vL16, sT2)
    vIB = vBUF + 8
    for k in range(RING):
        inv = 1 - (k & 1)
        for r in range(4): A("v_mov_b32 v%d, %d", vIB+r, inv)
        A("s_add_u32 s%d, s%d, %d\nbuffer_store_dwordx4 %s, v%d, %s, s%d offen sc1", sT0, oSCst, k*SLOT, v(vIB,4), pSC, ws, sT0)
        A("s_add_u32 s%d, s%d, %d\nbuffer_store_dwordx4 %s, v%d, %s, s%d offen sc1", sT0, oPBst, k*SLOT, v(vIB,4), pA, ws, sT0)
        A("buffer_store_dwordx4 %s, v%d, %s, s%d offen offset:256 sc1", v(vIB,4), pA, ws, sT0)
        A("s_add_u32 s%d, s%d, %d\nbuffer_store_dwordx2 %s, v%d, %s, s%d offen sc1", sT0, oPBst2, k*SLOT, v(vIB,2), pL8, ws, sT0)
        lab = A.newlabel()
        A("s_cmp_ge_u32 s%d, 80\ns_cbranch_scc1 %s", sRW, lab)
        A("s_mov_b64 exec, 0x00ff00ff")
        A("s_add_u32 s%d, s%d, %d\nbuffer_store_dwordx2 %s, v%d, %s, s%d offen sc1", sT0, oXPst, k*SLOT, v(vIB,2), pXP, ws, sT0)
        if opt.get("ringr"): A("s_add_u32 s%d, s%d, %d\nbuffer_store_dwordx2 %s, v%d, %s, s%d offen sc1", sT0, oXPstr, k*SLOT, v(vIB,2), pXP, ws, sT0)
        elif k == 0:
            A("s_mov_b64 exec, -1\nv_mul_u32_u24 v%d, 20480, v%d\nv_and_b32 v%d, 7, v%d\nv_lshl_add_u32 v%d, v%d, 4, v%d", t0, vG, t1, vN, t0, t1, t0)
            A("v_and_b32 v%d, 1, v%d\nv_xor_b32 v%d, 1, v%d", vIB+4, vG, vIB+4, vIB+4)
            for r in range(1, 4): A("v_mov_b32 v%d, v%d", vIB+4+r, vIB+4)
            A("s_mov_b32 exec_lo, 0x00ff00ff\ns_mov_b32 exec_hi, 0x00ff00ff")
            for i in range(16):
                A("s_add_u32 s%d, s%d, %d\nbuffer_store_dwordx4 %s, v%d, %s, s%d offen sc1", sT0, oXPstr, i*4*20480, v(vIB+4,4), t0, ws, sT0)
        A("s_mov_b64 exec, -1")
        A.label(lab)
        A("s_nop 1")
    sexpr(A, sFCHo, F_CH, (64*128, sB), (128, sME))
    sexpr(A, sFKVo, F_KV, (32*256, sB), (256, sH))
    A("v_mov_b32 v%d, 0\ns_mov_b64 exec, 1\nbuffer_store_dword v%d, v%d, %s, s%d offen sc1\ns_mov_b64 exec, -1", t0, t0, t0, ws, sFCHo)
    cur = [0, 0]
    for n in range(10):
        m_, c = seq[n]
        A("s_waitcnt vmcnt(%d)\ns_barrier", 60 if n < 5 else 24)
        lab = A.newlabel()
        A("s_cmp_%s_u32 s%d, 2\ns_cbranch_scc1 %s", "ge" if m_ == 0 else "lt", sW, lab)
        d = ((n % 5) - cur[m_])*24576; cur[m_] = n % 5
        if d:
            for t in range(3): A("v_add_u32 v%d, %d, v%d", vTRq[t], d & 0xffffffff, vTRq[t])
        for kk in range(2):
            for t in range(3):
                for q in range(2):
                    for rp in range(2):
                        A("ds_read_b64_tr_b16 %s, v%d offset:%d", a(80*t + 8*(2*c+kk) + 4*q + 2*rp, 2), vTRq[t], (64*kk + 32*q + 2*rp)*192)
        A.label(lab)
        A("s_waitcnt lgkmcnt(0)\ns_barrier")
        w_dma(n+5)
        if n == 5:
            A("s_cmp_lg_u32 s%d, 0\ns_cbranch_scc1 L_ch_rdy", sW)
            A("s_mov_b64 exec, 1\nv_mov_b32 v%d, 1\nv_mov_b32 v%d, 0", t1, t0)
            A("buffer_atomic_add v%d, v%d, s[12:15], 0 offen offset:%d", t1, t0, D_READY)
            A("s_mov_b64 exec, -1")
            A.label("L_ch_rdy")
    def kv_dma(part):
        so = sKXO if part == 0 else sVXO
        if part == 0: A("s_mov_b32 m0, s%d\ns_xor_b32 s%d, s%d, %d", sKVB, sKVB, sKVB, 8192)
        else: A("s_mov_b32 m0, s%d\ns_nop 0", sVB)
        A("buffer_load_dwordx4 v%d, %s, s%d offen sc1 lds", vL16, ws, so)
        A("s_mov_b32 exec_hi, 0")
        A("buffer_load_dwordx4 v%d, %s, s%d offen offset:1024 sc1 lds", vL16, ws, so)
        A("s_mov_b32 exec_hi, -1\ns_add_u32 s%d, s%d, 12288", so, so)
    sexpr(A, sKVB, L_KB, (1536, sW))
    sexpr(A, sVB, L_VB, (1536, sW))
    A("s_mov_b32 s%d, 0\ns_mov_b32 s%d, 3", sAVAIL, sNEED)
    pstamp(1)
    A("v_mov_b32 v%d, 0", t0)
    A.label("L_ch_wait")
    A("buffer_load_dword v%d, v%d, s[12:15], 0 offen offset:%d sc1\ns_waitcnt vmcnt(0)", t1, t0, D_READY)
    A("v_cmp_gt_u32 vcc, %d, v%d\ns_cbranch_vccz L_ch_go0\ns_sleep 8\ns_branch %s", opt.get("nready", 256), t1, spin_stub(A, "L_ch_wait"))
    A.label("L_ch_go0")
    pstamp(2)
    def kv_check(add):
        if not opt.get("noflags"):
            lq = A.newlabel()
            A("s_add_u32 s%d, s%d, %d\ns_min_u32 s%d, s%d, 64\ns_cmp_ge_u32 s%d, s%d\ns_cbranch_scc1 %s", sNEED, sSTEP, add, sNEED, sNEED, sAVAIL, sNEED, lq)
            A("v_lshlrev_b32 v%d, 7, v0", t2)
            wait_flags(A, t2, t3, sFKVo, sNEED, 3, cache_sgpr=sAVAIL)
            A.label(lq)
    if not opt.get("nowarm"):
        for k in range(RING):
            A("s_add_u32 s%d, s%d, %d", sT0, oSCld, k*SLOT)
            for t in range(3): A("buffer_load_dwordx4 %s, v%d, %s, s%d offen offset:%d sc1", v(vAF,4), pSC, ws, sT0, 512*t)
            for i in range(4):
                A("s_add_u32 s%d, s%d, %d\nbuffer_load_dwordx4 %s, v%d, %s, s%d offen sc1", sT0, oPB0+i, k*SLOT, v(vAF,4), pPB, ws, sT0)
            A("s_add_u32 s%d, s%d, %d", sT0, oXPl0, k*SLOT)
            for t in range(2): A("buffer_load_dwordx4 %s, v%d, %s, s%d offen offset:%d sc1", v(vAF,4), pA, ws, sT0, 256*t)
            A("s_add_u32 s%d, s%d, %d\nbuffer_load_dwordx2 %s, v%d, %s, s%d offen sc1", sT0, oXPlB, k*SLOT, v(vAF,2), pB, ws, sT0)
    A("s_mov_b32 s%d, 0", sSTEP)
    kv_check(1)
    pstamp(3)
    kv_dma(0); kv_dma(1)
    kv_check(3 if opt.get("w3chk", 1) else 2)
    pstamp(4)
    kv_dma(0)
    A("s_barrier")
    for kap in range(3):
        for qr in range(8):
            for be in range(4):
                i = be*3+kap
                if i < 2: A("v_accvgpr_write_b32 %s, v%d", wo_reg(i, qr), areas[kap] + 4*qr + be)
                else: A("v_mov_b32 %s, v%d", wo_reg(i, qr), areas[kap] + 4*qr + be)
    stamp(2); stamp(3); pstamp(0)
    A("s_mov_b32 s%d, s%d", sT2, sW)
    A.label("L_wv_loop")
    A("s_mul_i32 s%d, s%d, 12288\nv_add_u32 v%d, s%d, v%d\nv_add_u32 v%d, s%d, v%d\nv_add_u32 v%d, %d, v%d", sT0, sT2, t0, sT0, vTRv, t1, sT0, vL16, t1, L_WV, t1)
    for tau in range(6):
        for q in range(2):
            for rp in range(2):
                A("ds_read_b64_tr_b16 %s, v%d offset:%d", v(vVX + 8*tau + 4*q + 2*rp, 2), t0, (32*q + 2*rp)*192 + 32*tau)
    A("s_waitcnt lgkmcnt(0)")
    for i in range(12):
        A("ds_write_b128 v%d, %s offset:%d", t1, v(vVX+4*i,4), 1024*i)
    A("s_waitcnt lgkmcnt(0)")
    A("s_add_u32 s%d, s%d, 4\ns_cmp_lt_u32 s%d, 10\ns_cbranch_scc1 L_wv_loop", sT2, sT2, sT2)

    stamp(4)
    A("s_waitcnt vmcnt(0)")
    pstamp(5)
    A.label("L_ch_go")
    stamp(5)
    A("s_mov_b32 s%d, 0\ns_mov_b32 s%d, 0\ns_mov_b32 s%d, 0", sSTEP, sSLOTI, sPAR)
    if timing:
        for i in range(90, 102): A("s_mov_b32 s%d, 0", i)
    A("s_waitcnt lgkmcnt(0)")

    for r in range(20): A("v_mov_b32 v%d, 0", vACC+r)
    vPS = vAF
    vS = vAF + 12
    vP = vAF + 24
    vVm = vAF + 28
    vOA = vAF + 28
    vP0 = vT[4]
    def sc_loads():
        for t in range(3):
            A("buffer_load_dwordx4 %s, v%d, %s, s%d offen offset:%d sc1", v(vPS+4*t,4), pSC, ws, oSCld, 512*t)
    def vread(i):
        kap, tt = i//2, i % 2
        if i == 10: A("v_add_u32 v%d, %d, v%d", vWVrd, 5*12288, vWVrd)
        for q in range(2):
            A("ds_read_b128 %s, v%d offset:%d", v(vBUF+8*(i % NVB)+4*q,4), vWVrd, (kap % 5)*12288 + tt*2048 + q*1024)
        if i == 19: A("v_subrev_u32 v%d, %d, v%d", vWVrd, 5*12288, vWVrd)
    def vproj(poll_at):
        for i in range(3, 6): vread(i)
        for i in range(20):
            A("s_waitcnt lgkmcnt(%d)", min(2*(NVB-1), 2*(19-i)))
            A("v_smfmac_f32_16x16x64_bf16 %s, %s, %s, v%d", v(vACC+12+4*(i % 2),4), v(vAF+4*(i//2),4), v(vBUF+8*(i % NVB),8), vIdxQK)
            if i + NVB < 20: vread(i+NVB)
        A("s_nop 7")
        for tt in range(2):
            A("v_add_f32 v%d, v%d, v%d\nv_add_f32 v%d, v%d, v%d", vACC+12+4*tt, vACC+12+4*tt, vACC+13+4*tt, vACC+14+4*tt, vACC+14+4*tt, vACC+15+4*tt)
            A("v_cvt_pk_bf16_f32 v%d, v%d, v%d\nds_write_b32 v%d, v%d offset:%d", vT[tt], vACC+12+4*tt, vACC+14+4*tt, pVMst, vT[tt], L_VMI+8*tt)
    A("v_lshlrev_b32 v%d, 2, v0\ns_mov_b64 exec, 0xff\nbuffer_load_dword v%d, v%d, s[12:15], 0 offen sc1\ns_waitcnt vmcnt(0)\nv_cmp_ne_u32 vcc, 32, v%d\ns_mov_b64 exec, -1\ns_cbranch_vccnz L_step_S", t0, t1, t0, t1)
    loop_start = len(A.lines); stub_start = len(A.stubs)
    A.label("L_step")
    A("s_barrier")
    ts(0)
    for kap in range(10):
        A("ds_read_b128 %s, v%d offset:%d", v(vAF+4*kap,4), vAmem, 128*kap)
    lk = A.newlabel(); lk2 = A.newlabel()
    A("s_cmp_eq_u32 s%d, 2\ns_cbranch_scc1 %s", sW, lk)
    def kxr(t):
        for kap in range(2): A("ds_read_b128 %s, v%d offset:%d", v(vKX+4*kap,4), vKVr, 2048*t + 1024*kap)
        for hi in range(2): A("ds_read_b64 %s, v%d offset:%d", v(vKX+8+2*hi,2), vKVr, 4096 + 1024*hi + 8*t)
    kxr(0)
    A("s_branch %s", lk2)
    A.label(lk)
    kxr(1)
    A.label(lk2)
    for kap in range(10):
        A("s_waitcnt lgkmcnt(%d)", 13-kap if kap < 4 else min(15, 19-kap))
        for t in range(3):
            A("v_smfmac_f32_16x16x64_bf16 %s, %s, %s, v%d", v(vACC+4*t,4), v(vAF+4*kap,4), a(80*t+8*kap,8), vIdxQK)
            if kap == 9: vread(t)
            if kap == 3:
                for tv in (2*t, 2*t+1): A("ds_read_b128 %s, v%d offset:%d", v(vVX+4*tv,4), vL16, L_VB+1024*tv)
            if kap == 5 and t == 0: A("v_xor_b32 v%d, 8192, v%d", vKVr, vKVr)
    A("s_mov_b32 s%d, %d", sT0, SLOT)
    A("s_cmp_eq_u32 s%d, %d\ns_cselect_b32 s%d, %d, s%d", sSLOTI, RING-1, sDELTA, (-(RING-1)*SLOT) & 0xffffffff, sT0)
    for t in range(3):
        if t == 2: A("s_nop 0")
        A("v_add_f32 v%d, v%d, v%d\nv_add_f32 v%d, v%d, v%d", vACC+4*t, vACC+4*t, vACC+4*t+1, vACC+4*t+2, vACC+4*t+2, vACC+4*t+3)
        A("v_cvt_pk_bf16_f32 v%d, v%d, v%d", vT[t], vACC+4*t, vACC+4*t+2)
        A("ds_write_b16 v%d, v%d offset:%d\nds_write_b16_d16_hi v%d, v%d offset:%d", vQKw, vT[t], 32*t, vQKw, vT[t], 32*t+QK_RS)
    A("s_waitcnt lgkmcnt(0)\ns_barrier")
    ts(1)
    A("s_cmp_eq_u32 s%d, 3\ns_cbranch_scc1 L_w3", sW)
    for kap in range(3):
        A("ds_read_b128 %s, v%d offset:%d", v(vACC+4*kap,4), vQrd, 64*kap)
    A("s_cmp_lg_u32 s%d, 0\ns_cbranch_scc1 L_sc_x", sW)
    for kap in range(3):
        A("ds_read_b128 %s, v%d offset:%d", v(vKX+4*kap,4), vKrd, 64*kap)
    A.label("L_sc_x")
    A("s_lshl_b32 s%d, s%d, 9\nv_add_u32 v%d, s%d, v%d", sT0, sW, t0, sT0, pSC)
    A("s_waitcnt lgkmcnt(0)")
    A("v_mfma_f32_16x16x32_bf16 %s, %s, %s, 0", v(vSC,4), v(vKX,4), v(vACC,4))
    for kap in (1, 2):
        A("v_mfma_f32_16x16x32_bf16 %s, %s, %s, %s", v(vSC,4), v(vKX+4*kap,4), v(vACC+4*kap,4), v(vSC,4))
    A("s_mov_b64 exec, s[%d:%d]", sEVEN, sEVEN+1)
    A("s_nop 6")
    for r in range(4): A("v_and_or_b32 v%d, v%d, -2, s%d", vSC+r, vSC+r, sPAR)
    A("buffer_store_dwordx4 %s, v%d, %s, s%d offen", v(vSC,4), pSC, ws, oSCst)
    A("ds_write_b128 v%d, %s offset:%d", t0, v(vSC,4), L_SCO)
    A("s_mov_b64 exec, -1")
    A("s_cmp_eq_u32 s%d, 0\ns_cbranch_scc1 L_w0", sW)
    A("s_waitcnt lgkmcnt(0)")
    vproj(0)
    A("s_branch L_b2p")
    A.label("L_w3")
    vproj(0)
    A("s_branch L_b2p")
    A.label("L_w0")
    def km_export():
        A("s_mov_b32 exec_lo, 0x00ff00ff\ns_mov_b32 exec_hi, 0x00ff00ff")
        for kap in range(3):
            A("buffer_store_dwordx4 %s, v%d, %s, s%d offen offset:%d sc1", v(vKX+4*kap,4), pKM, ws, sKMO, 512*kap)
        A("s_mov_b64 exec, -1")
    A("s_cmp_eq_u32 s%d, %d\ns_cbranch_scc1 L_b2p", sSTEP, nsteps-1)
    for h2 in range(2):
        A("v_pk_add_f32 %s, %s, %s op_sel_hi:[1,0]", v(vSC+2*h2,2), v(vSC+2*h2,2), v(vBias,2))
    if opt.get("pa0", 2): A("s_sleep %d", opt.get("pa0", 2))
    A.label("L_pa")
    sc_loads()
    A("s_waitcnt vmcnt(0)")
    tagcheck(A, range(vPS, vPS+12), t0, "L_pa")
    for h2 in range(2):
        A("v_pk_add_f32 %s, %s, %s", v(vPS+2*h2,2), v(vPS+2*h2,2), v(vSC+2*h2,2))
    A("s_mov_b64 exec, s[%d:%d]", sEVEN, sEVEN+1)
    for t in (1, 2, 0): A("ds_write_b128 v%d, %s offset:%d", pSC, v(vPS+4*t,4), L_PSC+512*t)
    A("s_mov_b64 exec, -1")
    A.label("L_b2p")
    A("s_waitcnt lgkmcnt(0)\ns_barrier")
    ts(2)
    for t in (1, 2):
        A("ds_read_b128 %s, v%d offset:%d", v(vS+4*t,4), pSC, L_SCO+512*t)
        A("ds_read_b128 %s, v%d offset:%d", v(vPS+4*t,4), pSC, L_PSC+512*t)
    A("ds_read_b128 %s, v%d offset:%d", v(vS,4), pSC, L_PSC)
    for t in range(3): A("ds_read_b128 %s, v%d offset:%d", v(vVm+4*t,4), vVMIr, 512*t)
    A("s_cmp_eq_u32 s%d, %d\ns_cbranch_scc1 L_ch_done", sSTEP, nsteps-1)
    if not opt.get("w3chk", 1): kv_check(2)
    if not opt.get("nov"): kv_dma(1)
    ts(3)
    for t in (1, 2):
        A("s_waitcnt lgkmcnt(%d)", 6 if t == 1 else 4)
        for h2 in range(2):
            A("v_pk_add_f32 %s, %s, %s", v(vS+4*t+2*h2,2), v(vS+4*t+2*h2,2), v(vPS+4*t+2*h2,2))
    A("v_max3_f32 v%d, v%d, v%d, v%d", t0, vS+4, vS+5, vS+6)
    A("v_max3_f32 v%d, v%d, v%d, v%d", t1, vS+7, vS+8, vS+9)
    A("v_max3_f32 v%d, v%d, v%d, v%d", t0, t0, vS+10, vS+11)
    A("s_waitcnt lgkmcnt(3)")
    A("v_max3_f32 v%d, v%d, v%d, v%d", t1, t1, vS, vS+1)
    A("v_max3_f32 v%d, v%d, v%d, v%d", t0, t0, vS+2, vS+3)
    A("v_max_f32 v%d, v%d, v%d\nv_max_f32 v%d, v%d, v%d", t2, t0, t1, t0, t0, t1)
    A("s_nop 1\nv_permlane32_swap_b32 v%d, v%d", t0, t2)
    A("v_max_f32 v%d, v%d, v%d\nv_max_f32 v%d, v%d, v%d", t1, t0, t2, t0, t0, t2)
    A("s_nop 1\nv_permlane16_swap_b32 v%d, v%d", t0, t1)
    A("v_max_f32 v%d, v%d, v%d\nv_mul_f32 v%d, s%d, v%d", t0, t0, t1, t0, sSCL, t0)
    def sfma(r): A("v_pk_fma_f32 %s, %s, s[%d:%d], %s op_sel_hi:[1,0,0] neg_lo:[0,0,1] neg_hi:[0,0,1]", v(vS+r,2), v(vS+r,2), sSCL, sSCL+1, v(t0,2))
    for r in range(4, 12, 2): sfma(r)
    for r in range(4, 12): A("v_exp_f32 v%d, v%d", vS+r, vS+r)
    for r in (0, 2): sfma(r)
    for i in range(4): A("v_cvt_pk_bf16_f32 v%d, v%d, v%d", vP+i, vS+4+2*i, vS+5+2*i)
    A("v_exp_f32 v%d, v%d\nv_exp_f32 v%d, v%d", vS, vS, vS+1, vS+1)
    ts(4)
    vO = vBUF
    pk = lambda d, x: "v_pk_add_f32 %s, %s, %s" % (v(d,2), v(d,2), v(x,2))
    side = {0: "v_exp_f32 v%d, v%d\nv_exp_f32 v%d, v%d" % (vS+2, vS+2, vS+3, vS+3),
            1: pk(vS+4, vS+6) + "\n" + pk(vS+8, vS+10) + "\nv_cvt_pk_bf16_f32 v%d, v%d, v%d" % (vP0, vS, vS+1),
            2: "v_cvt_pk_bf16_f32 v%d, v%d, v%d\n" % (vP0+1, vS+2, vS+3) + pk(vS, vS+2) + "\n" + pk(vS+4, vS+8),
            3: pk(vS, vS+4) + "\nv_add_f32 v%d, v%d, v%d\nv_add_f32 v%d, v%d, v%d\ns_nop 0" % (t0, vS, vS+1, t1, vS, vS+1),
            4: "v_permlane32_swap_b32 v%d, v%d\nv_add_f32 v%d, v%d, v%d\nv_add_f32 v%d, v%d, v%d\ns_nop 0" % (t0, t1, t2, t0, t1, t0, t0, t1),
            5: "v_permlane16_swap_b32 v%d, v%d\nv_add_f32 v%d, v%d, v%d\nv_rcp_f32 v%d, v%d\ns_waitcnt lgkmcnt(0)" % (t0, t2, t0, t0, t2, vS, t0)}
    for t in range(6):
        A("v_mfma_f32_16x16x32_bf16 %s, %s, %s, 0", v(vO+4*t,4), v(vVX+4*t,4), v(vP,4))
        A(side[t])
    def exports():
        A("v_and_b32 v%d, 7, v0\nv_lshrrev_b32 v%d, 4, v0\nv_mul_u32_u24 v%d, %d, v%d\nv_lshl_add_u32 v%d, v%d, 4, v%d", t0, t1, t2, QK_RS, t0, t2, t1, t2)
        for kap in range(3): A("ds_read_b128 %s, v%d offset:%d", v(vKX+4*kap,4), t2, L_K+64*kap)
        for p in range(3): A("ds_read_b128 %s, v%d offset:%d", v(vVX+4*p,4), vVMIr, 512*p)
        A("v_lshlrev_b32 v%d, 4, v%d\nv_lshl_add_u32 v%d, v%d, 7, v%d", t0, t0, t0, t1, t0)
        A("s_mov_b32 exec_lo, 0x00ff00ff\ns_mov_b32 exec_hi, 0x00ff00ff\ns_waitcnt lgkmcnt(3)")
        for kap in range(3):
            A("buffer_store_dwordx4 %s, v%d, %s, s%d offen offset:%d sc1", v(vKX+4*kap,4), t0, ws, sKMO, 512*kap)
        A("s_mov_b32 exec_lo, -1\ns_mov_b32 exec_hi, 0\ns_waitcnt lgkmcnt(0)")
        for p in range(3):
            A("buffer_store_dwordx4 %s, v%d, %s, s%d offen offset:%d sc1", v(vVX+4*p,4), vL16, ws, sVMO, 512*p)
        A("v_mov_b32 v%d, 0\nv_mov_b32 v%d, s%d\ns_mov_b64 exec, 1\nbuffer_store_dword v%d, v%d, %s, s%d offen sc1\ns_mov_b64 exec, -1", t2, t3, sSTEP, t3, t2, ws, sFCHo)
        A("s_add_u32 s%d, s%d, %d\ns_add_u32 s%d, s%d, %d", sKMO, sKMO, 3072, sVMO, sVMO, 3072)
    def ocvt(t):
        for h2 in range(2):
            A("v_pk_mul_f32 %s, %s, %s op_sel_hi:[1,0]", v(vO+4*t+2*h2,2), v(vO+4*t+2*h2,2), v(vS,2))
            A("v_cvt_pk_bf16_f32 v%d, v%d, v%d", vOA+2*t+h2, vO+4*t+2*h2, vO+4*t+2*h2+1)
    for t in range(6):
        A("v_mfma_f32_16x16x16_bf16 %s, %s, %s, %s", v(vO+4*t,4), v(vVm+2*t,2), v(vP0,2), v(vO+4*t,4))
        for r in range(4*t, min(4*t+4, 20)): A("v_mov_b32 v%d, 0", vACC+r)
    ocvt(0); ocvt(1); ocvt(2)
    ts(5)
    for kap in range(3):
        for be in range(5):
            A("v_smfmac_f32_16x16x64_bf16 %s, %s, %s, v%d", v(vACC+4*be,4), v(vOA+4*kap,4), wo_oct(be*3+kap), vIdxWo)
            if kap == 0 and be < 3: ocvt(3+be)
            if kap == 1 and be == 0: adv(oSCst, oSCld)
    A("s_nop 3")
    for be in range(5):
        for h2 in range(2):
            dst = vBUF + 4*h2 + be if be < 4 else vBUF + 8 + h2
            A("v_cvt_pk_bf16_f32 v%d, v%d, v%d", dst, vACC+4*be+2*h2, vACC+4*be+2*h2+1)
        if be == 3:
            for r in (0, 2, 4, 6): A("v_and_or_b32 v%d, v%d, -2, s%d", vBUF+r, vBUF+r, sPAR)
            A("buffer_store_dwordx4 %s, v%d, %s, s%d offen", v(vBUF,4), pA, ws, oPBst)
            A("buffer_store_dwordx4 %s, v%d, %s, s%d offen offset:256", v(vBUF+4,4), pA, ws, oPBst)
    A("v_and_or_b32 v%d, v%d, -2, s%d", vBUF+8, vBUF+8, sPAR)
    A("buffer_store_dwordx2 %s, v%d, %s, s%d offen", v(vBUF+8,2), pL8, ws, oPBst2)
    ts(6)
    if timing: ts(7)
    A("s_cmp_ge_u32 s%d, 80\ns_cbranch_scc1 L_nored", sRW)
    sets = [vVX, vAF]
    def pb_loads(k):
        for i in range(4):
            A("buffer_load_dwordx4 %s, v%d, %s, s%d offen sc1", v(sets[k]+4*i,4), pPB, ws, oPB0+i)
    if opt.get("pb0", 7): A("s_sleep %d", opt.get("pb0", 7))
    pb_loads(0)
    A("s_sleep %d", opt.get("pb1", 2))
    for k in range(2):
        A.label("L_pb%d" % k)
        pb_loads(1-k)
        A("s_waitcnt vmcnt(4)")
        A("v_mfma_f32_16x16x32_bf16 %s, %s, %s, 0", v(vKX,4), v(vSEL,4), v(sets[k],4))
        for i in (1, 2, 3):
            A("v_mfma_f32_16x16x32_bf16 %s, %s, %s, %s", v(vKX,4), v(vSEL,4), v(sets[k]+4*i,4), v(vKX,4))
        tagcheck(A, range(sets[k], sets[k]+16, 2), t1, "L_pb%d" % (1-k))
        if k == 0: A("s_branch L_pbok")
    A.label("L_pbok")
    for r in range(4): A("v_add_f32_dpp v%d, v%d, v%d row_ror:8 row_mask:0xf bank_mask:0xf", vKX+4+r, vKX+r, vKX+r)
    A("s_mov_b64 exec, 0x00ff00ff")
    A("v_cvt_pk_bf16_f32 v%d, v%d, v%d\nv_cvt_pk_bf16_f32 v%d, v%d, v%d", vKX+8, vKX+4, vKX+5, vKX+9, vKX+6, vKX+7)
    A("v_and_or_b32 v%d, v%d, -2, s%d", vKX+8, vKX+8, sPAR)
    if opt.get("swap"): A("buffer_store_dwordx2 %s, v%d, %s, s%d offen", v(vKX+8,2), pXP, ws, oXPst)
    A("buffer_store_dwordx2 %s, v%d, %s, s%d offen sc1", v(vKX+8,2), pXP, ws, oXPstr)
    if not opt.get("swap"): A("buffer_store_dwordx2 %s, v%d, %s, s%d offen", v(vKX+8,2), pXP, ws, oXPst)
    A("s_mov_b64 exec, -1")
    ts(7)
    if opt.get("pc0", 10): A("s_sleep %d", opt.get("pc0", 10))
    A("s_branch L_pc0")
    A.label("L_nored")
    lab = A.newlabel()
    A("s_cmp_lg_u32 s%d, 3\ns_cbranch_scc1 %s", sW, lab)
    if opt.get("expd", 22): A("s_sleep %d", opt.get("expd", 22))
    exports()
    if opt.get("prof"):
        lp = A.newlabel()
        A("s_and_b32 s%d, s%d, 7\ns_cbranch_scc1 %s", sT0, sSTEP, lp)
        A("s_memrealtime s[96:97]\ns_waitcnt lgkmcnt(0)\ns_mov_b64 exec, 1\nv_mov_b32 v%d, s96\nv_mov_b32 v%d, 0\ns_lshr_b32 s95, s%d, 1", t2, t3, sSTEP)
        sexpr(A, 98, DBG_OFF+131072+24, (256, 2), (64, sW), (1, 95), tmp=99)
        A("buffer_store_dword v%d, v%d, %s, s98 offen\ns_mov_b64 exec, -1", t2, t3, ws)
        A.label(lp)
    if opt.get("w3chk", 1): kv_check(4)
    if opt.get("expd", 22): A("s_branch L_pc0")
    A.label(lab)
    A("s_sleep %d", opt.get("pcn", 26))
    A.label("L_pc0")
    adv(oPBst, oPBst2, oPB0, oPB1, oPB2, oPB3, oXPst)
    advr(oXPstr)
    for r in range(20): A("v_mov_b32 v%d, 0", vACC+r)
    ts(8)
    vL, vR, vU = vBUF, vBUF+12, vAF
    def xp_loads(base, o0, oB):
        for rho in range(2):
            A("buffer_load_dwordx4 %s, v%d, %s, s%d offen offset:%d sc1", v(base+4*rho,4), pA, ws, o0, 256*rho)
        A("buffer_load_dwordx2 %s, v%d, %s, s%d offen sc1", v(base+8,2), pB, ws, oB)
    if not opt.get("seq", 1):
        xp_loads(vL, oXPl0, oXPlB)
        if opt.get("pc1", 0): A("s_sleep %d", opt.get("pc1", 0))
        xp_loads(vR, oXPr0, oXPrB)
        A("s_waitcnt vmcnt(3)\ns_branch L_pc1")
    A.label("L_pc")
    xp_loads(vL, oXPl0, oXPlB)
    A("s_waitcnt vmcnt(0)")
    A.label("L_pc1")
    tagcheck(A, range(vL, vL+10, 2), t1, "L_pc")
    ts(9)
    if opt.get("seq", 1): xp_loads(vR, oXPr0, oXPrB)
    for i in range(10):
        A("v_lshlrev_b32 v%d, 16, v%d\nv_and_b32 v%d, 0xffff0000, v%d", vU+2*i, vL+i, vU+2*i+1, vL+i)
    adv(oXPl0, oXPlB)
    A("s_add_u32 s%d, s%d, 1\ns_add_u32 s%d, s%d, 1\ns_cmp_eq_u32 s%d, %d\ns_cselect_b32 s%d, 0, s%d", sSTEP, sSTEP, sSLOTI, sSLOTI, sSLOTI, RING, sSLOTI, sSLOTI)
    A("s_branch L_pr1")
    A.label("L_pr")
    xp_loads(vR, oXPr0, oXPrB)
    A.label("L_pr1")
    A("s_waitcnt vmcnt(0)")
    tagcheck(A, range(vR, vR+10, 2), t1, "L_pr")
    ts(10)
    for i in range(10):
        A("v_dot2_f32_bf16 v%d, v%d, s%d, v%d\nv_dot2_f32_bf16 v%d, v%d, s%d, v%d", vU+2*i, vR+i, sONEL, vU+2*i, vU+2*i+1, vR+i, sONEH, vU+2*i+1)
    for i in range(10):
        A("v_cvt_pk_bf16_f32 v%d, v%d, v%d", vL+i, vU+2*i, vU+2*i+1)
        if i == 3: A("ds_write_b128 v%d, %s", vMEMw, v(vL,4))
        if i == 7: A("ds_write_b128 v%d, %s offset:%d", vMEMw, v(vL+4,4), MEM_RS)
    A("ds_write_b32 v%d, v%d\nds_write_b32 v%d, v%d offset:%d", vMEMw4, vL+8, vMEMw4, vL+9, MEM_RS)
    if not opt.get("w3chk", 1): kv_check(2)
    if not opt.get("nok"): kv_dma(0)
    advr(oXPr0, oXPrB)
    A("s_xor_b32 s%d, s%d, 1", sPAR, sPAR)
    if timing and not opt.get("os"):
        ts(11); ts(12)
        A("s_waitcnt lgkmcnt(0)")
        if opt.get("rt"):
            lab = A.newlabel()
            A("s_cmp_lg_u32 s%d, 41\ns_cbranch_scc1 %s", sSTEP, lab)
            for i in range(12): A("s_mov_b32 s%d, s%d", 90+i, sTS+2*i)
            A.label(lab)
        else:
          for i in range(12):
            A("s_sub_u32 s%d, s%d, s%d\ns_add_u32 s%d, s%d, s%d", sT0, sTS+2*(i+1), sTS+2*i, 90+i, 90+i, sT0)
    A("s_waitcnt lgkmcnt(0)")
    A("s_branch L_step")
    import re
    seg = A.lines[loop_start:]
    labs = set(l.strip()[:-1] for l in seg if l.strip().endswith(":")) | set(st for st, _ in A.stubs[stub_start:])
    pat = re.compile(r"\b(" + "|".join(sorted(labs, key=len, reverse=True)) + r")\b")
    for l in seg:
        l = pat.sub(lambda m: m.group(1) + "_S", l)
        if "buffer_store" in l and "sc1" not in l: l += " sc1"
        A.lines.append(l)
    for st, lb in list(A.stubs[stub_start:]): A.stubs.append((st + "_S", lb + "_S"))
    A.label("L_ch_done")
    A("s_waitcnt lgkmcnt(0)")
    lab = A.newlabel()
    A("s_cmp_lg_u32 s%d, 3\ns_cbranch_scc1 %s", sW, lab)
    exports()
    A.label(lab)
    if timing: A("s_mov_b32 s%d, s98\ns_mov_b32 s%d, s99\ns_mov_b32 s%d, s96\ns_mov_b32 s%d, s97", 64, 65, 66, 67)
    stamp(6)
    if timing: A("s_mov_b32 s98, s64\ns_mov_b32 s99, s65\ns_mov_b32 s96, s66\ns_mov_b32 s97, s67")
    if timing:
        sexpr(A, sT1, DBG_OFF, (256, 2), (64, sW))
        A("s_mov_b64 exec, 1\nv_mov_b32 v2, 0")
        for i in range(12):
            A("v_mov_b32 v1, s%d\nbuffer_store_dword v1, v2, %s, s%d offen offset:%d\ns_nop 1", 90+i, ws, sT1, 4*i)
        A("v_mov_b32 v1, s%d\nbuffer_store_dword v1, v2, %s, s%d offen offset:56\ns_nop 1", sME, ws, sT1)
        A("v_mov_b32 v1, s%d\nbuffer_store_dword v1, v2, %s, s%d offen offset:52\ns_nop 1", sB, ws, sT1)
        A("v_mov_b32 v1, 1\nbuffer_store_dword v1, v2, %s, s%d offen offset:60", ws, sT1)
        A("s_mov_b64 exec, -1")
    A("s_waitcnt vmcnt(0) lgkmcnt(0)\ns_barrier")
    lab = A.newlabel()
    A("s_cmp_lg_u32 s%d, 3\ns_cbranch_scc1 %s", sW, lab)
    A("v_mov_b32 v%d, 0\nv_mov_b32 v%d, 64\ns_mov_b64 exec, 1\nbuffer_store_dword v%d, v%d, %s, s%d offen sc1\ns_mov_b64 exec, -1", t0, t1, t1, t0, ws, sFCHo)
    A.label(lab)

def gen_chain_only(timing=True, opt={}):
    A = Asm()
    K = "chain_kernel"
    emit_common_prologue(A)
    A("s_cmp_ge_u32 s%d, 4\ns_cbranch_scc1 L_end", sT3)
    A("s_cmp_ge_u32 s%d, 32\ns_cbranch_scc1 L_end", sJ)
    A("s_lshr_b32 s%d, s%d, 1\ns_and_b32 s%d, s%d, 1", sB, sT3, sX, sT3)
    emit_chain(A, timing=timing, opt=opt)
    A.label("L_end")
    A("s_endpgm")
    emit_stubs(A, "L_abort")
    A.label("L_abort")
    emit_abort(A)
    return build_file([(K, 256, 256, 163840)], [(K, A, 512, 102, 256)])

if __name__ == "__main__":
    base = dict(nready=128, noflags=1)
    open("chain_t.s", "w").write(gen_chain_only(True, base))
    open("chain_r.s", "w").write(gen_chain_only(True, dict(base, rt=1)))
    import sys
    for i, arg in enumerate(sys.argv[1:]):
        open("chain_v%d.s" % i, "w").write(gen_chain_only(True, dict(base, **eval("dict(%s)" % arg))))
```

```python
import sys
from asmlib import *
from layout import *
import chain, bulk
from chain import sexpr, sW, sB, sX, sJ, sH, sT0, sT1, sT2, sT3, WS

def gen(opt={}, listform=False, prof=False):
    A = Asm(); K = KNAME + "_kernel"
    chain.emit_common_prologue(A)
    def stamp(i):
        if not prof: return
        A("s_memrealtime s[96:97]\ns_waitcnt lgkmcnt(0)\ns_mov_b64 exec, 1\nv_mov_b32 v1, s96\nv_mov_b32 v2, 0")
        sexpr(A, 98, DBG_OFF+131072, (256, 2), (64, sW), tmp=99)
        A("buffer_store_dword v1, v2, %s, s98 offen offset:%d\ns_mov_b64 exec, -1\ns_nop 1", WS, 4*i)
    A("s_mov_b32 s%d, s%d\ns_mov_b32 s%d, s%d", bulk.sXCD, sT3, bulk.sJJ, sJ)
    stamp(0)
    A("s_cmp_ge_u32 s%d, 4\ns_cbranch_scc1 L_bulk", sT3)
    A("s_lshr_b32 s%d, s%d, 1\ns_and_b32 s%d, s%d, 1", sB, sT3, sX, sT3)
    chain.emit_chain(A, timing=False, opt=opt)
    stamp(1)
    A("s_mov_b32 s%d, 0\ns_branch L_op", bulk.sIT)
    A.label("L_bulk")
    A("s_bfe_u32 s%d, s%d, 0x10001\ns_and_b32 s%d, s%d, 1\ns_lshr_b32 s%d, s%d, 1", sB, sT3, sT1, sT3, sT2, sJ)
    sexpr(A, sH, 0, (16, sT1), (1, sT2))
    A("s_and_b32 s%d, s%d, 1", bulk.sMAT, sJ)
    sexpr(A, sT1, F_KV, (32*256, sB), (256, sH), (128, bulk.sMAT))
    lab = A.newlabel()
    A("s_cmp_lg_u32 s%d, 0\ns_cbranch_scc1 %s", sW, lab)
    A("v_mov_b32 v1, 0\nv_lshlrev_b32 v3, 7, v0\ns_mov_b32 s%d, %d", sT0, SK_OFF)
    lz = A.newlabel()
    A("s_cmp_lg_u32 s%d, 0\ns_cbranch_scc1 %s", sJ, lz)
    A("buffer_store_dword v1, v3, %s, s%d offen sc1\ns_add_u32 s%d, s%d, 8192\nbuffer_store_dword v1, v3, %s, s%d offen sc1", WS, sT0, sT0, sT0, WS, sT0)
    A.label(lz)
    A("v_mov_b32 v1, 0\nv_mov_b32 v2, 1\ns_mov_b64 exec, 1\nbuffer_store_dword v1, v1, %s, s%d offen sc1\ns_waitcnt vmcnt(0)", WS, sT1)
    A("buffer_atomic_add v2, v1, s[12:15], 0 offen offset:%d\ns_mov_b64 exec, -1", D_READY)
    A.label(lab)
    bulk.emit_kv(A)
    stamp(2)
    A("s_cmp_eq_u32 s%d, 0\ns_cbranch_scc1 L_qa", bulk.sMAT)
    bulk.emit_wof(A)
    stamp(4)
    A.label("L_qa")
    A("v_mov_b32 v1, 0")
    bulk.dbg_wait(A, None, D_READY, 256, 1, 2)
    bulk.emit_qa(A)
    stamp(3)
    A("s_mov_b32 s%d, s%d", bulk.sIT, bulk.sMAT)
    A.label("L_op")
    bulk.emit_op(A, prof)
    stamp(5)
    A.label("L_end")
    A("s_endpgm")
    chain.emit_stubs(A, "L_abort")
    A.label("L_abort")
    chain.emit_abort(A)
    txt = build_file([(K, 256, 256, 163840)], [(K, A, 512, 102, 256)])
    if not listform: txt = txt.replace("; @launch kernel=%s grid" % K, "; @launch grid")
    return txt

import os
OPT = eval("dict(%s)" % os.environ.get("CH_OPT", ""))
if __name__ == "__main__":
    open("cdna_kernels/%s.s" % KNAME, "w").write(gen(OPT))
    open("gen/%s" % (sys.argv[1] if len(sys.argv) > 1 else "all_l.s"), "w").write(gen(OPT, listform=True, prof=True))
```
